```python
import torch

def _softmax(x, axis=-1):
    return torch.softmax(x, dim=axis)
def _gelu(x):
    return torch.nn.functional.gelu(x, approximate="tanh")
def _silu(x):
    return torch.nn.functional.silu(x)
def _sigmoid(x):
    return torch.sigmoid(x)
def _layernorm(x, axis=-1, eps=1e-5):
    m = x.mean(dim=axis, keepdim=True)
    v = x.var(dim=axis, keepdim=True, unbiased=False)
    return (x - m) / torch.sqrt(v + eps)
def _scatter_add(tgt, idx, src, axis=0):
    return tgt.clone().index_add_(axis, idx, src)
def _segment_sum(src, seg, n):
    out = torch.zeros((n,) + src.shape[1:], dtype=src.dtype)
    return out.index_add_(0, seg, src)
def _pad(x, pw):
    flat = tuple(v for pair in reversed(pw) for v in pair)
    return torch.nn.functional.pad(x, flat)

kernel_name = 'gated_mix__linear_attn_block__glu_gated_swiglu__prompt'

def setup_inputs():

    _w = (lambda a: (lambda t: t.to(torch.bfloat16) if t.is_floating_point() else t)(torch.as_tensor(a)))
    def _A_setup():
        B, S, D = 1, 2048, 512
        return {
            "x": _w((lambda *s: torch.randn(*s, dtype=torch.bfloat16) * 0.05)(B, S, D)),
            "wqkv": _w((lambda *s: torch.randn(*s, dtype=torch.bfloat16) * 0.8)(D, 3 * D)),
            "wo": _w((lambda *s: torch.randn(*s, dtype=torch.bfloat16) * 0.05)(D, D)),
        }
    _A_in = _A_setup()

    def _B_setup():
        B, S, D, F = 1, 2048, 512, 1376
        return {
            "x": _w((lambda *s: torch.randn(*s, dtype=torch.bfloat16) * 0.05)(B, S, D)),
            "w1": _w((lambda *s: torch.randn(*s, dtype=torch.bfloat16) * 1.6)(D, F) * (2.0 / D) ** 0.5),
            "w3": _w((lambda *s: torch.randn(*s, dtype=torch.bfloat16) * 1.6)(D, F) * (2.0 / D) ** 0.5),
            "w2": _w((lambda *s: torch.randn(*s, dtype=torch.bfloat16) * 1.6)(F, D) * (2.0 / F) ** 0.5),
        }
    _B_in = _B_setup()

    return {
        "A_x": _A_in["x"],
        "A_wqkv": _A_in["wqkv"],
        "A_wo": _A_in["wo"],
        "B_x": _B_in["x"],
        "B_w1": _B_in["w1"],
        "B_w3": _B_in["w3"],
        "B_w2": _B_in["w2"],
        "gate_w": _w((lambda *s: torch.randn(*s, dtype=torch.bfloat16) * 0.05)(512) * 16.0),
    }

def reference(A_x, A_wqkv, A_wo, B_x, B_w1, B_w3, B_w2, gate_w):
    def _A_ref(x, wqkv, wo):
        B, S, D = x.shape
        H = 32; Dh = D // H
        qkv = (lambda x, *d: x.permute(*d))((x @ wqkv).reshape(B, S, 3, H, Dh), 2, 0, 3, 1, 4)
        q, k, v = qkv[0], qkv[1], qkv[2]
        phi = lambda t: torch.where(t > 0, t + 1, torch.exp(t)) + 1e-6
        pq, pk = phi(q), phi(k)
        kv = torch.einsum("bhsd,bhse->bhde", pk, v)
        z = torch.einsum("bhsd->bhd", pk)
        num = torch.einsum("bhqd,bhde->bhqe", pq, kv)
        den = torch.einsum("bhqd,bhd->bhq", pq, z)[..., None] + 1e-6
        o = num / den
        return (lambda x, *d: x.permute(*d))(o, 0, 2, 1, 3).reshape(B, S, D) @ wo

    def _B_ref(x, w1, w3, w2):
        gate = torch.einsum("bsd,df->bsf", x, w1)
        up = torch.einsum("bsd,df->bsf", x, w3)
        h = _silu(gate) * up
        out = torch.einsum("bsf,fd->bsd", h, w2)
        return out

    x = A_x
    g = _sigmoid((x * gate_w).sum(-1, keepdims=True))
    a = _A_ref(x, A_wqkv, A_wo)
    b = _B_ref(x, B_w1, B_w3, B_w2)
    return g * a + (1 - g) * b
```

```python
NAME = "gated_mix__linear_attn_block__glu_gated_swiglu__prompt"
class Asm:
    def __init__(self): self.l = []
    def __call__(self, s=""):
        for x in s.split("\n"): self.l.append(x)
    def text(self): return "\n".join(self.l) + "\n"
def header(a, launches):
    for x in launches: a(x)
    a('.amdgcn_target "amdgcn-amd-amdhsa--gfx950"')
    a('.text')
def kstart(a, name):
    a(f'.globl {name}\n.p2align 8\n.type {name},@function\n{name}:')
def kdesc(a, name, vgpr, accum, sgpr=102):
    a(f'''.amdhsa_kernel {name}
  .amdhsa_next_free_vgpr {vgpr}
  .amdhsa_next_free_sgpr {sgpr}
  .amdhsa_accum_offset {accum}
  .amdhsa_group_segment_fixed_size 0
  .amdhsa_kernarg_size 88
  .amdhsa_user_sgpr_count 2
  .amdhsa_user_sgpr_kernarg_segment_ptr 1
  .amdhsa_system_sgpr_workgroup_id_x 1
.end_amdhsa_kernel''')
def rodata(a):
    a('.section .rodata,"a"\n.p2align 6')
def srd(a, d, lo, nbytes):
    a(f's_mov_b32 s{d}, s{lo}\ns_and_b32 s{d+1}, s{lo+1}, 0xffff\ns_mov_b32 s{d+2}, {nbytes}\ns_mov_b32 s{d+3}, 0x00020000')
```

```python
import sys
from asmlib import *
STAMP = "--stamp" in sys.argv
OUT = [x for x in sys.argv[1:] if not x.startswith("--")][0]
EXTRA = [x[8:] for x in sys.argv if x.startswith("--extra=")]

SLOT = 49216; XIMG = 24576; W3OFF = 12320
GATE_LDS = 3 * SLOT
G_LDS = GATE_LDS + 1024
H_OFF = 0; P_OFF = 8 << 20; G_OFF = 10 << 20; ST_OFF = 12 << 20
NKS = 118
LOG2E = 0x3fb8aa3b; NLOG2E = 0xbfb8aa3b; EPS = 0x358637bd

a = Asm()
launches = []
for e in EXTRA:
    if e == "empty": launches.append("; @launch kernel=empty_kernel grid=(256,1,1) block=(64,1,1) lds=0")
    if e == "probe": launches.append("; @launch kernel=probe_kernel grid=(256,1,1) block=(256,1,1) lds=0")
launches += ["; @launch kernel=k1_kernel grid=(256,1,1) block=(512,1,1) lds=163840",
             "; @launch kernel=k2_kernel grid=(256,1,1) block=(256,1,1) lds=0",
             "; @launch kernel=k3_kernel grid=(256,1,1) block=(512,1,1) lds=163840"]
header(a, launches)

def load_args():
    a("s_load_dwordx16 s[4:19], s[0:1], 0\ns_load_dwordx4 s[20:23], s[0:1], 64\ns_load_dwordx2 s[24:25], s[0:1], 80")

nst = 0
def stamp(i):
    if STAMP: a(f"s_memtime s[{64+2*i}:{65+2*i}]")
def dump_stamps(n, kidx):
    if not STAMP: return
    a("s_waitcnt lgkmcnt(0)")
    a("s_memrealtime s[62:63]\ns_waitcnt lgkmcnt(0)")
    for i in range(16):
        if i < n: a(f"v_mov_b32 v{i+8}, s{64+2*i}")
        elif i == 15: a("v_mov_b32 v23, s62")
        else: a(f"v_mov_b32 v{i+8}, 0")
    a(f"s_lshl_b32 s60, s2, 3\ns_add_u32 s60, s60, s28\ns_lshl_b32 s60, s60, 6\ns_add_u32 s60, s60, {ST_OFF + kidx*(256<<10)}")
    a("v_mov_b32 v1, 0")
    for q in range(4): a(f"buffer_store_dwordx4 v[{8+4*q}:{11+4*q}], v1, s[44:47], s60 offen offset:{16*q}")

kstart(a, "k1_kernel")
a("s_cmp_ge_u32 s2, 256\ns_cbranch_scc1 K1_end")
stamp(0)
load_args()
a("v_lshrrev_b32 v1, 6, v0\nv_and_b32 v0, 63, v0\nv_readfirstlane_b32 s28, v1")
a("""s_and_b32 s30, s2, 7
s_lshr_b32 s31, s2, 3
s_lshr_b32 s52, s30, 1
s_and_b32 s30, s30, 1
s_lshl_b32 s30, s30, 5
s_add_u32 s30, s30, s31
s_mul_i32 s53, s52, 6
s_cmp_eq_u32 s52, 3
s_cbranch_scc1 K1_q3
s_cmp_lt_u32 s30, 54
s_cbranch_scc0 K1_qa2
s_mul_i32 s26, s30, 43
s_lshr_b32 s26, s26, 8
s_mul_i32 s31, s26, 6
s_sub_u32 s31, s30, s31
s_add_u32 s27, s53, s31
s_branch K1_mapped
K1_qa2:
s_sub_u32 s30, s30, 54
s_cmp_ge_u32 s30, 5
s_cselect_b32 s26, 10, 9
s_cselect_b32 s31, 5, 0
s_sub_u32 s31, s30, s31
s_add_u32 s27, s53, s31
s_branch K1_mapped
K1_q3:
s_cmp_lt_u32 s30, 55
s_cbranch_scc0 K1_qb2
s_mul_i32 s26, s30, 52
s_lshr_b32 s26, s26, 8
s_mul_i32 s31, s26, 5
s_sub_u32 s31, s30, s31
s_add_u32 s27, s31, 18
s_branch K1_mapped
K1_qb2:
s_cmp_lt_u32 s30, 61
s_cbranch_scc0 K1_end
s_sub_u32 s30, s30, 55
s_and_b32 s26, s30, 1
s_add_u32 s26, s26, 9
s_lshr_b32 s31, s30, 1
s_mul_i32 s31, s31, 6
s_add_u32 s27, s31, 5
K1_mapped:
s_mul_i32 s29, s26, 192
s_min_u32 s29, s29, 1856""")
a("s_cmp_ge_u32 s28, 4\ns_cbranch_scc0 K1_M")
a("s_sub_u32 s54, s28, 4")
a("v_lshrrev_b32 v2, 3, v0\nv_and_b32 v3, 7, v0\nv_lshrrev_b32 v4, 4, v0")
a("v_xor_b32 v5, v3, v4\nv_lshlrev_b32 v5, 4, v5")
a("v_lshl_add_u32 v6, v2, 10, v5")
for i in range(6):
    if i % 2 == 0: a(f"v_add_u32 v{16+i}, {i*8192}, v6")
    else: a(f"v_xor_b32 v7, 64, v6\nv_add_u32 v{16+i}, {i*8192}, v7")
a(f"v_add_u32 v28, {GATE_LDS}, v5\nv_xor_b32 v7, 64, v5\nv_add_u32 v29, {GATE_LDS}, v7")
a("s_mul_i32 s55, s54, 6144\nv_lshlrev_b32 v31, 4, v0\nv_add_u32 v30, s55, v31")
for i in range(6): a(f"v_mov_b32 v{32+i}, 0")
a("s_mul_i32 s56, s54, 48\ns_add_u32 s56, s56, s29\ns_lshl_b32 s56, s56, 10")
a("s_cmp_lt_u32 s27, 8\ns_cbranch_scc1 K1_Lqkv")
for i in range(3):
    a(f"v_add_u32 v8, {64*i}, v0\nv_mul_u32_u24 v9, 43691, v8\nv_lshrrev_b32 v9, 19, v9")
    a(f"v_mul_u32_u24 v10, 12, v9\nv_sub_u32 v10, v8, v10\nv_mul_u32_u24 v9, 2752, v9\nv_lshl_add_u32 v{22+i}, v10, 4, v9\nv_mov_b32 v{25+i}, v{22+i}")
a("s_sub_u32 s57, s27, 8\ns_mul_i32 s57, s57, 192\ns_min_u32 s57, s57, 2560")
a(f"s_mul_i32 s58, s54, {16*2752}\ns_add_u32 s57, s57, s58\ns_mov_b32 s59, {64*2752}")
a(f"s_mul_i32 s58, s54, 3072\ns_add_u32 s58, s58, {XIMG}")
for i in range(6): a(f"s_add_u32 s{90+i}, s58, {(i%3)*1024 + (W3OFF if i>=3 else 0)}")
a(f"s_mov_b32 s96, {LOG2E}")
a("s_waitcnt lgkmcnt(0)")
srd(a, 36, 12, 512*2752); srd(a, 40, 14, 512*2752)
a("s_branch K1_Lgo")
a("K1_Lqkv:")
a("v_and_b32 v8, 1, v4\nv_lshlrev_b32 v8, 2, v8\nv_xor_b32 v8, v8, v3\nv_lshlrev_b32 v8, 4, v8\nv_mul_u32_u24 v9, 3072, v2\nv_add_u32 v8, v8, v9")
for i in range(6): a(f"v_add_u32 v{22+i}, {(i//2)*1024 + (i%2)*8*3072}, v8")
a(f"s_lshl_b32 s57, s27, 7\ns_mul_i32 s58, s54, {16*3072}\ns_add_u32 s57, s57, s58\ns_mov_b32 s59, {64*3072}")
a(f"s_lshl_b32 s58, s54, 11\ns_add_u32 s58, s58, {XIMG}")
for i in range(6): a(f"s_add_u32 s{90+i}, s58, {(i//2)*8192 + (i%2)*1024}")
a(f"s_mov_b32 s96, {NLOG2E}")
a("s_waitcnt lgkmcnt(0)")
srd(a, 36, 6, 512*3072); srd(a, 40, 6, 512*3072)
a("K1_Lgo:")
srd(a, 32, 4, 2048*1024); srd(a, 44, 24, 64 << 20); srd(a, 48, 18, 1024)
stamp(1)
def dma(q, slotreg, xs, ws_):
    if q < 6:
        a(f"s_add_u32 s97, {slotreg}, s55\ns_add_u32 m0, s97, {q*1024}")
        a("s_nop 0")
        a(f"buffer_load_dwordx4 v{16+q}, s[32:35], {xs} offen lds")
    else:
        i = q - 6
        a(f"s_add_u32 m0, {slotreg}, s{90+i}\ns_nop 0")
        a(f"buffer_load_dwordx4 v{22+i}, s[{36 if i<3 else 40}:{39 if i<3 else 43}], {ws_} offen lds")
a(f"s_mov_b32 m0, {GATE_LDS}\ns_nop 0\nbuffer_load_dwordx4 v31, s[48:51], 0 offen lds")
a(f"s_mov_b32 s84, 0\ns_mov_b32 s85, {SLOT}\ns_mov_b32 s86, {2*SLOT}")
for q in range(12): dma(q, "s84", "s56", "s57")
a("s_add_u32 s56, s56, 128\ns_add_u32 s57, s57, s59")
for q in range(8): dma(q, "s85", "s56", "s57")
a("s_mov_b32 s87, 0")
def gdot_reads():
    a("v_add_u32 v12, s84, v30")
    a("ds_read_b128 v[40:43], v28\nds_read_b128 v[44:47], v29")
    for i in range(6): a(f"ds_read_b128 v[{48+4*i}:{51+4*i}], v12 offset:{i*1024}")
    a("v_add_u32 v28, 128, v28\nv_add_u32 v29, 128, v29")
def gdot():
    a("s_waitcnt lgkmcnt(0)")
    for d in range(4):
        for i in range(6): a(f"v_dot2c_f32_bf16 v{32+i}, v{48+4*i+d}, v{(40 if i%2==0 else 44)+d}")
a("K1_Lloop:")
a("s_waitcnt vmcnt(8)\ns_barrier")
gdot_reads()
for q in range(8, 12): dma(q, "s85", "s56", "s57")
gdot()
a("s_add_u32 s56, s56, 128\ns_add_u32 s57, s57, s59")
for q in range(8): dma(q, "s86", "s56", "s57")
a("s_mov_b32 s97, s84\ns_mov_b32 s84, s85\ns_mov_b32 s85, s86\ns_mov_b32 s86, s97")
a("s_add_u32 s87, s87, 1\ns_cmp_lt_u32 s87, 6\ns_cbranch_scc1 K1_Lloop")
a("s_waitcnt vmcnt(8)\ns_barrier")
gdot_reads()
for q in range(8, 12): dma(q, "s85", "s56", "s57")
gdot()
a("s_mov_b32 s84, s85")
a("s_waitcnt vmcnt(0)")
stamp(2)
a("s_barrier")
gdot_reads(); gdot()
a("s_nop 2")
for ctl in ["quad_perm:[1,0,3,2]", "quad_perm:[2,3,0,1]", "row_half_mirror"]:
    for i in range(6): a(f"v_add_f32_dpp v{32+i}, v{32+i}, v{32+i} {ctl} row_mask:0xf bank_mask:0xf")
for i in range(6): a(f"v_mul_f32 v{32+i}, s96, v{32+i}")
for i in range(6): a(f"v_exp_f32 v{32+i}, v{32+i}")
for i in range(6): a(f"v_add_f32 v{32+i}, 1.0, v{32+i}")
for i in range(6): a(f"v_rcp_f32 v{32+i}, v{32+i}")
a(f"s_mul_i32 s97, s54, 192\ns_add_u32 s97, s97, {G_LDS}\nv_lshl_add_u32 v12, v2, 2, s97")
for i in range(6): a(f"ds_write_b32 v12, v{32+i} offset:{i*32}")
a("s_cmp_lt_u32 s27, 8\ns_cbranch_scc0 K1_Lnog")
a(f"s_mul_i32 s97, s54, 48\ns_add_u32 s97, s97, s29\ns_lshl_b32 s97, s97, 2\ns_add_u32 s97, s97, {G_OFF}\nv_lshlrev_b32 v12, 2, v2")
for i in range(6): a(f"buffer_store_dword v{32+i}, v12, s[44:47], s97 offen offset:{i*32}")
a("K1_Lnog:")
a("s_waitcnt lgkmcnt(0)\ns_barrier")
stamp(3)
dump_stamps(4, 0)
a("s_endpgm")

ACC = 0
FR = 144
VX = 192; VW = 196; VL = 197; VG = 198
def acc(ti, fi): return ACC + 16 * (3 * fi + ti)
def fx(st, ti): return FR + 24 * st + 4 * ti
def fw(st, fi): return FR + 24 * st + 12 + 4 * fi
a("K1_M:")
a("s_lshr_b32 s54, s28, 1\ns_and_b32 s55, s28, 1")
a("v_and_b32 v2, 31, v0\nv_lshrrev_b32 v3, 5, v0")
a("v_bfe_u32 v4, v0, 1, 3")
a("s_mul_i32 s56, s54, 96\nv_add_u32 v5, s56, v2\nv_lshlrev_b32 v6, 7, v5")
for s in range(4):
    a(f"v_add_u32 v7, {2*s}, v3\nv_xor_b32 v7, v7, v4\nv_lshl_add_u32 v{VX+s}, v7, 4, v6")
a(f"v_lshlrev_b32 v{VL}, 4, v0")
a(f"v_lshlrev_b32 v201, 2, v5\nv_add_u32 v201, {G_LDS}, v201")
a("v_bfe_u32 v8, v0, 4, 1\nv_bfe_u32 v9, v0, 2, 2\nv_and_b32 v10, 3, v0")
a("v_lshl_add_u32 v11, v3, 3, v9")
a("v_and_b32 v202, 16, v0")
a("s_mov_b32 s84, 0\ns_mov_b32 s87, 0")
a("s_cmp_lt_u32 s27, 8\ns_cbranch_scc1 K1_Mqkv")

def kloop(kind):
    def wimm(s, fi, rd):
        return s * 3072 + rd * 768 + 32 * fi if kind == "ffn" else fi * 8192 + s * 2048 + rd * 512
    def reads(st, s):
        r = []
        for i in range(3):
            r.append(f"ds_read_b128 v[{fx(st,i)}:{fx(st,i)+3}], v{VX+s} offset:{4096*i}")
        w = []
        for i in range(3):
            w.append([f"ds_read_b64_tr_b16 v[{fw(st,i)+2*rd}:{fw(st,i)+2*rd+1}], v{VW} offset:{wimm(s,i,rd)}" for rd in range(2)])
        return [r[0], w[0][0], w[0][1], r[1], r[2], w[1][0], w[1][1], w[2][0], w[2][1]]
    def mf(st, ti, fi):
        d = acc(ti, fi)
        A, B = fw(st, fi), fx(st, ti)
        if kind == "qkv" and fi > 0: A, B = B, A
        return f"v_mfma_f32_32x32x16_bf16 v[{d}:{d+15}], v[{A}:{A+3}], v[{B}:{B+3}], v[{d}:{d+15}]"
    for r in range(144): a(f"v_mov_b32 v{r}, 0")
    a("s_waitcnt lgkmcnt(0)")
    srd(a, 44, 24, 64 << 20)
    stamp(1)
    a("s_barrier")
    stamp(2)
    for x in reads(0, 0): a(x)
    a(f"K1_Mloop_{kind}:")
    for s in range(4):
        st = s & 1
        rd = reads(st ^ 1, (s + 1) & 3)
        a("s_waitcnt lgkmcnt(0)")
        n = 0
        for fi in range(3):
            for ti in range(3):
                a(mf(st, ti, fi))
                if n == 0 and s == 3:
                    a(f"s_cmp_eq_u32 s84, {2*SLOT}\ns_cselect_b32 s85, {(-2*SLOT) & 0xffffffff}, s86\ns_add_u32 s84, s84, s85")
                    a("s_barrier")
                    a(f"v_add_u32 v{VX}, s85, v{VX}\nv_add_u32 v{VW}, s85, v{VW}")
                if n < 5:
                    for x in rd[2*n:2*n+2]: a(x)
                elif s == 3 and n < 8:
                    a(f"v_add_u32 v{VX+n-4}, s85, v{VX+n-4}")
                n += 1
    a(f"s_add_u32 s87, s87, 1\ns_cmp_lt_u32 s87, 8\ns_cbranch_scc1 K1_Mloop_{kind}")
    stamp(3)
    for i in range(3): a(f"ds_read_b32 v{VG+i}, v201 offset:{128*i}")

a(f"v_mul_u32_u24 v12, {W3OFF}, v8\nv_mul_u32_u24 v13, 192, v11\nv_add_u32 v12, v12, v13\nv_lshl_add_u32 v12, v10, 3, v12")
a(f"s_mul_i32 s56, s55, 96\ns_add_u32 s56, s56, {XIMG}\nv_add_u32 v{VW}, s56, v12")
a(f"s_mov_b32 s86, {SLOT}")
kloop("ffn")
a("s_lshr_b32 s56, s29, 5\ns_mul_i32 s57, s54, 3\ns_add_u32 s56, s56, s57\ns_mul_i32 s56, s56, 118")
a("s_sub_u32 s57, s27, 8\ns_mul_i32 s57, s57, 6\ns_min_u32 s57, s57, 80\ns_add_u32 s56, s56, s57\ns_mul_i32 s57, s55, 3\ns_add_u32 s56, s56, s57\ns_lshl_b32 s56, s56, 10")
a(f"s_add_u32 s57, s56, {118*1024}\ns_add_u32 s58, s56, {2*118*1024}")
a(f"s_mov_b32 s96, {NLOG2E}")
a("s_waitcnt lgkmcnt(0)\ns_nop 7")
T = FR
for fi in range(3):
    for ti in range(3):
        d = acc(ti, fi); t = T + 16 * ((3 * fi + ti) & 1)
        for j in range(8): a(f"v_mul_f32 v{t+j}, s96, v{d+j}")
        for j in range(8): a(f"v_exp_f32 v{t+j}, v{t+j}")
        for j in range(8): a(f"v_mul_f32 v{d+8+j}, v{d+8+j}, v{VG+ti}")
        for j in range(8): a(f"v_add_f32 v{t+j}, 1.0, v{t+j}")
        for j in range(8): a(f"v_rcp_f32 v{t+j}, v{t+j}")
        for j in range(8): a(f"v_mul_f32 v{d+j}, v{d+j}, v{d+8+j}")
        for j in range(8): a(f"v_mul_f32 v{d+j}, v{d+j}, v{t+j}")
        for j in range(4): a(f"v_cvt_pk_bf16_f32 v{t+8+j}, v{d+2*j}, v{d+2*j+1}")
        a(f"buffer_store_dwordx4 v[{t+8}:{t+11}], v{VL}, s[44:47], s{56+ti} offen offset:{1024*fi}")
stamp(4)
a("s_waitcnt vmcnt(0)")
stamp(5)
dump_stamps(6, 0)
a("s_endpgm")

a("K1_Mqkv:")
a("v_lshrrev_b32 v12, 1, v9\nv_xor_b32 v12, s55, v12\nv_lshlrev_b32 v12, 6, v12\nv_lshl_add_u32 v12, v11, 7, v12\nv_lshl_add_u32 v12, v8, 5, v12\nv_lshl_add_u32 v12, v10, 3, v12")
a(f"v_add_u32 v{VW}, {XIMG}, v12")
a(f"s_mov_b32 s86, {SLOT}")
kloop("qkv")
a(f"s_mov_b32 s96, {LOG2E}\ns_mov_b32 s97, {EPS}")
CK = FR; CZ = FR + 16; ONE = FR + 32; TT = 204
for j in range(4): a(f"v_mov_b32 v{ONE+j}, 0x3f803f80")
a("s_waitcnt lgkmcnt(0)\ns_nop 7")
for j in range(32): a(f"v_mov_b32 v{CK+j}, 0")
def phi(d):
    for h in range(2):
        b = d + 8 * h
        for j in range(8): a(f"v_mul_f32 v{TT+j}, s96, v{b+j}")
        for j in range(8): a(f"v_exp_f32 v{TT+j}, v{TT+j} clamp")
        for j in range(8): a(f"v_max_f32 v{b+j}, s97, v{b+j}")
        for j in range(8): a(f"v_add_f32 v{b+j}, v{b+j}, v{TT+j}")
    for j in range(8): a(f"v_cvt_pk_bf16_f32 v{d+j}, v{d+2*j}, v{d+2*j+1}")
a("s_cmp_eq_u32 s26, 10\ns_cselect_b32 s56, 1, 0\ns_cmp_eq_u32 s54, 0\ns_cselect_b32 s56, s56, 0\ns_cmp_eq_u32 s56, 1\ns_cbranch_scc1 K1_kv2")
for ti in range(3):
    if ti == 2: a("K1_kv2:")
    dk = acc(ti, 1); dv = acc(ti, 2)
    phi(dk)
    for j in range(8): a(f"v_cvt_pk_bf16_f32 v{dv+j}, v{dv+2*j}, v{dv+2*j+1}")
    a("s_nop 1")
    for h in range(2):
        a(f"v_mfma_f32_32x32x16_bf16 v[{CK}:{CK+15}], v[{dk+4*h}:{dk+4*h+3}], v[{dv+4*h}:{dv+4*h+3}], v[{CK}:{CK+15}]")
        a(f"v_mfma_f32_32x32x16_bf16 v[{CZ}:{CZ+15}], v[{dk+4*h}:{dk+4*h+3}], v[{ONE}:{ONE+3}], v[{CZ}:{CZ+15}]")
a("s_lshr_b32 s56, s29, 5\ns_mul_i32 s57, s54, 3\ns_add_u32 s56, s56, s57\ns_mul_i32 s56, s56, 118")
a("s_lshl_b32 s57, s27, 2\ns_add_u32 s56, s56, s57\ns_lshl_b32 s57, s55, 1\ns_add_u32 s56, s56, s57\ns_add_u32 s56, s56, 86\ns_lshl_b32 s56, s56, 10")
a(f"s_add_u32 s57, s56, {118*1024}\ns_add_u32 s58, s56, {2*118*1024}")
for ti in range(3):
    d = acc(ti, 0)
    phi(d)
    for h in range(2): a(f"buffer_store_dwordx4 v[{d+4*h}:{d+4*h+3}], v{VL}, s[44:47], s{56+ti} offen offset:{1024*h}")
a("v_cmp_eq_u32 vcc, 0, v202\ns_nop 1")
for j in range(8): a(f"v_cndmask_b32 v{CK+j}, v{CZ+j}, v{CK+j}, vcc")
for j in range(8, 16): a(f"v_cndmask_b32 v{CK+j}, v{CK+j}, v{CZ+j}, vcc")
a(f"s_lshl_b32 s56, s27, 1\ns_add_u32 s56, s56, s55\ns_mul_i32 s56, s56, 11\ns_add_u32 s56, s56, s26\ns_lshl_b32 s56, s56, 1\ns_add_u32 s56, s56, s54\ns_lshl_b32 s56, s56, 12\ns_add_u32 s56, s56, {P_OFF}")
for q in range(4): a(f"buffer_store_dwordx4 v[{CK+4*q}:{CK+4*q+3}], v{VL}, s[44:47], s56 offen offset:{1024*q}")
stamp(4)
a("s_waitcnt vmcnt(0)")
stamp(5)
dump_stamps(6, 0)
a("K1_end:\ns_endpgm")

kstart(a, "k2_kernel")
a("s_cmp_ge_u32 s2, 256\ns_cbranch_scc1 K2_end")
load_args()
a("v_lshrrev_b32 v1, 6, v0\nv_and_b32 v0, 63, v0\nv_readfirstlane_b32 s28, v1")
a("s_lshl_b32 s30, s2, 2\ns_add_u32 s30, s30, s28\ns_lshr_b32 s31, s30, 4\ns_and_b32 s30, s30, 15")
a("v_lshlrev_b32 v2, 4, v0\nv_and_b32 v3, 31, v0\nv_lshlrev_b32 v3, 2, v3")
a("s_waitcnt lgkmcnt(0)")
srd(a, 44, 24, 64 << 20)
a(f"s_mul_i32 s56, s30, {22*4096}\ns_add_u32 s56, s56, {P_OFF}")
a(f"s_mul_i32 s57, s31, 118\ns_lshl_b32 s58, s30, 1\ns_add_u32 s57, s57, s58\ns_add_u32 s57, s57, 86\ns_lshl_b32 s57, s57, 10")
a(f"s_lshl_b32 s58, s31, 7\ns_add_u32 s58, s58, {G_OFF}")
a("buffer_load_dwordx4 v[8:11], v2, s[44:47], s57 offen\nbuffer_load_dwordx4 v[12:15], v2, s[44:47], s57 offen offset:1024\nbuffer_load_dword v4, v3, s[44:47], s58 offen")
for j in range(16): a(f"v_mov_b32 v{16+j}, 0")
for half in range(2):
    for p in range(11):
        for q in range(4): a(f"buffer_load_dwordx4 v[{64+16*p+4*q}:{67+16*p+4*q}], v2, s[44:47], s56 offen offset:{1024*q}")
        a("s_add_u32 s56, s56, 4096")
    a("s_waitcnt vmcnt(0)")
    for p in range(11):
        for j in range(16): a(f"v_add_f32 v{16+j}, v{16+j}, v{64+16*p+j}")
for j in range(8): a(f"v_cvt_pk_bf16_f32 v{16+j}, v{16+2*j}, v{17+2*j}")
a("s_nop 1")
a("v_mfma_f32_32x32x16_bf16 v[32:47], v[16:19], v[8:11], 0\nv_mfma_f32_32x32x16_bf16 v[48:63], v[20:23], v[12:15], 0")
a(f"s_mov_b32 s97, {EPS}\ns_nop 15")
a("v_add_f32 v5, s97, v40\nv_add_f32 v6, s97, v48\nv_rcp_f32 v5, v5\nv_rcp_f32 v6, v6\ns_nop 0\nv_mul_f32 v5, v5, v4\nv_mul_f32 v6, v6, v4")
for j in range(8): a(f"v_mul_f32 v{32+j}, v{32+j}, v5\nv_mul_f32 v{56+j}, v{56+j}, v6")
for j in range(4): a(f"v_cvt_pk_bf16_f32 v{8+j}, v{32+2*j}, v{33+2*j}\nv_cvt_pk_bf16_f32 v{12+j}, v{56+2*j}, v{57+2*j}")
a("buffer_store_dwordx4 v[8:11], v2, s[44:47], s57 offen\nbuffer_store_dwordx4 v[12:15], v2, s[44:47], s57 offen offset:1024")
a("K2_end:\ns_endpgm")

NA = 38; NOV = 59 - NA
kstart(a, "k3_kernel")
a("s_cmp_ge_u32 s2, 256\ns_cbranch_scc1 K3_end")
stamp(0)
load_args()
a("v_lshrrev_b32 v1, 6, v0\nv_and_b32 v0, 63, v0\nv_readfirstlane_b32 s28, v1")
a("s_and_b32 s30, s2, 7\ns_lshr_b32 s31, s2, 3\ns_lshl_b32 s30, s30, 2\ns_lshr_b32 s52, s31, 3\ns_add_u32 s26, s30, s52\ns_and_b32 s27, s31, 7")
a("s_cmp_ge_u32 s28, 4\ns_cbranch_scc0 K3_M")
a("s_sub_u32 s54, s28, 4\ns_lshr_b32 s55, s54, 1\ns_and_b32 s54, s54, 1")
a("v_lshrrev_b32 v2, 3, v0\nv_and_b32 v3, 7, v0\nv_bfe_u32 v4, v0, 4, 1\nv_lshlrev_b32 v4, 2, v4\nv_xor_b32 v4, v4, v3\nv_lshlrev_b32 v4, 4, v4\nv_lshl_add_u32 v4, v2, 10, v4")
a("v_lshlrev_b32 v5, 4, v0")
a(f"s_lshl_b32 s56, s27, 7\ns_lshl_b32 s57, s54, 13\ns_add_u32 s56, s56, s57\ns_mul_i32 s57, s55, {43*16*1024}\ns_add_u32 s58, s56, s57\ns_lshl_b32 s57, s55, 18\ns_add_u32 s59, s56, s57")
a(f"s_mul_i32 s60, s55, {NA*2048}\ns_lshl_b32 s57, s54, 10\ns_add_u32 s60, s60, s57")
a("v_add_u32 v6, s60, v5")
a("s_waitcnt lgkmcnt(0)")
srd(a, 36, 16, 1376*1024); srd(a, 40, 8, 512*1024); srd(a, 44, 24, 64 << 20)
for j in range(NA):
    a(f"s_add_u32 m0, s60, {j*2048}\ns_add_u32 s61, s58, {j*16384}")
    a("buffer_load_dwordx4 v4, s[36:39], s61 offen lds")
for j in range(NA, 59):
    r = 16 + 4 * (j - NA)
    if j < 43: a(f"s_add_u32 s61, s58, {j*16384}\nbuffer_load_dwordx4 v[{r}:{r+3}], v4, s[36:39], s61 offen")
    else: a(f"s_add_u32 s61, s59, {(j-43)*16384}\nbuffer_load_dwordx4 v[{r}:{r+3}], v4, s[40:43], s61 offen")
a(f"s_waitcnt vmcnt({NOV})")
stamp(1)
a("s_barrier")
a("s_waitcnt vmcnt(0)")
B1 = 11
a("s_barrier")
for j in range(B1): a(f"ds_write_b128 v6, v[{16+4*j}:{19+4*j}] offset:{j*2048}")
a("s_waitcnt lgkmcnt(0)\ns_barrier")
for j in range(B1, NOV): a(f"ds_write_b128 v6, v[{16+4*j}:{19+4*j}] offset:{j*2048}")
a("s_waitcnt lgkmcnt(0)\ns_barrier")
a("s_barrier")
a("s_barrier")
a("s_branch K3_fin")

a("K3_M:")
a("s_lshr_b32 s55, s28, 1\ns_and_b32 s54, s28, 1")
a("v_lshrrev_b32 v3, 5, v0\nv_bfe_u32 v8, v0, 4, 1\nv_bfe_u32 v9, v0, 2, 2\nv_and_b32 v10, 3, v0")
a("v_lshl_add_u32 v11, v3, 2, v9\nv_lshrrev_b32 v12, 1, v9\nv_lshlrev_b32 v12, 6, v12\nv_lshl_add_u32 v12, v11, 7, v12\nv_lshl_add_u32 v12, v8, 5, v12\nv_lshl_add_u32 v12, v10, 3, v12")
a(f"s_mul_i32 s60, s55, {NA*2048}\nv_add_u32 v4, s60, v12\nv_xor_b32 v12, 64, v12\nv_add_u32 v5, s60, v12")
a(f"v_add_u32 v6, {20*2048}, v4\nv_add_u32 v7, {20*2048}, v5")
a("v_lshlrev_b32 v2, 4, v0")
a("s_lshl_b32 s56, s26, 1\ns_add_u32 s56, s56, s54\ns_mul_i32 s56, s56, 118\ns_mul_i32 s57, s55, 43\ns_add_u32 s58, s56, s57\ns_lshl_b32 s58, s58, 10")
a("s_lshl_b32 s57, s55, 4\ns_add_u32 s59, s56, s57\ns_add_u32 s59, s59, 86\ns_lshl_b32 s59, s59, 10")
for j in range(32): a(f"v_mov_b32 v{16+j}, 0")
a("s_waitcnt lgkmcnt(0)")
srd(a, 44, 24, 64 << 20)
HD = 12; HB = 80; WF = 48
def hload(j):
    r = HB + 4 * (j % HD)
    if j < 43: base, jj = "s58", j
    else: base, jj = "s59", j - 43
    if jj % 4 == 0 or j == 43: a(f"s_add_u32 s61, {base}, {(jj//4)*4096}")
    a(f"buffer_load_dwordx4 v[{r}:{r+3}], v2, s[44:47], s61 offen offset:{(jj%4)*1024}")
def wreads(j):
    sl = j if j < NA else j - NA
    r = []
    for c in range(2):
        va = (4 + c) if sl < 20 else (6 + c)
        off = (sl if sl < 20 else sl - 20) * 2048
        for rd in range(2):
            d = WF + 8 * (j % 3) + 4 * c + 2 * rd
            r.append(f"ds_read_b64_tr_b16 v[{d}:{d+1}], v{va} offset:{off + rd*1024}")
    return r
for j in range(HD - 1): hload(j)
stamp(1)
a("s_barrier")
stamp(2)
for x in wreads(0) + wreads(1): a(x)
for j in range(59):
    nxt = j + HD - 1
    if nxt < 59: hload(nxt)
    bar = (j + 2) in (B1, NOV + 1, NA)
    pend = min(HD - 1, 58 - j)
    if j + 2 < 59 and not bar:
        for x in wreads(j + 2): a(x)
        a(f"s_waitcnt vmcnt({pend}) lgkmcnt(8)")
    elif bar:
        a(f"s_waitcnt vmcnt({pend}) lgkmcnt(0)")
    else:
        a(f"s_waitcnt vmcnt({pend}) lgkmcnt({4 if j == 57 else 0})")
    h = HB + 4 * (j % HD); w = WF + 8 * (j % 3)
    a(f"v_mfma_f32_32x32x16_bf16 v[16:31], v[{w}:{w+3}], v[{h}:{h+3}], v[16:31]")
    if bar:
        a("s_barrier")
        for x in wreads(j + 2): a(x)
    a(f"v_mfma_f32_32x32x16_bf16 v[32:47], v[{w+4}:{w+7}], v[{h}:{h+3}], v[32:47]")
stamp(3)
a("s_barrier")
PIT = 272
a(f"v_and_b32 v8, 31, v0\ns_lshl_b32 s56, s54, 5\nv_add_u32 v8, s56, v8\nv_mul_u32_u24 v8, {PIT}, v8\nv_lshl_add_u32 v8, v3, 4, v8\ns_mul_i32 s56, s55, {64*PIT}\nv_add_u32 v8, s56, v8")
a("s_nop 7")
for c in range(2):
    for q in range(4): a(f"ds_write_b128 v8, v[{16+16*c+4*q}:{19+16*c+4*q}] offset:{c*128 + q*32}")
a("s_waitcnt lgkmcnt(0)\ns_barrier")
a("K3_fin:")
srd(a, 48, 20, 2048*1024)
a(f"v_lshrrev_b32 v8, 3, v0\ns_lshl_b32 s56, s28, 3\nv_add_u32 v8, s56, v8\nv_and_b32 v9, 7, v0\nv_mul_u32_u24 v10, {PIT}, v8\nv_lshl_add_u32 v10, v9, 5, v10")
a(f"ds_read_b128 v[16:19], v10\nds_read_b128 v[20:23], v10 offset:16\nds_read_b128 v[24:27], v10 offset:{64*PIT}\nds_read_b128 v[28:31], v10 offset:{64*PIT+16}")
a("v_lshlrev_b32 v8, 10, v8\nv_lshl_add_u32 v8, v9, 4, v8\ns_lshl_b32 s56, s26, 16\ns_lshl_b32 s57, s27, 7\ns_add_u32 s56, s56, s57")
a("s_waitcnt lgkmcnt(0)")
for j in range(8): a(f"v_add_f32 v{16+j}, v{16+j}, v{24+j}")
for j in range(4): a(f"v_cvt_pk_bf16_f32 v{16+j}, v{16+2*j}, v{17+2*j}")
a("buffer_store_dwordx4 v[16:19], v8, s[48:51], s56 offen")
stamp(4)
dump_stamps(5, 2)
a("K3_end:\ns_endpgm")

if "empty" in EXTRA:
    kstart(a, "empty_kernel"); a("s_endpgm")
if "probe" in EXTRA:
    kstart(a, "probe_kernel")
    a("s_cmp_ge_u32 s2, 256\ns_cbranch_scc1 KP_end")
    load_args()
    a("v_lshlrev_b32 v2, 2, v0\ns_lshl_b32 s30, s2, 13\ns_waitcnt lgkmcnt(0)")
    srd(a, 32, 10, 2048*1024)
    for i in range(8): a(f"s_add_u32 s31, s30, {i*1024}\nbuffer_load_dword v4, v2, s[32:35], s31 offen\ns_waitcnt vmcnt(0)")
    a("KP_end:\ns_endpgm")

rodata(a)
kdesc(a, "k1_kernel", 256, 256); a(".p2align 6"); kdesc(a, "k2_kernel", 256, 256); a(".p2align 6"); kdesc(a, "k3_kernel", 256, 256)
if "empty" in EXTRA: a(".p2align 6"); kdesc(a, "empty_kernel", 8, 8)
if "probe" in EXTRA: a(".p2align 6"); kdesc(a, "probe_kernel", 8, 8)
open(OUT, "w").write(a.text())
```

```python
import sys
from asmlib import *
def opt(name, default=None):
    for x in sys.argv[1:]:
        if x == "--" + name: return True
        if x.startswith("--" + name + "="): return x.split("=", 1)[1]
    return default
STAMP = opt("stamp", False)
OUT = [x for x in sys.argv[1:] if not x.startswith("--")][0]
FS = int(opt("fs", 64))
HD = int(opt("hd", 9))
TH = int(opt("th", 6))
VT = int(opt("vt", 0))
XPOS = int(opt("xpos", 12))
MS = [int(x) for x in str(opt("ms", "")).replace("-", "")]
LP = str(opt("lp", "-wwww--"))
NS = int(opt("ns", 8))
SPIN = 1 << 16

SLOT = 49216; XIMG = 24576; W3OFF = 12320
NA = 37; NOV = 59 - NA; B1 = 11
MISC = 2 * NA * 2048
G_LDS = MISC; XF_LDS = G_LDS + 768; EXCH = MISC + 1024; KVA = EXCH + 8192; KVS = 576
assert 3 * SLOT <= MISC and KVA + 4 * KVS <= 163840
P_OFF = 8 << 20; FL_OFF = 9 << 20; S_OFF = 10 << 20; X_OFF = 11 << 20; ST_OFF = 12 << 20
FROW = 32 * FS; FH = FL_OFF; FO = FH + 22 * FROW; FK = FO + 22 * FROW; NFLAG = 22 * 32 * 2 + 32 * 16
PSZ = 1152
LOG2E = 0x3fb8aa3b; NLOG2E = 0xbfb8aa3b; EPS = 0x358637bd
WSB = 16 << 20
K = NAME + "_kernel"

a = Asm()
header(a, ["; fused linear-attention + SwiGLU gated mix; generated by my own script",
           "; @launch grid=(256,1,1) block=(512,1,1) lds=163840"])
def stamp(i):
    if STAMP: a(f"s_memtime s[{80+2*i}:{81+2*i}]")
def dump_stamps():
    if not STAMP: return
    a("s_waitcnt lgkmcnt(0)")
    a("s_memrealtime s[30:31]\ns_waitcnt lgkmcnt(0)")
    for i in range(16):
        if i < 11: a(f"v_mov_b32 v{i+32}, s{80+2*i}")
        elif i == 15: a("v_mov_b32 v47, s30")
        elif i == 14: a("v_mov_b32 v46, s27")
        elif i == 13: a("v_mov_b32 v45, s0")
        elif i == 12: a("s_getreg_b32 s31, hwreg(HW_REG_XCC_ID)\nv_mov_b32 v44, s31")
        elif i == 11: a("s_getreg_b32 s31, hwreg(HW_REG_HW_ID)\nv_mov_b32 v43, s31")
        else: a(f"v_mov_b32 v{i+32}, 0")
    a(f"s_lshl_b32 s30, s2, 3\ns_add_u32 s30, s30, s28\ns_lshl_b32 s30, s30, 6\ns_add_u32 s30, s30, {ST_OFF}")
    a("v_mov_b32 v1, 0")
    for q in range(4): a(f"buffer_store_dwordx4 v[{32+4*q}:{35+4*q}], v1, s[44:47], s30 offen offset:{16*q}")
uid = 0
def poll(vt, voff, soff, cnt="s67", backoff=0):
    global uid; uid += 1
    a(f"s_mov_b32 {cnt}, 0\nPL{uid}:")
    a(f"buffer_load_dwordx2 v[{vt}:{vt+1}], {voff}, s[44:47], {soff} offen sc1\ns_waitcnt vmcnt(0)")
    a(f"v_cmp_eq_u64 vcc, s[22:23], v[{vt}:{vt+1}]\ns_add_u32 {cnt}, {cnt}, 1\ns_nop 0\ns_cmp_eq_u64 vcc, -1\ns_cbranch_scc1 PD{uid}")
    if backoff: a(f"s_sleep {backoff}")
    a(f"s_cmp_lt_u32 {cnt}, {SPIN}\ns_cbranch_scc1 PL{uid}\nPD{uid}:")
def setflag(vt, vlane16, soff):
    a(f"v_mov_b32 v{vt}, s22\nv_mov_b32 v{vt+1}, s23\ns_mov_b64 exec, 1")
    a(f"buffer_store_dwordx2 v[{vt}:{vt+1}], {vlane16}, s[44:47], {soff} offen sc1\ns_mov_b64 exec, -1")
def tag_load(): a(f"s_mov_b32 s67, {X_OFF}\ns_load_dwordx2 s[22:23], s[24:25], s67")
def tag_make(): a("s_add_u32 s22, s22, 0x7f4a7c15\ns_addc_u32 s23, s23, 0x9e3779b9")
def mapping():
    a("""s_and_b32 s30, s2, 1
s_lshr_b32 s31, s2, 3
s_bfe_u32 s52, s2, 0x20001
s_lshl_b32 s30, s30, 5
s_add_u32 s30, s30, s31
s_mul_i32 s53, s52, 6
s_cmp_eq_u32 s52, 3
s_cselect_b32 s54, 52, 43
s_cselect_b32 s55, 5, 6
s_cselect_b32 s56, 55, 54
s_mul_i32 s26, s30, s54
s_lshr_b32 s26, s26, 8
s_mul_i32 s31, s26, s55
s_sub_u32 s31, s30, s31
s_add_u32 s27, s53, s31
s_sub_u32 s57, s30, s56
s_cmp_ge_u32 s57, 5
s_cselect_b32 s58, 10, 9
s_cselect_b32 s31, 5, 0
s_sub_u32 s31, s57, s31
s_add_u32 s59, s53, s31
s_and_b32 s60, s57, 1
s_add_u32 s60, s60, 9
s_lshr_b32 s61, s57, 1
s_mul_i32 s61, s61, 6
s_add_u32 s61, s61, 5
s_cmp_eq_u32 s52, 3
s_cselect_b32 s58, s60, s58
s_cselect_b32 s59, s61, s59
s_cmp_lt_u32 s30, s56
s_cselect_b32 s26, s26, s58
s_cselect_b32 s27, s27, s59
s_mul_i32 s29, s26, 192
s_min_u32 s29, s29, 1856""")
def pf_mat(w):
    a(f"s_cmp_eq_u32 {w}, 0\ns_cselect_b32 s48, s6, s12\ns_cselect_b32 s49, s7, s13\ns_cselect_b32 s11, 48, 43")
    a(f"s_cmp_eq_u32 {w}, 2\ns_cselect_b32 s48, s14, s48\ns_cselect_b32 s49, s15, s49")
    a("s_lshl_b32 s50, s11, 15\ns_lshl_b32 s3, s11, 12\ns_lshl_b32 s11, s11, 4")
    a("s_and_b32 s49, s49, 0xffff\ns_mov_b32 s51, 0x00020000\ns_mul_i32 s11, s11, s2")
def pf_round(n, srdn=48, off="s11"):
    for i in range(n): a(f"s_buffer_load_dword s10, s[{srdn}:{srdn+3}], {off} offset:{64*i}")
class W2Plan:
    def __init__(self): self.w2 = 0; self.wo = 0
    def round(self, kind):
        global uid
        if kind == "-": return
        uid += 1
        if kind == "w":
            a(f"s_cmp_eq_u32 s52, 3\ns_cbranch_scc1 PA{uid}")
            if self.w2 < 86:
                a(f"s_mul_i32 s67, s52, {64*NS}\ns_add_u32 s67, s67, s76\ns_add_u32 s67, s67, {64*self.w2}"); pf_round(NS, 68, "s67"); self.w2 += 3 * NS
            a(f"s_branch PB{uid}\nPA{uid}:")
            if self.wo < 32:
                a(f"s_add_u32 s67, s77, {64*self.wo}"); pf_round(NS, 72, "s67"); self.wo += NS
            a(f"PB{uid}:")
        else:
            a(f"s_cmp_eq_u32 s52, 3\ns_cbranch_scc1 PA{uid}")
            a(f"s_mul_i32 s67, s3, {int(kind)}\ns_add_u32 s67, s67, s11"); pf_round(12, 48, "s67")
            a(f"s_branch PB{uid}\nPA{uid}:")
            if self.wo < 32:
                a(f"s_add_u32 s67, s77, {64*self.wo}"); pf_round(11, 72, "s67"); self.wo += 11
            elif self.w2 < 86:
                a(f"s_add_u32 s67, s76, {64*self.w2}"); pf_round(12, 68, "s67"); self.w2 += 12
            a(f"PB{uid}:")
def gate_loads():
    srd(a, 76, 18, 1024)
    a("s_lshl_b32 s66, s2, 13\ns_lshl_b32 s31, s52, 11\ns_add_u32 s66, s66, s31")
    a("buffer_load_dwordx4 v[40:43], v31, s[76:79], 0 offen\nbuffer_load_dwordx4 v[44:47], v31, s[32:35], s66 offen\nbuffer_load_dwordx4 v[48:51], v31, s[32:35], s66 offen offset:1024")
def gate_dots():
    a("v_mov_b32 v8, 0\nv_mov_b32 v9, 0")
    for d in range(4): a(f"v_dot2c_f32_bf16 v8, v{44+d}, v{40+d}\nv_dot2c_f32_bf16 v9, v{48+d}, v{40+d}")
    a(f"s_lshr_b32 s66, s66, 7\ns_add_u32 s66, s66, {S_OFF - 63*16}\ns_nop 0")
    for ctl in ["quad_perm:[1,0,3,2] row_mask:0xf", "quad_perm:[2,3,0,1] row_mask:0xf", "row_half_mirror row_mask:0xf", "row_mirror row_mask:0xf", "row_bcast:15 row_mask:0xa", "row_bcast:31 row_mask:0xc"]:
        a(f"v_add_f32_dpp v8, v8, v8 {ctl} bank_mask:0xf\nv_add_f32_dpp v9, v9, v9 {ctl} bank_mask:0xf\ns_nop 0")
    a("v_mov_b32 v10, s22\nv_mov_b32 v11, s23")
def gate_store():
    a("s_brev_b64 exec, 1\nbuffer_store_dwordx4 v[8:11], v31, s[44:47], s66 offen sc1\ns_mov_b64 exec, -1")
def vtouch():
    if not VT: return
    global uid; uid += 1
    a(f"s_cmp_eq_u32 s52, 3\ns_cbranch_scc1 VT{uid}")
    a("v_mul_u32_u24 v8, 43, v0\nv_lshrrev_b32 v8, 8, v8\nv_mul_u32_u24 v9, 6, v8\nv_sub_u32 v9, v0, v9\nv_mul_lo_u32 v8, v8, s3\nv_lshl_add_u32 v8, v9, 7, v8")
    m = (1 << (6 * VT)) - 1
    a(f"s_mov_b32 exec_lo, {m & 0xffffffff}\ns_mov_b32 exec_hi, {m >> 32}\nbuffer_load_dword v52, v8, s[48:51], s11 offen\ns_mov_b64 exec, -1\nVT{uid}:")
def l_srds():
    srd(a, 44, 24, WSB); srd(a, 68, 16, 1376*1024); srd(a, 72, 8, 512*1024)

a(".p2align 12")
kstart(a, K)
a("s_cmp_ge_u32 s2, 256\ns_cbranch_scc1 L_exit")
stamp(0)
a("v_lshrrev_b32 v1, 6, v0\ns_load_dwordx16 s[4:19], s[0:1], 0\nv_readfirstlane_b32 s28, v1\ns_load_dwordx4 s[20:23], s[0:1], 64\ns_load_dwordx2 s[24:25], s[0:1], 80")
if STAMP: a("s_memrealtime s[0:1]")
a("v_and_b32 v0, 63, v0\ns_cmp_ge_u32 s28, 4\ns_cbranch_scc0 M_start")
a("s_setprio 3")
mapping()
a("s_sub_u32 s52, s28, 4")
a("v_lshrrev_b32 v2, 3, v0\nv_and_b32 v3, 7, v0\nv_lshrrev_b32 v4, 4, v0\nv_lshlrev_b32 v31, 4, v0")
a("s_cmp_ge_u32 s27, 23\ns_cbranch_scc1 L_idle")
a("v_xor_b32 v5, v3, v4\nv_lshlrev_b32 v5, 4, v5\nv_lshl_add_u32 v16, v2, 10, v5\nv_xor_b32 v7, 64, v16")
for i in range(1, 6): a(f"v_add_u32 v{16+i}, {i*8192}, v{16 if i%2==0 else 7}")
a("s_mul_i32 s53, s52, 6144")
a("s_mul_i32 s54, s52, 48\ns_add_u32 s54, s54, s29\ns_lshl_b32 s54, s54, 10")
a("s_mov_b32 s34, 0x200000\ns_mov_b32 s35, 0x00020000\ns_mov_b32 s39, 0x00020000\ns_mov_b32 s43, 0x00020000")
a("s_cmp_lt_u32 s27, 8\ns_cbranch_scc1 L_qkv")
for i in range(3):
    a(f"v_add_u32 v8, {64*i}, v0\nv_mul_u32_u24 v9, 43691, v8\nv_lshrrev_b32 v9, 19, v9")
    a(f"v_mul_u32_u24 v9, {2752-192}, v9\nv_lshl_add_u32 v{22+i}, v8, 4, v9\nv_mov_b32 v{25+i}, v{22+i}")
a("s_sub_u32 s55, s27, 8\ns_mul_i32 s55, s55, 192\ns_min_u32 s55, s55, 2560")
a(f"s_mul_i32 s67, s52, {16*2752}\ns_add_u32 s55, s55, s67\ns_mov_b32 s56, {64*2752}")
a(f"s_mul_i32 s67, s52, 3072\ns_add_u32 s57, s67, {XIMG}")
for i in range(1, 6): a(f"s_add_u32 s{57+i}, s57, {(i%3)*1024 + (W3OFF if i>=3 else 0)}")
a(f"s_mov_b32 s38, {512*2752}\ns_mov_b32 s30, {LOG2E}")
a("s_waitcnt lgkmcnt(0)")
a("s_mov_b32 s36, s12\ns_and_b32 s37, s13, 0xffff\ns_mov_b32 s40, s14\ns_and_b32 s41, s15, 0xffff")
a("s_branch L_go")
a("L_qkv:")
a("v_and_b32 v8, 1, v4\nv_lshlrev_b32 v8, 2, v8\nv_xor_b32 v8, v8, v3\nv_mul_u32_u24 v9, 3072, v2\nv_lshl_add_u32 v22, v8, 4, v9")
for i in range(1, 6): a(f"v_add_u32 v{22+i}, {(i//2)*1024 + (i%2)*8*3072}, v22")
a(f"s_lshl_b32 s55, s27, 7\ns_mul_i32 s67, s52, {16*3072}\ns_add_u32 s55, s55, s67\ns_mov_b32 s56, {64*3072}")
a(f"s_lshl_b32 s67, s52, 11\ns_add_u32 s57, s67, {XIMG}")
for i in range(1, 6): a(f"s_add_u32 s{57+i}, s57, {(i//2)*8192 + (i%2)*1024}")
a(f"s_mov_b32 s38, {512*3072}\ns_mov_b32 s30, {NLOG2E}")
a("s_waitcnt lgkmcnt(0)")
a("s_mov_b32 s36, s6\ns_and_b32 s37, s7, 0xffff\ns_mov_b32 s40, s6\ns_and_b32 s41, s7, 0xffff")
a("L_go:")
a("s_mov_b32 s42, s38\ns_mov_b32 s32, s4\ns_and_b32 s33, s5, 0xffff")
stamp(1)
def dma(q, c):
    sl = (c % 3) * SLOT
    if q < 6: a(f"s_add_u32 m0, s53, {sl + q*1024}\ns_nop 0\nbuffer_load_dwordx4 v{16+q}, s[32:35], s54 offen lds")
    else:
        i = q - 6
        a(f"s_add_u32 m0, s{57+i}, {sl}\ns_nop 0\nbuffer_load_dwordx4 v{22+i}, s[{36 if i<3 else 40}:{39 if i<3 else 43}], s55 offen lds")
def adv(): a("s_add_u32 s54, s54, 128\ns_add_u32 s55, s55, s56")
if VT: pf_mat("s52"); vtouch()
for q in range(13):
    if q == XPOS: gate_loads()
    if q == 2: tag_load()
    if q < 12: dma(q, 0)
if not VT: pf_mat("s52")
l_srds()
adv()
for q in range(8): dma(q, 1)
a("s_waitcnt lgkmcnt(0)"); tag_make()
if XPOS < 6:
    a(f"s_waitcnt vmcnt({8 + 12 - XPOS})"); gate_dots()
a("s_mul_i32 s76, s2, 5504\ns_lshl_b32 s77, s2, 11\ns_setprio " + str(opt("lprio", 0)))
plan = W2Plan()
plan.round(LP[0])
for c in range(6):
    a("s_waitcnt vmcnt(8)\ns_barrier")
    for q in range(8, 12): dma(q, c + 1)
    if c == 0:
        if XPOS >= 6: gate_dots()
        gate_store()
    plan.round(LP[c + 1])
    adv()
    for q in range(8): dma(q, c + 2)
print("w2 lines", plan.w2, "wo lines", plan.wo, file=sys.stderr)
def l2_setup():
    a("s_bfe_u32 s31, s2, 0x30003")
    a("s_lshr_b32 s56, s52, 1\ns_and_b32 s54, s52, 1")
    a("v_and_b32 v8, 1, v4\nv_lshlrev_b32 v8, 2, v8\nv_xor_b32 v8, v8, v3\nv_lshlrev_b32 v8, 4, v8\nv_lshl_add_u32 v96, v2, 10, v8")
    a(f"s_lshl_b32 s31, s31, 7\ns_lshl_b32 s67, s54, 13\ns_add_u32 s31, s31, s67\ns_mul_i32 s67, s56, {43*16*1024}\ns_add_u32 s57, s31, s67\ns_lshl_b32 s67, s56, 18\ns_add_u32 s58, s31, s67")
    a(f"s_mul_i32 s63, s56, {NA*2048}\ns_lshl_b32 s67, s54, 10\ns_add_u32 s63, s63, s67")
    a("v_add_u32 v97, s63, v31")
OV = 100
def ovload(n, th=False):
    j = NA + n; r = OV + 4 * n
    if th: a(f"s_waitcnt vmcnt({TH})")
    if j < 43: a(f"s_add_u32 s67, s57, {j*16384}\nbuffer_load_dwordx4 v[{r}:{r+3}], v96, s[68:71], s67 offen")
    else: a(f"s_add_u32 s67, s58, {(j-43)*16384}\nbuffer_load_dwordx4 v[{r}:{r+3}], v96, s[72:75], s67 offen")
l2_setup()
a(f"s_mul_i32 s65, s52, 48\ns_add_u32 s65, s65, s29\ns_lshl_b32 s65, s65, 3\ns_add_u32 s65, s65, {S_OFF}")
a(f"v_min_u32 v13, 23, v0\nv_lshlrev_b32 v12, 3, v13\nv_lshlrev_b32 v13, 4, v13\ns_mul_i32 s67, s52, 192\ns_add_u32 s67, s67, {G_LDS}\nv_add_u32 v12, s67, v12")
a("s_waitcnt vmcnt(8)\ns_barrier")
for q in range(8, 12): dma(q, 7)
a("buffer_load_dwordx4 v[8:11], v13, s[44:47], s65 offen sc1")
N7 = int(opt("n7", 7)); N8 = int(opt("n8", 8))
for n in range(N7): ovload(n)
a(f"s_waitcnt vmcnt({N7})")
stamp(2)
a("s_barrier")
a("s_mov_b32 s66, 0\nL_gw:\nv_cmp_eq_u64 vcc, s[22:23], v[10:11]\ns_add_u32 s66, s66, 1\ns_nop 0\ns_cmp_eq_u64 vcc, -1\ns_cbranch_scc1 L_gd")
a(f"buffer_load_dwordx4 v[8:11], v13, s[44:47], s65 offen sc1\ns_cmp_lt_u32 s66, {SPIN}\ns_waitcnt vmcnt(0)\ns_cbranch_scc1 L_gw\nL_gd:")
a("v_mul_f32 v8, s30, v8\nv_mul_f32 v9, s30, v9\nv_exp_f32 v8, v8\nv_exp_f32 v9, v9\ns_mov_b32 s67, 0x7f000000\nv_add_f32 v8, 1.0, v8\nv_add_f32 v9, 1.0, v9\nv_min_f32 v8, s67, v8\nv_min_f32 v9, s67, v9")
a("ds_write_b64 v12, v[8:9]")
for n in range(N7, N7 + N8): ovload(n)
a("s_waitcnt lgkmcnt(0)\ns_barrier")
stamp(3)
a("L_s2:")
for n in range(N7 + N8, NOV): ovload(n, True)
for j in range(NA):
    a(f"s_add_u32 m0, s63, {j*2048}\ns_add_u32 s67, s57, {j*16384}\ns_waitcnt vmcnt({TH})")
    a("buffer_load_dwordx4 v96, s[68:71], s67 offen lds")
def flagrow(dst, th, t1, t2):
    a(f"s_and_b32 {t1}, s2, 7\ns_lshl_b32 {t1}, {t1}, 3\ns_lshr_b32 {t2}, s2, 6\ns_lshl_b32 {t2}, {t2}, 1\ns_add_u32 {t1}, {t1}, {t2}\ns_add_u32 {t1}, {t1}, {th}")
    a(f"s_add_u32 {t2}, {t1}, 2\ns_cmp_ge_u32 {t1}, 60\ns_cselect_b32 {t2}, {t2}, {t1}\ns_mul_i32 {t2}, {t2}, 86\ns_lshr_b32 {t2}, {t2}, 8\ns_mul_i32 {dst}, {t2}, {FROW}")
flagrow("s60", "s54", "s61", "s62")
a(f"s_add_u32 s60, s60, {FO}\nv_min_u32 v98, 15, v0\nv_mul_u32_u24 v98, {FS}, v98")
a("s_waitcnt vmcnt(0)")
stamp(4)
a("s_barrier")
a("s_barrier")
stamp(5)
for j in range(B1): a(f"ds_write_b128 v97, v[{OV+4*j}:{OV+3+4*j}] offset:{j*2048}")
a("s_waitcnt lgkmcnt(0)\ns_barrier")
stamp(6)
for j in range(B1, NOV): a(f"ds_write_b128 v97, v[{OV+4*j}:{OV+3+4*j}] offset:{j*2048}")
a("s_cmp_lt_u32 s52, 2\ns_cbranch_scc0 L_nopoll")
poll(8, "v98", "s60")
a("L_nopoll:")
stamp(7)
a("s_waitcnt lgkmcnt(0)\ns_barrier")
a(f"s_lshl_b32 s67, s2, 2\ns_add_u32 s67, s67, s52\ns_cmp_eq_u32 s67, 0\ns_cbranch_scc0 L_nox\ns_mov_b32 s67, {X_OFF}")
setflag(8, "v31", "s67")
a("L_nox:")
a("s_barrier\ns_barrier")
a("s_branch L_fin")
a("L_exit:\ns_endpgm")
a("L_idle:")
a("s_setprio 0\ns_waitcnt lgkmcnt(0)")
srd(a, 32, 4, 2048*1024)
pf_mat("s52"); vtouch(); gate_loads(); tag_load(); l_srds()
a("s_waitcnt vmcnt(0) lgkmcnt(0)")
tag_make(); gate_dots(); a("s_barrier"); gate_store()
a("s_mul_i32 s76, s2, 5504\ns_lshl_b32 s77, s2, 11")
plan = W2Plan()
for k_ in LP: plan.round(k_)
l2_setup()
for n in range(N7 + N8): ovload(n, True)
a("s_branch L_s2")

FR = 144; VX = 192; VW = 196; VGA = 197; VM16 = 198; TT = 200; VL = 228; VG = 229; PQ = 232
def acc(ti, fi): return 16 * (3 * fi + ti)
def fx(st, ti): return FR + 24 * st + 4 * ti
def fw(st, fi): return FR + 24 * st + 12 + 4 * fi
if opt("malign"): a(".p2align 12")
a("M_start:")
a(f"v_lshlrev_b32 v{VL}, 4, v0")
a("s_cmp_eq_u32 s28, 3\ns_cbranch_scc0 M_pfd")
a(f"s_getpc_b64 s[48:49]\nM_pc:\ns_sub_u32 s48, s48, M_pc-{K}\ns_subb_u32 s49, s49, 0\ns_and_b32 s49, s49, 0xffff\ns_mov_b32 s50, L_codeend-{K}\ns_mov_b32 s51, 0x00020000")
a("s_lshr_b32 s30, s2, 3\ns_mul_i32 s30, s30, 768\ns_waitcnt lgkmcnt(0)")
tag_load()
if not opt("nocpf"): pf_round(12, 48, "s30")
a("s_branch M_pfe\nM_pfd:\ns_waitcnt lgkmcnt(0)")
tag_load()
if MS: pf_mat("s28")
for c in MS[:1]:
    a(f"s_mul_i32 s67, s3, {c}\ns_add_u32 s67, s67, s11"); pf_round(12, 48, "s67")
a("M_pfe:")
srd(a, 44, 24, WSB)
mapping()
a("s_lshr_b32 s52, s28, 1\ns_and_b32 s53, s28, 1")
a("v_and_b32 v2, 31, v0\nv_lshrrev_b32 v3, 5, v0\nv_bfe_u32 v4, v0, 1, 3")
a("s_mul_i32 s54, s52, 96\nv_add_u32 v5, s54, v2\nv_lshlrev_b32 v6, 7, v5")
for s in range(4): a(f"v_add_u32 v7, {2*s}, v3\nv_xor_b32 v7, v7, v4\nv_lshl_add_u32 v{VX+s}, v7, 4, v6")
a(f"v_lshlrev_b32 v{VGA}, 2, v5\nv_add_u32 v{VGA}, {G_LDS}, v{VGA}")
a("v_bfe_u32 v8, v0, 4, 1\nv_bfe_u32 v9, v0, 2, 2\nv_and_b32 v10, 3, v0\nv_lshl_add_u32 v11, v3, 3, v9")
a(f"v_and_b32 v{VM16}, 16, v0")
a(f"s_mov_b32 s63, 0\ns_mov_b32 s66, 0\ns_mov_b32 s65, {SLOT}")
a(f"v_mul_u32_u24 v12, {W3OFF}, v8\nv_mul_u32_u24 v13, 192, v11\nv_add_u32 v12, v12, v13\ns_mul_i32 s54, s53, 96\nv_add_u32 v12, s54, v12")
a("v_lshrrev_b32 v13, 1, v9\nv_xor_b32 v13, s53, v13\nv_lshlrev_b32 v13, 6, v13\nv_lshl_add_u32 v13, v11, 7, v13\nv_lshl_add_u32 v13, v8, 5, v13")
a("s_cmp_lt_u32 s27, 8\ns_cselect_b64 vcc, -1, 0")
a(f"v_cndmask_b32 v12, v12, v13, vcc\nv_lshl_add_u32 v12, v10, 3, v12\nv_add_u32 v{VW}, {XIMG}, v12")
a(f"s_lshl_b32 s54, s28, 2\ns_add_u32 s54, s54, {XF_LDS}\nv_mov_b32 v218, s54\nv_mov_b32 v156, 0\nv_mov_b32 v157, 0\nds_write_b32 v218, v156")
for r in range(144): a(f"v_mov_b32 v{r}, 0")
if len(MS) > 1:
    a("s_cmp_eq_u32 s28, 3\ns_cbranch_scc1 M_pff")
    for c in MS[1:]:
        a(f"s_mul_i32 s67, s3, {c}\ns_add_u32 s67, s67, s11"); pf_round(12, 48, "s67")
    a("M_pff:")
a("s_waitcnt lgkmcnt(0)")
tag_make()
a("s_cmp_ge_u32 s27, 23\ns_cbranch_scc1 M_idle")
stamp(1)
a("s_cmp_lt_u32 s27, 8\ns_cbranch_scc1 M_qkv")

def kloop(kind):
    def wimm(s, fi, rd):
        return s * 3072 + rd * 768 + 32 * fi if kind == "ffn" else fi * 8192 + s * 2048 + rd * 512
    def reads(st, s):
        r = [f"ds_read_b128 v[{fx(st,i)}:{fx(st,i)+3}], v{VX+s} offset:{4096*i}" for i in range(3)]
        w = [[f"ds_read_b64_tr_b16 v[{fw(st,i)+2*rd}:{fw(st,i)+2*rd+1}], v{VW} offset:{wimm(s,i,rd)}" for rd in range(2)] for i in range(3)]
        return [r[0], w[0][0], w[0][1], r[1], r[2], w[1][0], w[1][1], w[2][0], w[2][1]]
    def mf(st, ti, fi):
        d = acc(ti, fi); A, B = fw(st, fi), fx(st, ti)
        if kind == "qkv" and fi > 0: A, B = B, A
        return f"v_mfma_f32_32x32x16_bf16 v[{d}:{d+15}], v[{A}:{A+3}], v[{B}:{B+3}], v[{d}:{d+15}]"
    a("s_setprio " + str(opt("mprio", 2)))
    a("s_barrier")
    stamp(2)
    for x in reads(0, 0): a(x)
    a(f"M_loop_{kind}:")
    for s in range(4):
        st = s & 1
        rd = reads(st ^ 1, (s + 1) & 3)
        a("s_waitcnt lgkmcnt(0)")
        n = 0
        for fi in range(3):
            for ti in range(3):
                a(mf(st, ti, fi))
                if n == 5 and s == 2:
                    a(f"s_cmp_eq_u32 s63, {2*SLOT}\ns_cselect_b32 s64, {(-2*SLOT) & 0xffffffff}, s65\ns_add_u32 s63, s63, s64")
                if n == 6 and s == 2:
                    a(f"v_add_u32 v{VX}, s64, v{VX}\nv_add_u32 v{VW}, s64, v{VW}\nv_add_u32 v{VX+1}, s64, v{VX+1}")
                if n == 7 and s == 2:
                    a(f"v_add_u32 v{VX+2}, s64, v{VX+2}\nv_add_u32 v{VX+3}, s64, v{VX+3}\ns_add_u32 s66, s66, 1")
                if n == 0 and s == 3:
                    a("s_barrier")
                if n < 5:
                    for x in rd[2*n:2*n+2]: a(x)
                if n == 7 and s == 3: a("s_cmp_lt_u32 s66, 8")
                n += 1
    a(f"s_cbranch_scc1 M_loop_{kind}")
    stamp(3)
    for i in range(3): a(f"ds_read_b32 v{VG+i}, v{VGA} offset:{128*i}")
    a("s_lshr_b32 s56, s29, 5\ns_mul_i32 s57, s52, 3\ns_add_u32 s56, s56, s57\ns_mul_i32 s56, s56, 118")
    a(f"s_lshl_b32 s59, s26, 1\ns_add_u32 s59, s59, s52\ns_mul_i32 s59, s59, {FROW}")

HB = 72; WF = 48
assert HB + 4 * HD <= 120
def s2_setup():
    a("s_lshr_b32 s55, s28, 1\ns_and_b32 s54, s28, 1")
    a(f"v_lshrrev_b32 v0, 4, v{VL}")
    flagrow("s60", "s54", "s56", "s62")
    a(f"s_add_u32 s60, s60, {FH}\nv_min_u32 v13, 29, v0\nv_mul_u32_u24 v13, {FS}, v13")
    a("v_lshrrev_b32 v3, 5, v0\nv_bfe_u32 v8, v0, 4, 1\nv_bfe_u32 v9, v0, 2, 2\nv_and_b32 v10, 3, v0")
    a("v_lshl_add_u32 v11, v3, 2, v9\nv_lshrrev_b32 v12, 1, v9\nv_lshlrev_b32 v12, 6, v12\nv_lshl_add_u32 v12, v11, 7, v12\nv_lshl_add_u32 v12, v8, 5, v12\nv_lshl_add_u32 v12, v10, 3, v12")
    a(f"s_mul_i32 s57, s55, {NA*2048}\nv_add_u32 v4, s57, v12\nv_xor_b32 v12, 64, v12\nv_add_u32 v5, s57, v12")
    a(f"v_add_u32 v6, {20*2048}, v4\nv_add_u32 v7, {20*2048}, v5")
    a("s_mul_i32 s56, s56, 118\ns_mul_i32 s57, s55, 43\ns_add_u32 s58, s56, s57\ns_lshl_b32 s58, s58, 10")
    a("s_lshl_b32 s57, s55, 4\ns_add_u32 s59, s56, s57\ns_add_u32 s59, s59, 86\ns_lshl_b32 s59, s59, 10")
def pr(r): return f"v[{r}:{r+1}]"

kloop("ffn")
a("s_sub_u32 s60, s27, 8\ns_mul_i32 s57, s60, 6\ns_min_u32 s57, s57, 80\ns_add_u32 s56, s56, s57\ns_mul_i32 s57, s53, 3\ns_add_u32 s56, s56, s57\ns_lshl_b32 s56, s56, 10")
a(f"s_add_u32 s57, s56, {118*1024}\ns_add_u32 s58, s56, {2*118*1024}")
a(f"s_lshl_b32 s60, s60, 1\ns_add_u32 s60, s60, s53\ns_mul_i32 s60, s60, {FS}\ns_add_u32 s71, s59, s60\ns_add_u32 s71, s71, {FH}")
a(f"s_mov_b32 s30, {NLOG2E}\ns_mov_b32 s31, {NLOG2E}")
a("s_waitcnt lgkmcnt(0)")
for ti in range(3): a(f"v_mov_b32 v{TT+2*ti}, v{VG+ti}\nv_mov_b32 v{TT+2*ti+1}, v{VG+ti}")
for fi in range(3):
    for ti in range(3):
        d = acc(ti, fi); t = FR + 16 * ((3 * fi + ti) & 1); g = pr(TT + 2 * ti)
        for j in range(0, 8, 2): a(f"v_pk_mul_f32 {pr(t+j)}, {pr(d+j)}, s[30:31]")
        for j in range(0, 8, 2): a(f"v_exp_f32 v{t+j}, v{t+j}\nv_exp_f32 v{t+j+1}, v{t+j+1}\nv_pk_mul_f32 {pr(d+j)}, {pr(d+j)}, {pr(d+8+j)}")
        for j in range(0, 8, 2): a(f"v_pk_fma_f32 {pr(t+j)}, {pr(t+j)}, {g}, {g}")
        for j in range(8): a(f"v_rcp_f32 v{t+j}, v{t+j}")
        for j in range(0, 8, 2): a(f"v_pk_mul_f32 {pr(d+j)}, {pr(d+j)}, {pr(t+j)}")
        for j in range(4): a(f"v_cvt_pk_bf16_f32 v{t+8+j}, v{d+2*j}, v{d+2*j+1}")
        a(f"buffer_store_dwordx4 v[{t+8}:{t+11}], v{VL}, s[44:47], s{56+ti} offen offset:{1024*fi} sc1")
stamp(4)
s2_setup()
a("s_waitcnt vmcnt(0)")
setflag(14, f"v{VL}", "s71")
stamp(5)
a("s_branch M_s2")

a("M_idle:\ns_barrier")
s2_setup()
poll(14, "v13", "s60", backoff=8)
a("s_branch M_s2")

a("M_qkv:")
kloop("qkv")
a(f"s_mov_b32 s30, {LOG2E}\ns_mov_b32 s31, {LOG2E}\ns_mov_b32 s3, {EPS}")
CK = FR; CZ = FR + 16; ONE = FR + 32
for j in range(4): a(f"v_mov_b32 v{ONE+j}, 0x3f803f80")
a("s_waitcnt lgkmcnt(0)")
def phi(d, dst):
    for h in range(2):
        b = d + 8 * h
        for j in range(0, 8, 2): a(f"v_pk_mul_f32 {pr(TT+j)}, {pr(b+j)}, s[30:31]")
        for j in range(8): a(f"v_exp_f32 v{TT+j}, v{TT+j} clamp\nv_max_f32 v{b+j}, s3, v{b+j}")
        for j in range(0, 8, 2): a(f"v_pk_add_f32 {pr(b+j)}, {pr(b+j)}, {pr(TT+j)}")
        for j in range(4): a(f"v_cvt_pk_bf16_f32 v{dst+4*h+j}, v{b+2*j}, v{b+2*j+1}")
a("s_cmp_eq_u32 s26, 10\ns_cselect_b32 s60, s52, 1")
for n, ti in enumerate((2, 1, 0)):
    dk = acc(ti, 1); dv = acc(ti, 2)
    phi(dk, dk)
    for j in range(8): a(f"v_cvt_pk_bf16_f32 v{dv+j}, v{dv+2*j}, v{dv+2*j+1}")
    a("s_nop 1")
    for h in range(2):
        c0, c1 = (f"v[{CK}:{CK+15}]", f"v[{CZ}:{CZ+15}]") if n or h else ("0", "0")
        a(f"v_mfma_f32_32x32x16_bf16 v[{CK}:{CK+15}], v[{dk+4*h}:{dk+4*h+3}], v[{dv+4*h}:{dv+4*h+3}], {c0}")
        a(f"v_mfma_f32_32x32x16_bf16 v[{CZ}:{CZ+15}], v[{dk+4*h}:{dk+4*h+3}], v[{ONE}:{ONE+3}], {c1}")
    if n == 0: a("s_cmp_eq_u32 s60, 0\ns_cbranch_scc1 M_kvd")
a("M_kvd:")
a("s_lshl_b32 s57, s27, 2\ns_lshl_b32 s58, s53, 1\ns_add_u32 s60, s57, s58")
a("s_add_u32 s56, s56, s60\ns_add_u32 s56, s56, 86\ns_lshl_b32 s68, s56, 10")
a(f"s_add_u32 s69, s68, {118*1024}\ns_add_u32 s70, s68, {2*118*1024}")
a(f"s_lshr_b32 s57, s60, 1\ns_mul_i32 s57, s57, {FS}\ns_add_u32 s71, s59, s57\ns_add_u32 s71, s71, {FO}")
a("s_add_u32 s60, s60, s52")
a(f"s_mul_i32 s72, s60, {11*PSZ}\ns_add_u32 s72, s72, {P_OFF}\ns_mul_i32 s61, s26, {PSZ}\ns_add_u32 s61, s61, s72")
a(f"s_mul_i32 s73, s60, {16*FS}\ns_add_u32 s73, s73, {FK}\ns_mul_i32 s62, s26, {FS}\ns_add_u32 s62, s62, s73")
a(f"v_lshrrev_b32 v222, 4, v{VL}\nv_bfe_u32 v223, v222, 4, 1\nv_cmp_eq_u32 vcc, s52, v223\nv_lshrrev_b32 v223, 5, v222\nv_and_b32 v224, 15, v222")
a("v_lshlrev_b32 v224, 4, v224\nv_lshl_add_u32 v224, v223, 8, v224\nv_lshlrev_b32 v223, 4, v223\nv_add_u32 v225, 1024, v223")
a("v_cndmask_b32 v216, v225, v224, vcc\nv_add_u32 v225, 32, v225\nv_add_u32 v226, 512, v224\nv_cndmask_b32 v217, v225, v226, vcc")
a(f"v_xor_b32 v219, 8, v218\ns_lshl_b32 s54, s28, 11\ns_add_u32 s54, s54, {EXCH}\nv_add_u32 v220, s54, v{VL}\ns_xor_b32 s54, s28, 2\ns_lshl_b32 s54, s54, 11\ns_add_u32 s54, s54, {EXCH}\nv_add_u32 v221, s54, v{VL}")
KEEP = 80; SEND = 88; RCV = 64
a(f"v_cmp_eq_u32 vcc, 0, v{VM16}\ns_cmp_eq_u32 s52, 0\ns_cbranch_scc0 M_sel1")
for j in range(8): a(f"v_cndmask_b32 v{SEND+j}, v{CK+8+j}, v{CZ+8+j}, vcc")
for j in range(8): a(f"v_cndmask_b32 v{KEEP+j}, v{CZ+j}, v{CK+j}, vcc")
a("s_branch M_sel2\nM_sel1:")
for j in range(8): a(f"v_cndmask_b32 v{SEND+j}, v{CZ+j}, v{CK+j}, vcc")
for j in range(8): a(f"v_cndmask_b32 v{KEEP+j}, v{CK+8+j}, v{CZ+8+j}, vcc")
a("M_sel2:")
a(f"ds_write_b128 v220, v[{SEND}:{SEND+3}]\nds_write_b128 v220, v[{SEND+4}:{SEND+7}] offset:1024\nv_mov_b32 v72, 1\ns_mov_b32 s67, 0\ns_waitcnt lgkmcnt(0)\nds_write_b32 v218, v72")
a("M_xw:")
a(f"ds_read_b32 v73, v219\nds_read_b128 v[{RCV}:{RCV+3}], v221\nds_read_b128 v[{RCV+4}:{RCV+7}], v221 offset:1024\ns_add_u32 s67, s67, 1\ns_waitcnt lgkmcnt(0)")
a(f"v_cmp_ne_u32 vcc, 0, v73\ns_cmp_lt_u32 s67, {SPIN}\ns_cbranch_scc0 M_xd\ns_cbranch_vccz M_xw\nM_xd:")
for j in range(8): a(f"v_add_f32 v{KEEP+j}, v{KEEP+j}, v{RCV+j}")
for q in range(2): a(f"buffer_store_dwordx4 v[{KEEP+4*q}:{KEEP+4*q+3}], v{216+q}, s[44:47], s61 offen sc1")
stamp(4)
QW = int(opt("qw", 2))
for ti in range(4):
    if ti == QW:
        a("s_waitcnt vmcnt(0)"); setflag(72, f"v{VL}", "s62")
    if ti < 3: phi(acc(ti, 0), PQ + 8 * ti)
a(f"v_min_u32 v74, 10, v222\nv_mul_u32_u24 v74, {FS}, v74")
poll(72, "v74", "s73")
stamp(5)
GK = 120; GZ = 164
a("s_mov_b32 s61, s72")
for p in range(11):
    a(f"buffer_load_dwordx4 v[{GK+4*p}:{GK+4*p+3}], v{VL}, s[44:47], s61 offen sc1")
    if p < 10: a(f"s_add_u32 s61, s61, {PSZ}")
a("s_mov_b64 exec, 15")
for p in range(11):
    a(f"buffer_load_dwordx4 v[{GZ+4*p}:{GZ+4*p+3}], v{VL}, s[44:47], s72 offen offset:1024 sc1")
    if p < 10: a(f"s_add_u32 s72, s72, {PSZ}")
a("s_mov_b64 exec, -1")
s2_setup()
a(f"s_lshl_b32 s57, s53, 1\ns_add_u32 s61, s57, s52\ns_mul_i32 s61, s61, {KVS}\ns_add_u32 s61, s61, {KVA}\ns_mul_i32 s57, s57, {KVS}\ns_add_u32 s57, s57, {KVA}")
a("v_and_b32 v8, 31, v0\nv_lshlrev_b32 v8, 4, v8\nv_lshl_add_u32 v8, v3, 3, v8\nv_add_u32 v216, s61, v8")
a("v_and_b32 v8, 1, v0\nv_lshlrev_b32 v8, 4, v8\nv_bfe_u32 v9, v0, 1, 1\nv_lshl_add_u32 v8, v9, 3, v8\nv_add_u32 v217, s61, v8")
a(f"v_and_b32 v8, 16, v0\nv_cmp_eq_u32 vcc, 0, v8\nv_add_u32 v224, s57, v224\nv_add_u32 v223, s57, v223\nv_add_u32 v223, 512, v223")
a(f"v_cndmask_b32 v220, v223, v224, vcc\nv_cndmask_b32 v221, v224, v223, vcc")
for p in range(1, 11):
    a(f"s_waitcnt vmcnt({21-p})")
    for j in range(0, 4, 2): a(f"v_pk_add_f32 {pr(GK+j)}, {pr(GK+j)}, {pr(GK+4*p+j)}")
a(f"v_cvt_pk_bf16_f32 v{GK}, v{GK}, v{GK+1}\nv_cvt_pk_bf16_f32 v{GK+1}, v{GK+2}, v{GK+3}\nds_write_b64 v216, {pr(GK)}")
a("s_waitcnt vmcnt(0)")
for p in range(1, 11):
    for j in range(0, 4, 2): a(f"v_pk_add_f32 {pr(GZ+j)}, {pr(GZ+j)}, {pr(GZ+4*p+j)}")
a(f"v_cvt_pk_bf16_f32 v{GZ}, v{GZ}, v{GZ+1}\nv_cvt_pk_bf16_f32 v{GZ+1}, v{GZ+2}, v{GZ+3}\ns_mov_b64 exec, 15\nds_write_b64 v217, {pr(GZ)} offset:512\ns_mov_b64 exec, -1")
a("v_mov_b32 v1, 2\ns_waitcnt lgkmcnt(0)\nds_write_b32 v218, v1")

a("M_s2:")
poll(14, "v13", "s60")
stamp(6)
def hload(j):
    r = HB + 4 * (j % HD)
    base, jj = ("s58", j) if j < 43 else ("s59", j - 43)
    if jj % 4 == 0: a(f"s_add_u32 s61, {base}, {(jj//4)*4096}")
    a(f"buffer_load_dwordx4 v[{r}:{r+3}], v{VL}, s[44:47], s61 offen offset:{(jj%4)*1024} sc1")
def wreads(j):
    sl = j if j < NA else j - NA
    r = []
    for c in range(2):
        va = (4 + c) if sl < 20 else (6 + c)
        off = (sl if sl < 20 else sl - 20) * 2048
        for rd in range(2):
            d = WF + 8 * (j % 3) + 4 * c + 2 * rd
            r.append(f"ds_read_b64_tr_b16 v[{d}:{d+1}], v{va} offset:{off + rd*1024}")
    return r
for j in range(HD - 1): hload(j)
a("s_cmp_lt_u32 s27, 8\ns_cbranch_scc0 M_noo")
a("s_mov_b32 s67, 0\nM_ow:")
a(f"ds_read_b32 v1, v219\nds_read_b128 v[120:123], v220\nds_read_b128 v[124:127], v221 offset:{KVS}\ns_add_u32 s67, s67, 1\ns_waitcnt lgkmcnt(0)")
a(f"v_cmp_eq_u32 vcc, 2, v1\ns_cmp_lt_u32 s67, {SPIN}\ns_cbranch_scc0 M_od\ns_cbranch_vccz M_ow\nM_od:")
OD = 128
for ti in range(3):
    for h in range(2):
        d = OD + 32 * ti + 16 * h
        a(f"v_mfma_f32_32x32x16_bf16 v[{d}:{d+15}], v[{120+4*h}:{123+4*h}], v[{PQ+8*ti+4*h}:{PQ+8*ti+4*h+3}], 0")
a("s_nop 7")
for ti in range(3):
    d = OD + 32 * ti
    a(f"v_add_f32 v8, s3, v{d+8}\nv_add_f32 v10, s3, v{d+16}\nv_mul_f32 v8, v8, v{VG+ti}\nv_mul_f32 v10, v10, v{VG+ti}\nv_rcp_f32 v8, v8\nv_rcp_f32 v10, v10\ns_nop 0\nv_mov_b32 v9, v8\nv_mov_b32 v11, v10")
    for j in range(0, 8, 2): a(f"v_pk_mul_f32 {pr(d+j)}, {pr(d+j)}, v[8:9]\nv_pk_mul_f32 {pr(d+24+j)}, {pr(d+24+j)}, v[10:11]")
    for j in range(4): a(f"v_cvt_pk_bf16_f32 v{d+8+j}, v{d+2*j}, v{d+2*j+1}\nv_cvt_pk_bf16_f32 v{d+12+j}, v{d+24+2*j}, v{d+25+2*j}")
    for h in range(2): a(f"buffer_store_dwordx4 v[{d+8+4*h}:{d+11+4*h}], v{VL}, s[44:47], s{68+ti} offen offset:{1024*h} sc1")
a("M_noo:")
a("s_barrier")
stamp(7)
for x in wreads(0) + wreads(1): a(x)
J1 = B1 - 2; J2 = NOV - 2; J3 = min(NA - 2, 43 - HD)
assert J2 < J3
issued = HD - 1
for j in range(59):
    bar = j in (J1, J2, J3)
    if issued < 59: hload(issued); issued += 1
    pend = issued - 1 - j
    if bar: a(f"s_waitcnt vmcnt({pend}) lgkmcnt(0)")
    elif j + 2 < 59:
        for x in wreads(j + 2): a(x)
        a(f"s_waitcnt vmcnt({pend}) lgkmcnt(8)")
    else: a(f"s_waitcnt vmcnt({pend}) lgkmcnt({4 if j == 57 else 0})")
    h = HB + 4 * (j % HD); w = WF + 8 * (j % 3)
    c0, c1 = ("v[16:31]", "v[32:47]") if j else ("0", "0")
    a(f"v_mfma_f32_32x32x16_bf16 v[16:31], v[{w}:{w+3}], v[{h}:{h+3}], {c0}")
    if bar:
        a("s_barrier")
        if j == J3: stamp(8)
        for x in wreads(j + 2): a(x)
    a(f"v_mfma_f32_32x32x16_bf16 v[32:47], v[{w+4}:{w+7}], v[{h}:{h+3}], {c1}")
    if j == HD - 2:
        a("s_cmp_lt_u32 s27, 8\ns_cbranch_scc0 M_noflag"); setflag(8, f"v{VL}", "s71"); a("M_noflag:")
stamp(9)
a("s_barrier")
PIT = 272
a(f"v_and_b32 v8, 31, v0\ns_lshl_b32 s56, s54, 5\nv_add_u32 v8, s56, v8\nv_mul_u32_u24 v8, {PIT}, v8\nv_lshl_add_u32 v8, v3, 4, v8\ns_mul_i32 s56, s55, {64*PIT}\nv_add_u32 v8, s56, v8")
a("s_nop 4")
for c in range(2):
    for q in range(4): a(f"ds_write_b128 v8, v[{16+16*c+4*q}:{19+16*c+4*q}] offset:{c*128 + q*32}")
a("s_waitcnt lgkmcnt(0)\ns_barrier")
a("L_fin:")
srd(a, 48, 20, 2048*1024)
a(f"v_lshrrev_b32 v8, 3, v0\ns_lshl_b32 s56, s28, 3\nv_add_u32 v8, s56, v8\nv_and_b32 v9, 7, v0\nv_mul_u32_u24 v10, {PIT}, v8\nv_lshl_add_u32 v10, v9, 5, v10")
a(f"ds_read_b128 v[16:19], v10\nds_read_b128 v[20:23], v10 offset:16\nds_read_b128 v[24:27], v10 offset:{64*PIT}\nds_read_b128 v[28:31], v10 offset:{64*PIT+16}")
a("v_lshlrev_b32 v8, 10, v8\nv_lshl_add_u32 v8, v9, 4, v8")
a("s_and_b32 s56, s2, 7\ns_lshl_b32 s56, s56, 2\ns_lshr_b32 s57, s2, 6\ns_add_u32 s56, s56, s57\ns_lshl_b32 s56, s56, 16\ns_bfe_u32 s57, s2, 0x30003\ns_lshl_b32 s57, s57, 7\ns_add_u32 s56, s56, s57")
a("s_waitcnt lgkmcnt(0)")
for j in range(8): a(f"v_add_f32 v{16+j}, v{16+j}, v{24+j}")
for j in range(4): a(f"v_cvt_pk_bf16_f32 v{16+j}, v{16+2*j}, v{17+2*j}")
a("buffer_store_dwordx4 v[16:19], v8, s[48:51], s56 offen " + str(opt("outflag", "")).replace("_", " "))
stamp(10)
dump_stamps()
a("s_endpgm\nL_codeend:")
rodata(a)
kdesc(a, K, 256, 256)
open(OUT, "w").write(a.text())
```

```python
import re
def regs(tok):
    tok = tok.strip()
    m = re.fullmatch(r"-?v\[(\d+):(\d+)\]", tok)
    if m: return list(range(int(m.group(1)), int(m.group(2)) + 1))
    m = re.fullmatch(r"-?v(\d+)", tok)
    if m: return [int(m.group(1))]
    return []
TR = ("v_exp_f32", "v_rcp_f32", "v_log_f32", "v_rsq_f32")
class Op:
    def __init__(self, text, idx, after=None):
        self.text = text; self.idx = idx; self.after = after
        name, rest = text.split(None, 1)
        toks = [t.split()[0] for t in rest.split(",")]
        self.name = name
        if name.startswith(("buffer_store", "ds_write")):
            self.w = []; self.r = sum((regs(t) for t in toks), []); self.kind = "s"
        else:
            self.w = regs(toks[0]); self.r = sum((regs(t) for t in toks[1:]), [])
            if name.startswith(("v_fmac", "v_permlane")): self.r += self.w
            if name.startswith("v_permlane"): self.w = self.w + regs(toks[1])
            self.kind = "m" if name.startswith("v_mfma") else "t" if name.startswith(TR) else "p"
        self.srcc = regs(toks[3]) if self.kind == "m" else []
        self.cost = {"m": 8, "t": 8, "p": 4, "s": 4}[self.kind]
def need(p, c, passes=8):
    raw = set(p.w) & set(c.r); waw = set(p.w) & set(c.w); war = set(p.r) & set(c.w)
    if not (raw or waw or war):
        return 0 if (p.kind == "s" and c.kind == "s") else None
    n = 0
    if p.kind == "m" and (raw or waw):
        if c.kind == "m" and c.srcc == p.w and not (set(p.w) & (set(c.r) - set(c.srcc))): n = 0
        else: n = 12
    elif raw:
        if c.kind == "m" or c.name.startswith("v_permlane") or "dpp" in c.name: n = 2
        elif p.kind == "t": n = 1
    if war and p.kind == "s": n = max(n, 2)
    if war and p.kind == "m" and set(p.srcc) & set(c.w) and c.kind != "m": n = max(n, 7)
    return n
PKGAP = 0
def schedule(texts, emit, window=80, soft=1):
    ops = [Op(t, i) if isinstance(t, str) else Op(t[0], i, t[1]) for i, t in enumerate(texts)]
    deps = []
    for i, c in enumerate(ops):
        d = []
        for p in ops[:i]:
            n = need(p, c)
            if n is not None: d.append((p.idx, n, bool(set(p.w) & set(c.r))))
        deps.append(d)
    at = {}; slot = 0; clk = 0; mfree = 0; lastkind = "p"; todo = list(range(len(ops)))
    while todo:
        def ready(i, extra):
            for p, n, raw in deps[i]:
                if p not in at or slot - at[p] - 1 < max(n, extra if raw and ops[p].kind != "m" else 0): return False
            return True
        pick = None
        for extra in (soft, 0):
            cand = [i for i in todo[:window] if ready(i, extra) and (ops[i].kind != "m" or clk >= mfree)]
            if clk < mfree + PKGAP:
                c2 = [i for i in cand if not ops[i].name.startswith("v_pk_")]
                if c2: cand = c2
            if cand:
                ms = [i for i in cand if ops[i].kind in "ms"]
                want = [i for i in cand if (ops[i].kind == "t") != (lastkind == "t")]
                pick = ms[0] if ms else want[0] if want else cand[0]
                break
        if pick is None:
            cand = [i for i in todo[:window] if ready(i, 0)]
            if cand: pick = cand[0]
        if pick is None:
            emit("s_nop 0"); slot += 1; clk += 4; continue
        o = ops[pick]
        if o.kind == "m": clk = max(clk, mfree); mfree = clk + 32
        emit(o.text); at[pick] = slot; slot += 1; clk += o.cost; lastkind = o.kind; todo.remove(pick)
        if o.after: o.after()
    return clk
```

```python
import sys
from asmlib import *
from sched import schedule
def opt(name, default=None):
    for x in sys.argv[1:]:
        if x == "--" + name: return True
        if x.startswith("--" + name + "="): return x.split("=", 1)[1]
    return default
STAMP = opt("stamp", False)
OUT = [x for x in sys.argv[1:] if not x.startswith("--")][0]
FS = 64
HD = int(opt("hd", 9))
TH = int(opt("th", 7))
V0 = int(opt("v0", 4)); VPOS = int(opt("vpos", 20))
WNT = int(opt("wnt", 0)); XNT = int(opt("xnt", 0))
VW2 = str(opt("vw2", "-"))
C3 = str(opt("c3", "4"))
N8 = int(opt("n8", 37))
VT = int(opt("vt", 0))
VWO = int(opt("vwo", 0))
XPOS = int(opt("xpos", 0))
LP = str(opt("lp", "-o-ww--"))
NS = int(opt("ns", 11))
KO = [int(x, 16) for x in str(opt("ko", "000000"))]
T1 = int(opt("t1", 7))
QW = int(opt("qw", 2))
BO = int(opt("bo", 0)); LV1 = not opt("lv3"); HST = str(opt("hst", "sc1")).replace("none", "").replace("_", " ")
SPIN = 1 << 16

SLOT = 49216; XIMG = 24576; W3OFF = 12320
NA = 37; NOV = 59 - NA
assert sum(KO) <= NOV
MISC = 2 * NA * 2048
G_LDS = MISC; XF_LDS = G_LDS + 768; EXCH = MISC + 1024; KVA = EXCH + 8192; KVS = 576
assert 3 * SLOT <= MISC and KVA + 4 * KVS <= 163840
HP = int(opt("hp", 129))
P_OFF = 9 << 20; FL_OFF = 10 << 20; S_OFF = (10 << 20) + (512 << 10); X_OFF = 11 << 20; ST_OFF = 12 << 20
FROW = 32 * FS; FH = FL_OFF; FO = FH + 22 * FROW; FK = FO + 22 * FROW
PSZ = 1152
LOG2E = 0x3fb8aa3b; NLOG2E = 0xbfb8aa3b; EPS = 0x358637bd
WSB = 16 << 20
K = NAME + "_kernel"
ORDER = [3 * p + fi for fi in range(3) for p in range(29) if 3 * p + fi < 86]
def ks0(j): return ORDER[2 * j]
for j in range(43): assert ORDER[2 * j + 1] - ORDER[2 * j] == (-83 if j == 14 else 3)
def pos(j):
    if j >= NA: j -= NA
    return 25 + j if j < 12 else j - 12

a = Asm(); MSIDE = False
header(a, ["; fused linear-attention + SwiGLU gated mix; generated by my own script",
           "; @launch grid=(256,1,1) block=(512,1,1) lds=163840"])
class VM:
    def __init__(self): self.n = 0
    def op(self, s): a(s); self.n += 1; return self.n
    def cnt(self, i): assert self.n - i < 64; return self.n - i
    def wait(self, i, extra=""): a(f"s_waitcnt vmcnt({self.cnt(i)}){extra}")
def stamp(i, det=False):
    if opt("s2") and MSIDE and (i in (1, 2, 3, 4, 5, 6)) != det: return
    if det and not opt("s2"): return
    if STAMP: a(("s_memrealtime" if opt("rt") else "s_memtime") + f" s[{80+2*i}:{81+2*i}]")
def dump_stamps():
    if not STAMP: return
    a("s_waitcnt lgkmcnt(0)")
    a("s_memrealtime s[30:31]\ns_waitcnt lgkmcnt(0)")
    for i in range(16):
        if i < 11: a(f"v_mov_b32 v{i+32}, s{80+2*i}")
        elif i == 15: a("v_mov_b32 v47, s30")
        elif i == 14: a("v_mov_b32 v46, s27")
        elif i == 13: a("v_mov_b32 v45, s0")
        else: a(f"v_mov_b32 v{i+32}, 0")
    a(f"s_lshl_b32 s30, s2, 3\ns_add_u32 s30, s30, s28\ns_lshl_b32 s30, s30, 6\ns_add_u32 s30, s30, {ST_OFF}")
    a("v_mov_b32 v1, 0")
    for q in range(4): a(f"buffer_store_dwordx4 v[{32+4*q}:{35+4*q}], v1, s[44:47], s30 offen offset:{16*q}")
uid = 0
def poll(vt, voff, soff, imm=0, cnt="s67"):
    global uid; uid += 1
    a(f"s_mov_b32 {cnt}, 0\nPL{uid}:")
    a(f"buffer_load_dwordx2 v[{vt}:{vt+1}], {voff}, s[44:47], {soff} offen offset:{imm} sc1\ns_waitcnt vmcnt(0)")
    a(f"v_cmp_eq_u64 vcc, s[22:23], v[{vt}:{vt+1}]\ns_add_u32 {cnt}, {cnt}, 1\ns_nop 0\ns_cmp_eq_u64 vcc, -1\ns_cbranch_scc1 PD{uid}")
    if BO: a(f"s_sleep {BO}")
    a(f"s_cmp_lt_u32 {cnt}, {SPIN}\ns_cbranch_scc1 PL{uid}\nPD{uid}:")
def setflag(vt, vlane16, soff, imm=0, vm=None, init=True):
    if init: a(f"v_mov_b32 v{vt}, s22\nv_mov_b32 v{vt+1}, s23")
    a("s_mov_b64 exec, 1")
    s = f"buffer_store_dwordx2 v[{vt}:{vt+1}], {vlane16}, s[44:47], {soff} offen offset:{imm} sc1"
    if vm: vm.op(s)
    else: a(s)
    a("s_mov_b64 exec, -1")
def tag_load(): a(f"s_mov_b32 s67, {X_OFF}\ns_load_dwordx2 s[22:23], s[24:25], s67")
def tag_make(): a("s_add_u32 s22, s22, 0x7f4a7c15\ns_addc_u32 s23, s23, 0x9e3779b9")
def mapping():
    a("""s_and_b32 s30, s2, 1
s_lshr_b32 s31, s2, 3
s_bfe_u32 s52, s2, 0x20001
s_lshl_b32 s30, s30, 5
s_add_u32 s30, s30, s31
s_cmp_eq_u32 s52, 3
s_cselect_b32 s54, 52, 43
s_cselect_b32 s55, 5, 6
s_cselect_b32 s56, 55, 54
s_mul_i32 s26, s30, s54
s_lshr_b32 s26, s26, 8
s_mul_i32 s31, s26, s55
s_sub_u32 s27, s30, s31
s_sub_u32 s57, s30, s56
s_cmp_ge_u32 s57, 5
s_cselect_b32 s58, 10, 9
s_cselect_b32 s31, 5, 0
s_sub_u32 s59, s57, s31
s_and_b32 s60, s57, 1
s_add_u32 s60, s60, 9
s_lshr_b32 s61, s57, 1
s_cmp_eq_u32 s52, 3
s_cselect_b32 s58, s60, s58
s_cselect_b32 s59, 5, s59
s_cselect_b32 s61, s61, s52
s_cmp_lt_u32 s30, s56
s_cselect_b32 s26, s26, s58
s_cselect_b32 s27, s27, s59
s_cselect_b32 s52, s52, s61
s_lshl_b32 s52, s52, 1
s_add_u32 s31, s52, 6
s_cmp_lt_u32 s27, 2
s_cselect_b32 s31, 0, s31
s_add_u32 s27, s27, s52
s_add_u32 s27, s27, s31
s_min_u32 s27, s27, 23
s_mul_i32 s29, s26, 192""")
def pf_round(n, srdn, off):
    for i in range(n): a(f"s_buffer_load_dword s10, s[{srdn}:{srdn+3}], {off} offset:{64*i}")
def flagrow(dst, th, t1, t2):
    a(f"s_and_b32 {t1}, s2, 7\ns_lshl_b32 {t1}, {t1}, 3\ns_lshr_b32 {t2}, s2, 6\ns_lshl_b32 {t2}, {t2}, 1\ns_add_u32 {t1}, {t1}, {t2}\ns_add_u32 {t1}, {t1}, {th}")
    if dst: a(f"s_mul_i32 {t2}, {t1}, 86\ns_lshr_b32 {t2}, {t2}, 8\ns_mul_i32 {dst}, {t2}, {FROW}")
def pr(r): return f"v[{r}:{r+1}]"

a(".p2align 12")
kstart(a, K)
a("s_cmp_ge_u32 s2, 256\ns_cbranch_scc1 L_exit")
stamp(0)
a("v_lshrrev_b32 v1, 6, v0\ns_load_dwordx16 s[4:19], s[0:1], 0\nv_readfirstlane_b32 s28, v1\ns_load_dwordx2 s[20:21], s[0:1], 64\ns_load_dwordx2 s[24:25], s[0:1], 80")
if STAMP: a("s_memrealtime s[0:1]")
a("v_and_b32 v0, 63, v0\ns_cmp_ge_u32 s28, 4\ns_cbranch_scc0 M_start")
a("s_setprio 3")
mapping()
a("s_sub_u32 s52, s28, 4")
a("v_lshrrev_b32 v2, 3, v0\nv_and_b32 v3, 7, v0\nv_lshrrev_b32 v4, 4, v0\nv_lshlrev_b32 v31, 4, v0")
a("s_mul_i32 s54, s52, 48\ns_add_u32 s54, s54, s29\ns_lshl_b32 s54, s54, 10\ns_cmp_eq_u32 s27, 23\ns_cselect_b32 s54, 0x40000000, s54")
a("v_xor_b32 v5, v3, v4\nv_lshl_add_u32 v5, v5, 4, s54\nv_lshl_add_u32 v16, v2, 10, v5\nv_xor_b32 v7, 64, v16")
for i in range(1, 6): a(f"v_add_u32 v{16+i}, {i*8192}, v{16 if i%2==0 else 7}")
ROT = str(opt("rot", "c"))
a("s_mul_i32 s53, s52, 6144")
a({"0": "s_mov_b32 s54, 0",
   "a": "s_and_b32 s54, s26, 1\ns_lshl_b32 s54, s54, 1\ns_and_b32 s31, s2, 1\ns_add_u32 s54, s54, s31\ns_lshl_b32 s54, s54, 8",
   "b": "s_and_b32 s54, s26, 3\ns_lshl_b32 s54, s54, 8",
   "c": "s_and_b32 s54, s2, 1\ns_lshl_b32 s54, s54, 9",
   "d": "s_and_b32 s54, s26, 1\ns_lshl_b32 s54, s54, 9",
   "e": "s_and_b32 s54, s26, 3\ns_lshl_b32 s54, s54, 1\ns_and_b32 s31, s2, 1\ns_add_u32 s54, s54, s31\ns_lshl_b32 s54, s54, 7",
   "f": "s_add_u32 s54, s26, s27\ns_and_b32 s54, s54, 1\ns_lshl_b32 s54, s54, 1\ns_and_b32 s31, s2, 1\ns_add_u32 s54, s54, s31\ns_lshl_b32 s54, s54, 8"}[ROT])
a("s_mov_b32 s34, 0x200000\ns_mov_b32 s35, 0x00020000\ns_mov_b32 s39, s35\ns_mov_b32 s43, s35\ns_mov_b32 s51, s35\ns_mov_b32 s79, s35\ns_movk_i32 s78, 0x400")
a("v_mul_u32_u24 v12, 43, v0\nv_lshrrev_b32 v12, 8, v12\nv_mul_u32_u24 v13, 6, v12\nv_sub_u32 v13, v0, v13")
a("s_cmp_eq_u32 s52, 0\ns_cselect_b32 s63, 48, 43\ns_lshl_b32 s50, s63, 15\ns_lshl_b32 s3, s63, 12\ns_lshl_b32 s63, s63, 4\ns_mul_i32 s63, s63, s2")
a("v_mul_lo_u32 v12, v12, s3\nv_lshl_add_u32 v12, v13, 7, v12")
a("s_lshl_b32 s66, s2, 13\ns_lshl_b32 s31, s52, 11\ns_add_u32 s66, s66, s31")
a("s_cmp_lt_u32 s27, 8\ns_cbranch_scc1 L_qkv")
a("s_cmp_eq_u32 s27, 22\ns_cselect_b32 s31, 4, 12\ns_cmp_eq_u32 s27, 23\ns_cselect_b32 s31, 0, s31\nv_bfrev_b32 v11, 2")
for i in range(3):
    a(f"v_add_u32 v8, {64*i}, v0\nv_mul_u32_u24 v9, 43691, v8\nv_lshrrev_b32 v9, 19, v9\nv_mul_u32_u24 v10, 12, v9\nv_sub_u32 v10, v8, v10\nv_cmp_gt_u32 vcc, s31, v10")
    a(f"v_mul_u32_u24 v9, 2752, v9\nv_lshl_add_u32 v9, v10, 4, v9\nv_cndmask_b32 v{22+i}, v11, v9, vcc\nv_cndmask_b32 v{25+i}, v11, v9, vcc")
a("s_sub_u32 s55, s27, 8\ns_mul_i32 s55, s55, 192")
a(f"s_mul_i32 s67, s52, {16*2752}\ns_add_u32 s55, s55, s67\ns_mov_b32 s56, {64*2752}")
a(f"s_mul_i32 s67, s52, 3072\ns_add_u32 s57, s67, {XIMG}")
for i in range(1, 6): a(f"s_add_u32 s{57+i}, s57, {(i%3)*1024 + (W3OFF if i>=3 else 0)}")
a(f"s_mov_b32 s38, {512*2752}\ns_mov_b32 s30, {LOG2E}")
a("s_waitcnt lgkmcnt(0)")
a("s_mov_b32 s36, s12\ns_and_b32 s37, s13, 0xffff\ns_mov_b32 s40, s14\ns_and_b32 s41, s15, 0xffff")
a("s_branch L_go")
a("L_qkv:")
a("v_and_b32 v8, 1, v4\nv_lshlrev_b32 v8, 2, v8\nv_xor_b32 v8, v8, v3\nv_mul_u32_u24 v9, 3072, v2\nv_lshl_add_u32 v22, v8, 4, v9")
for i in range(1, 6): a(f"v_add_u32 v{22+i}, {(i//2)*1024 + (i%2)*8*3072}, v22")
a(f"s_lshl_b32 s55, s27, 7\ns_mul_i32 s67, s52, {16*3072}\ns_add_u32 s55, s55, s67\ns_mov_b32 s56, {64*3072}")
a(f"s_lshl_b32 s67, s52, 11\ns_add_u32 s57, s67, {XIMG}")
for i in range(1, 6): a(f"s_add_u32 s{57+i}, s57, {(i//2)*8192 + (i%2)*1024}")
a(f"s_mov_b32 s38, {512*3072}\ns_mov_b32 s30, {NLOG2E}")
a("s_waitcnt lgkmcnt(0)")
a("s_mov_b32 s36, s6\ns_and_b32 s37, s7, 0xffff\ns_mov_b32 s40, s6\ns_and_b32 s41, s7, 0xffff")
a("L_go:")
a("s_mov_b32 s42, s38\ns_mov_b32 s32, s4\ns_and_b32 s33, s5, 0xffff\ns_mov_b32 s76, s18\ns_and_b32 s77, s19, 0xffff")
a("s_cmp_eq_u32 s52, 0\ns_cselect_b32 s48, s6, s12\ns_cselect_b32 s49, s7, s13\ns_cmp_eq_u32 s52, 2\ns_cselect_b32 s48, s14, s48\ns_cselect_b32 s49, s15, s49\ns_and_b32 s49, s49, 0xffff\ns_mov_b32 s11, s63")
if ROT != "0": a("s_mov_b32 s19, s55\ns_lshr_b32 s31, s54, 7\ns_mul_i32 s31, s31, s56\ns_add_u32 s55, s55, s31")
stamp(1)
vm = VM()
def dma(q, c):
    sl = (c % 3) * SLOT
    if q < 6: a(f"s_add_u32 m0, s53, {sl + q*1024}\ns_nop 0"); return vm.op(f"buffer_load_dwordx4 v{16+q}, s[32:35], s54 offen{' nt' if c < XNT else ''} lds")
    i = q - 6
    a(f"s_add_u32 m0, s{57+i}, {sl}\ns_nop 0"); return vm.op(f"buffer_load_dwordx4 v{22+i}, s[{36 if i<3 else 40}:{39 if i<3 else 43}], s55 offen{' nt' if c < WNT else ''} lds")
def adv():
    a("s_add_u32 s54, s54, 128\ns_add_u32 s55, s55, s56")
    if ROT != "0": a("s_and_b32 s54, s54, 0x3ff\ns_cselect_b32 s55, s55, s19")
GR = 24 + 96
def w2touch(wo, w2):
    a("v_lshlrev_b32 v12, 7, v0")
    if wo: a("s_lshl_b32 s67, s2, 11\ns_mov_b64 exec, 0xffff\nbuffer_load_dword v14, v12, s[72:75], s67 offen")
    if w2: a("s_mul_i32 s67, s2, 5504\ns_mov_b32 exec_lo, -1\ns_movk_i32 exec_hi, 0x7ff\nbuffer_load_dword v14, v12, s[68:71], s67 offen")
    a("s_mov_b64 exec, -1")
def touches():
    a("s_cmp_eq_u32 s52, 3\ns_cbranch_scc1 L_vt3")
    if VT > V0:
        m = ((1 << (6 * VT)) - 1) & ~((1 << (6 * V0)) - 1)
        a(f"s_mov_b32 exec_lo, {m & 0xffffffff}\ns_mov_b32 exec_hi, {m >> 32}\nbuffer_load_dword v14, v12, s[48:51], s11 offen\ns_mov_b64 exec, -1")
    a("s_branch L_vt4\nL_vt3:")
    srd(a, 72, 8, 512*1024); srd(a, 68, 16, 1376*1024)
    w2touch(VWO, VW2 == "s")
    a("L_vt4:")
for q in range(21):
    if q == VPOS: touches()
    if q == XPOS:
        vm.op(f"buffer_load_dwordx4 v[{GR}:{GR+3}], v31, s[76:79], 0 offen"); vm.op(f"buffer_load_dwordx4 v[{GR+4}:{GR+7}], v31, s[32:35], s66 offen")
        gl = vm.op(f"buffer_load_dwordx4 v[{GR+8}:{GR+11}], v31, s[32:35], s66 offen offset:1024")
    if q == 2: tag_load()
    if q == 12: srd(a, 44, 24, WSB); srd(a, 72, 8, 512*1024); srd(a, 68, 16, 1376*1024); adv()
    if q < 12: last = dma(q, 0)
    elif q < 20: dma(q - 12, 1)
def gate_dots():
    a("v_mov_b32 v8, 0\nv_mov_b32 v9, 0")
    for d in range(4): a(f"v_dot2c_f32_bf16 v8, v{GR+4+d}, v{GR+d}\nv_dot2c_f32_bf16 v9, v{GR+8+d}, v{GR+d}")
    a(f"s_lshr_b32 s66, s66, 7\ns_add_u32 s66, s66, {S_OFF - 63*16}\ns_nop 0")
    for ctl in ["quad_perm:[1,0,3,2] row_mask:0xf", "quad_perm:[2,3,0,1] row_mask:0xf", "row_half_mirror row_mask:0xf", "row_mirror row_mask:0xf", "row_bcast:15 row_mask:0xa", "row_bcast:31 row_mask:0xc"]:
        a(f"v_add_f32_dpp v8, v8, v8 {ctl} bank_mask:0xf\nv_add_f32_dpp v9, v9, v9 {ctl} bank_mask:0xf\ns_nop 0")
    a("v_mov_b32 v10, s22\nv_mov_b32 v11, s23")
a("s_bfe_u32 s31, s2, 0x30003\ns_lshr_b32 s76, s52, 1\ns_and_b32 s77, s52, 1")
a("v_and_b32 v13, 1, v4\nv_lshlrev_b32 v13, 2, v13\nv_xor_b32 v13, v13, v3\nv_lshlrev_b32 v13, 4, v13\nv_lshl_add_u32 v28, v2, 10, v13")
a(f"s_lshl_b32 s31, s31, 7\ns_lshl_b32 s67, s77, 13\ns_add_u32 s31, s31, s67\ns_mul_i32 s67, s76, {3*16384}\ns_add_u32 s64, s31, s67\ns_mul_i32 s67, s76, {83*16384}\ns_sub_u32 s65, s31, s67\ns_lshl_b32 s67, s76, 18\ns_add_u32 s78, s31, s67")
a("s_lshl_b32 s63, s52, 10\nv_add_u32 v29, s63, v31\nv_add_u32 v30, 0x10000, v29\nv_add_u32 v15, 0x20000, v29")
flagrow("s79", "s77", "s31", "s67")
a(f"s_add_u32 s79, s79, {FH}")
a("s_waitcnt lgkmcnt(0)"); tag_make()
if XPOS < 6: vm.wait(gl); gate_dots()
a("s_mul_i32 s76, s2, 5504\ns_lshl_b32 s77, s2, 11\ns_setprio " + str(opt("lprio", 0)))
class W2Plan:
    def __init__(self): self.w2 = 0; self.wo = 32 if VWO else 0
    def one(self, n):
        if self.wo < 32:
            n = min(n, 32 - self.wo); a(f"s_add_u32 s67, s77, {64*self.wo}"); pf_round(n, 72, "s67"); self.wo += n
        elif self.w2 < 86:
            n = min(n, 86 - self.w2); a(f"s_add_u32 s67, s76, {64*self.w2}"); pf_round(n, 68, "s67"); self.w2 += n
    def round(self, kind):
        global uid
        if kind == "-": return
        uid += 1
        if kind == "o":
            a(f"s_lshl_b32 s67, s52, 9\ns_add_u32 s67, s67, s77"); pf_round(8, 72, "s67"); self.wo = 32
        elif kind == "w":
            n = min(NS, -(-(86 - self.w2) // 4))
            a(f"s_mul_i32 s67, s52, {64*n}\ns_add_u32 s67, s67, s76\ns_add_u32 s67, s67, {64*self.w2}"); pf_round(n, 68, "s67"); self.w2 += 4 * n
        else:
            a(f"s_cmp_eq_u32 s52, 3\ns_cbranch_scc1 PA{uid}")
            a(f"s_mul_i32 s67, s3, {int(kind)}\ns_add_u32 s67, s67, s11"); pf_round(12, 48, "s67")
            a(f"s_branch PB{uid}\nPA{uid}:"); self.one(12); a(f"PB{uid}:")
plan = W2Plan()
plan.round(LP[0])
OV = 32
def wsrc(j):
    if j < 43: return ("s65" if j == 14 else "s64"), ks0(j) * 16384, 68
    return "s78", (j - 43) * 16384, 72
ovq = list(range(43, 59)) + list(range(NA, 43))
def ovload():
    j = ovq.pop(0); r = OV + 4 * (j - NA); b, o, s_ = wsrc(j)
    if opt("noov"): return
    a(f"s_add_u32 s67, {b}, {o}"); return vm.op(f"buffer_load_dwordx4 v[{r}:{r+3}], v28, s[{s_}:{s_+3}], s67 offen")
def wdma(j, th=None):
    if opt("now"): return
    b, o, s_ = wsrc(j)
    a(f"s_add_u32 m0, s63, {pos(j)*4096}\ns_add_u32 s67, {b}, {o}")
    if th is not None: a(f"s_waitcnt vmcnt({th})")
    return vm.op(f"buffer_load_dwordx4 v28, s[{s_}:{s_+3}], s67 offen lds")
assert GR >= OV + 4 * NOV
for c in range(6):
    vm.wait(last); a("s_barrier")
    for q in range(8, 12): last = dma(q, c + 1)
    if c == (0 if XPOS <= 12 else 1):
        if XPOS >= 6: vm.wait(gl); gate_dots()
        a("s_brev_b64 exec, 1"); vm.op("buffer_store_dwordx4 v[8:11], v31, s[44:47], s66 offen sc1"); a("s_mov_b64 exec, -1")
    if VW2 == str(c):
        a("s_cmp_eq_u32 s52, 3\ns_cbranch_scc0 L_vw"); w2touch(not VWO, True); a("L_vw:")
    if C3 == str(c):
        a("s_cmp_ge_u32 s52, 2\ns_cbranch_scc0 L_c3\nv_lshlrev_b32 v12, 10, v0\ns_lshr_b32 s67, s2, 3\ns_cmp_eq_u32 s52, 2\ns_cbranch_scc0 L_c3b")
        a(f"s_mul_i32 s67, s67, {43*1024}\ns_movk_i32 exec_hi, 0x7ff\nbuffer_load_dword v14, v12, s[68:71], s67 offen offset:384\ns_branch L_c3c\nL_c3b:")
        a("s_lshl_b32 s67, s67, 14\ns_mov_b64 exec, 0xffff\nbuffer_load_dword v14, v12, s[72:75], s67 offen offset:384\nL_c3c:\ns_mov_b64 exec, -1\nL_c3:")
    if c == 5:
        a(f"s_mul_i32 s66, s52, 24\ns_lshr_b32 s67, s29, 1\ns_add_u32 s66, s66, s67\nv_min_u32 v13, 23, v0\nv_lshlrev_b32 v12, 3, v13\nv_add_u32 v13, s66, v13\nv_min_u32 v13, 0x3ff, v13\nv_lshlrev_b32 v13, 4, v13")
        a(f"s_mul_i32 s67, s52, 192\ns_add_u32 s67, s67, {G_LDS}\nv_add_u32 v12, s67, v12\ns_mov_b32 s66, {S_OFF}")
        last = vm.op("buffer_load_dwordx4 v[8:11], v13, s[44:47], s66 offen sc1")
    plan.round(LP[c + 1])
    adv()
    k_ = KO[c]
    for q in range(8):
        dma(q, c + 2)
        if q >= 8 - k_: ovload()
print("w2 lines", plan.w2, "wo lines", plan.wo, file=sys.stderr)
vm.wait(last); a("s_barrier")
for q in range(8, 12): last = dma(q, 7)
wq = [("d", j) for j in range(12)] + [("o", 0)] * len(ovq) + [("d", j) for j in range(12, 24)]
if opt("ovlast"): wq = [("d", j) for j in range(24)] + [("o", 0)] * len(ovq)
def wnext(th=None):
    k_, j = wq.pop(0)
    if k_ == "d": wdma(j, th)
    else:
        if th is not None: a(f"s_waitcnt vmcnt({th})")
        ovload()
N6 = int(opt("n6", 10)); N7 = int(opt("n7", 20)); TH2 = int(opt("th2", 8))
for n in range(4): wnext()
a("s_mov_b32 s31, 0\nL_gw:\nv_cmp_eq_u64 vcc, s[22:23], v[10:11]\ns_add_u32 s31, s31, 1\ns_nop 0\ns_cmp_eq_u64 vcc, -1\ns_cbranch_scc1 L_gd")
a(f"buffer_load_dwordx4 v[8:11], v13, s[44:47], s66 offen sc1\ns_cmp_lt_u32 s31, {SPIN}\ns_waitcnt vmcnt(0)\ns_cbranch_scc1 L_gw\nL_gd:")
a("v_mul_f32 v8, s30, v8\nv_mul_f32 v9, s30, v9\nv_exp_f32 v8, v8\nv_exp_f32 v9, v9\ns_mov_b32 s67, 0x7f000000\nv_add_f32 v8, 1.0, v8\nv_add_f32 v9, 1.0, v9\nv_min_f32 v8, s67, v8\nv_min_f32 v9, s67, v9")
a("ds_write_b64 v12, v[8:9]")
assert 4 <= N6 <= 12
for n in range(4, N6): wnext()
a(f"v_min_u32 v12, 28, v0\nv_lshlrev_b32 v12, 6, v12\nv_min_u32 v13, 15, v0\nv_lshlrev_b32 v13, 6, v13\nv_add_u32 v13, {FO-FH}, v13\nv_mov_b32 v14, {XF_LDS+16}")
vm.wait(last, " lgkmcnt(0)")
stamp(2)
a("s_barrier")
for n in range(N7): wnext(TH2)
stamp(3)
a(f"s_mov_b32 s31, 0\nL_rw:\nds_read_b32 v8, v14\ns_add_u32 s31, s31, 1\ns_waitcnt lgkmcnt(0)\nv_cmp_le_u32 vcc, 4, v8\ns_cmp_lt_u32 s31, {SPIN}\ns_cbranch_scc0 L_rd\ns_cbranch_vccnz L_rd\ns_sleep 1\ns_branch L_rw\nL_rd:")
while wq: wnext(TH)
for j in range(24, NA): wdma(j, TH)
a("s_waitcnt vmcnt(0)")
stamp(4)
J1 = int(opt("j1", 9)) if LV1 else 15 - HD; J2 = int(opt("j2", 23)) if LV1 else 30 - HD; J3 = min(44 - HD, NA - 2); B1 = J1 + 2
B2 = min(NOV, B1 + int(opt("b2", 6))); J4 = NA + B2 - 2 if B2 < NOV else -1
assert J2 + 2 >= NOV and J2 < J3
def lpoll(voff, imm, between=None):
    global uid; uid += 1; u = uid
    if between is None:
        a(f"s_cmp_lt_u32 s52, 2\ns_cbranch_scc0 NP{u}"); poll(8, voff, "s79", imm); a(f"NP{u}:"); return
    a(f"s_cmp_lt_u32 s52, 2\ns_cbranch_scc0 NQ{u}\nbuffer_load_dwordx2 v[8:9], {voff}, s[44:47], s79 offen offset:{imm} sc1\nNQ{u}:")
    between()
    a(f"s_cbranch_scc0 NP{u}\ns_waitcnt vmcnt(0)\nv_cmp_eq_u64 vcc, s[22:23], v[8:9]\ns_nop 1\ns_cmp_eq_u64 vcc, -1\ns_cbranch_scc1 NP{u}")
    poll(8, voff, "s79", imm); a(f"NP{u}:")
def ovwrite(n0, n1):
    for n in range(n0, n1):
        p = pos(n); a(f"ds_write_b128 v{(29, 30, 15)[p // 16]}, v[{OV+4*n}:{OV+3+4*n}] offset:{(p % 16) * 4096}" + ("\ns_waitcnt lgkmcnt(0)" if opt("pw") else ""))
if not opt("nolq"):
    a(f"s_cmp_lt_u32 s27, 8\ns_cbranch_scc0 L_qd\ns_mov_b32 s31, 0\nL_qw:\nds_read_b32 v8, v14\ns_add_u32 s31, s31, 1\ns_waitcnt lgkmcnt(0)\nv_cmp_lt_u32 vcc, 4, v8\ns_cmp_lt_u32 s31, {SPIN}\ns_cbranch_scc0 L_qd\ns_cbranch_vccnz L_qd\ns_sleep 2\ns_branch L_qw\nL_qd:")
lpoll("v12", 16 if LV1 else 0)
stamp(5)
a("s_barrier")
if not LV1: lpoll("v12", 8)
a("s_barrier")
if LV1: ovwrite(0, B1)
else: lpoll("v12", 16, lambda: ovwrite(0, B1))
stamp(6)
a("s_waitcnt lgkmcnt(0)\ns_barrier")
lpoll("v13", 0, lambda: ovwrite(B1, B2))
stamp(7)
a("s_waitcnt lgkmcnt(0)\ns_barrier")
if J4 >= 0: ovwrite(B2, NOV); a("s_waitcnt lgkmcnt(0)\ns_barrier")
a(f"s_lshl_b32 s67, s2, 2\ns_add_u32 s67, s67, s52\ns_cmp_eq_u32 s67, 0\ns_cbranch_scc0 L_nox\ns_mov_b32 s67, {X_OFF}")
setflag(8, "v31", "s67")
a("L_nox:")
PIT = 272; PART = 10 * 4096
def fin_setup():
    srd(a, 48, 20, 2048*1024)
    a(f"v_lshrrev_b32 v8, 3, v0\ns_lshl_b32 s56, s28, 3\nv_add_u32 v8, s56, v8\nv_and_b32 v9, 7, v0\nv_mul_u32_u24 v10, {PIT}, v8\nv_lshl_add_u32 v10, v9, 5, v10")
    a("v_lshlrev_b32 v8, 10, v8\nv_lshl_add_u32 v8, v9, 4, v8")
    a("s_and_b32 s56, s2, 7\ns_lshl_b32 s56, s56, 2\ns_lshr_b32 s57, s2, 6\ns_add_u32 s56, s56, s57\ns_lshl_b32 s56, s56, 16\ns_bfe_u32 s57, s2, 0x30003\ns_lshl_b32 s57, s57, 7\ns_add_u32 s56, s56, s57")
fin_setup()
a("s_branch L_fin")
a("L_exit:\ns_endpgm")

FR = 144; VX = 192; VW = 196; VGA = 197; VMK = 199; TT = 200; VL = 228; VG = 229; PQ = 232
WA = (221, 223, 225)
def acc(ti, fi): return 16 * (3 * fi + ti)
def fx(st, ti): return FR + 24 * st + 4 * ti
def fw(st, fi): return FR + 24 * st + 12 + 4 * fi
a("M_start:"); MSIDE = True
a(f"v_lshlrev_b32 v{VL}, 4, v0")
a(f"s_getpc_b64 s[48:49]\nM_pc:\ns_sub_u32 s48, s48, M_pc-{K}\ns_subb_u32 s49, s49, 0\ns_and_b32 s49, s49, 0xffff\ns_mov_b32 s50, L_codeend-{K}\ns_mov_b32 s51, 0x00020000")
a("s_lshr_b32 s30, s2, 3\ns_lshl_b32 s30, s30, 2\ns_add_u32 s30, s30, s28\ns_mul_i32 s30, s30, 192\ns_waitcnt lgkmcnt(0)")
tag_load()
if not opt("nocpf"): pf_round(3, 48, "s30")
srd(a, 44, 24, WSB)
mapping()
a("s_lshr_b32 s52, s28, 1\ns_and_b32 s53, s28, 1")
a("v_and_b32 v2, 31, v0\nv_lshrrev_b32 v3, 5, v0\nv_bfe_u32 v4, v0, 1, 3")
a("s_mul_i32 s54, s52, 96\nv_add_u32 v5, s54, v2\nv_lshlrev_b32 v6, 7, v5")
for s in range(4): a(f"v_add_u32 v7, {2*s}, v3\nv_xor_b32 v7, v7, v4\nv_lshl_add_u32 v{VX+s}, v7, 4, v6")
a(f"v_lshlrev_b32 v{VGA}, 2, v5\nv_add_u32 v{VGA}, {G_LDS}, v{VGA}")
a("v_bfe_u32 v8, v0, 4, 1\nv_bfe_u32 v9, v0, 2, 2\nv_and_b32 v10, 3, v0\nv_lshl_add_u32 v11, v3, 3, v9")
a(f"s_mov_b32 s63, 0\ns_mov_b32 s66, 0\ns_mov_b32 s65, {SLOT}")
a("v_lshl_add_u32 v14, v3, 2, v9\nv_lshrrev_b32 v12, 1, v9\nv_lshlrev_b32 v12, 6, v12\nv_lshl_add_u32 v12, v14, 7, v12\nv_lshl_add_u32 v12, v8, 5, v12\nv_lshl_add_u32 v12, v10, 3, v12")
a(f"s_lshl_b32 s57, s52, 11\nv_add_u32 v{WA[0]}, s57, v12\nv_xor_b32 v{WA[0]+1}, 64, v{WA[0]}")
for g in (1, 2): a(f"v_add_u32 v{WA[g]}, {g*0x10000}, v{WA[0]}\nv_add_u32 v{WA[g]+1}, {g*0x10000}, v{WA[0]+1}")
flagrow(None, "s53", "s60", "s62")
a(f"s_mul_i32 s60, s60, {HP*1024}\ns_mul_i32 s57, s52, 3072\ns_add_u32 s76, s60, s57\ns_mul_i32 s57, s52, {83*1024}\ns_sub_u32 s77, s60, s57")
a(f"s_lshl_b32 s57, s52, 14\ns_add_u32 s78, s60, s57\ns_add_u32 s78, s78, {96*1024}")
a(f"s_lshl_b32 s56, s53, 5\nv_add_u32 v12, s56, v2\nv_mul_u32_u24 v12, {PIT}, v12\nv_lshl_add_u32 v12, v3, 4, v12\ns_mul_i32 s56, s52, {64*PIT}\ns_add_u32 s56, s56, {PART}\nv_add_u32 v227, s56, v12")
a(f"s_lshl_b32 s59, s26, 1\ns_add_u32 s59, s59, s52\ns_mul_i32 s56, s59, {3*HP}\ns_mul_i32 s59, s59, {FROW}")
def m_ready():
    a(f"v_mov_b32 v12, {XF_LDS+16}\nv_mov_b32 v13, 0\nds_write_b32 v12, v13")
    for r in range(0, 144, 2): a(f"v_mov_b64 v[{r}:{r+1}], 0")
    a("s_waitcnt lgkmcnt(0)")
    tag_make()
    a("v_mov_b32 v208, s22\nv_mov_b32 v209, s23")
    stamp(1)
a("s_cmp_lt_u32 s27, 8\ns_cbranch_scc1 M_qkv")

SIG = str(opt("sig", "d"))
def signal(): a(f"v_mov_b32 v{VX}, {XF_LDS+16}\nv_mov_b32 v{VX+1}, 1\ns_mov_b64 exec, 1\nds_add_u32 v{VX}, v{VX+1}\ns_mov_b64 exec, -1")
def kloop(kind):
    def wimm(s, fi, rd):
        return s * 3072 + rd * 768 + 32 * fi if kind == "ffn" else fi * 8192 + s * 2048 + rd * 512
    def reads(st, s):
        r = [f"ds_read_b128 v[{fx(st,i)}:{fx(st,i)+3}], v{VX+s} offset:{4096*i}" for i in range(3)]
        w = [[f"ds_read_b64_tr_b16 v[{fw(st,i)+2*rd}:{fw(st,i)+2*rd+1}], v{VW} offset:{wimm(s,i,rd)}" for rd in range(2)] for i in range(3)]
        return [r[0], w[0][0], w[0][1], r[1], r[2], w[1][0], w[1][1], w[2][0], w[2][1]]
    def mf(st, ti, fi):
        d = acc(ti, fi); A, B = fw(st, fi), fx(st, ti)
        if kind == "qkv" and fi > 0: A, B = B, A
        return f"v_mfma_f32_32x32x16_bf16 v[{d}:{d+15}], v[{A}:{A+3}], v[{B}:{B+3}], v[{d}:{d+15}]"
    a("s_setprio " + str(opt("mprio", 2)))
    a("s_barrier")
    stamp(2)
    for x in reads(0, 0): a(x)
    a(f"M_loop_{kind}:")
    for s in range(4):
        st = s & 1
        rd = reads(st ^ 1, (s + 1) & 3)
        a("s_waitcnt lgkmcnt(0)")
        n = 0
        for fi in range(3):
            for ti in range(3):
                a(mf(st, ti, fi))
                if n == 5 and s == 2:
                    a(f"s_cmp_eq_u32 s63, {2*SLOT}\ns_cselect_b32 s64, {(-2*SLOT) & 0xffffffff}, s65\ns_add_u32 s63, s63, s64")
                if n == 6 and s == 2:
                    a(f"v_add_u32 v{VX}, s64, v{VX}\nv_add_u32 v{VW}, s64, v{VW}\nv_add_u32 v{VX+1}, s64, v{VX+1}")
                if n == 7 and s == 2:
                    a(f"v_add_u32 v{VX+2}, s64, v{VX+2}\nv_add_u32 v{VX+3}, s64, v{VX+3}\ns_add_u32 s66, s66, 1\ns_cmp_lt_u32 s66, 8")
                if n == 0 and s == 3: a(f"s_cbranch_scc0 M_nb_{kind}\ns_barrier\nM_nb_{kind}:")
                if n < 5:
                    for x in rd[2*n:2*n+2]: a(x)
                n += 1
    a(f"s_cbranch_scc1 M_loop_{kind}")
    stamp(3)
    if kind == "qkv" or SIG == "k": signal()
    for i in range(3):
        if kind == "ffn": a(f"ds_read2_b32 v[{TT+2*i}:{TT+2*i+1}], v{VGA} offset0:{32*i} offset1:{32*i}")
        else: a(f"ds_read_b32 v{VG+i}, v{VGA} offset:{128*i}")

HB = 72; WF = 48
assert HB + 4 * HD <= 120

a(f"v_mul_u32_u24 v12, {W3OFF}, v8\nv_mul_u32_u24 v13, 192, v11\nv_add_u32 v12, v12, v13\ns_mul_i32 s54, s53, 96\ns_add_u32 s54, s54, {XIMG}\nv_lshl_add_u32 v12, v10, 3, v12\nv_add_u32 v{VW}, s54, v12")
a("s_sub_u32 s60, s27, 8\ns_lshl_b32 s60, s60, 1\ns_add_u32 s60, s60, s53\ns_mul_i32 s57, s60, 3\ns_add_u32 s56, s56, s57\ns_lshl_b32 s68, s56, 10")
a(f"s_add_u32 s69, s68, {HP*1024}\ns_add_u32 s70, s68, {2*HP*1024}")
a(f"s_lshl_b32 s60, s60, 6\ns_add_u32 s71, s59, s60\ns_add_u32 s71, s71, {FH}")
a(f"s_mov_b32 s30, {NLOG2E}\ns_mov_b32 s31, {NLOG2E}")
m_ready()
kloop("ffn")
a("s_waitcnt lgkmcnt(0)")
vm = VM(); sid = []; ops = []
def stored():
    vm.n += 1; sid.append(vm.n)
    if SIG == str(len(sid)): signal()
    if len(sid) == T1 and not LV1: vm.wait(sid[2]); setflag(208, f"v{VL}", "s71", 0, vm, False)
for fi in range(3):
    for ti in range(3):
        d = acc(ti, fi); t = FR + 12 * ((3 * fi + ti) & 3); g = pr(TT + 2 * ti)
        for j in range(0, 8, 2): ops.append(f"v_pk_mul_f32 {pr(t+j)}, {pr(d+j)}, s[30:31]")
        for j in range(8): ops.append(f"v_exp_f32 v{t+j}, v{t+j}")
        for j in range(0, 8, 2): ops.append(f"v_pk_fma_f32 {pr(t+j)}, {pr(t+j)}, {g}, {g}")
        for j in range(0, 8, 2): ops.append(f"v_pk_mul_f32 {pr(d+j)}, {pr(d+j)}, {pr(d+8+j)}")
        for j in range(8): ops.append(f"v_rcp_f32 v{t+j}, v{t+j}")
        for j in range(0, 8, 2): ops.append(f"v_pk_mul_f32 {pr(d+j)}, {pr(d+j)}, {pr(t+j)}")
        for j in range(4): ops.append(f"v_cvt_pk_bf16_f32 v{t+8+j}, v{d+2*j}, v{d+2*j+1}")
        if not opt("nost"): ops.append((f"buffer_store_dwordx4 v[{t+8}:{t+11}], v{VL}, s[44:47], s{68+ti} offen offset:{1024*fi} {HST}", stored))
print("ffn epilogue model cycles", schedule(ops, a, window=int(opt("win", 40))), file=sys.stderr)
stamp(4)
if SIG == "e": signal()
if not LV1: vm.wait(sid[5]); setflag(208, f"v{VL}", "s71", 8, vm, False)
if sid: vm.wait(sid[8])
setflag(208, f"v{VL}", "s71", 16, vm, False)
if SIG == "d": signal()
stamp(5)
a("s_branch M_s2")

a("M_qkv:")
a(f"v_lshrrev_b32 v13, 1, v9\nv_xor_b32 v13, s53, v13\nv_lshlrev_b32 v13, 6, v13\nv_lshl_add_u32 v13, v11, 7, v13\nv_xor_b32 v12, s52, v8\nv_lshl_add_u32 v13, v12, 5, v13\nv_lshl_add_u32 v13, v10, 3, v13\nv_add_u32 v{VW}, {XIMG}, v13")
a(f"s_lshl_b32 s54, s28, 2\ns_add_u32 s54, s54, {XF_LDS}\nv_mov_b32 v218, s54\nv_mov_b32 v12, 0\nds_write_b32 v218, v12\nv_xor_b32 v219, 8, v218")
a("s_lshl_b32 s57, s27, 2\ns_lshl_b32 s58, s53, 1\ns_add_u32 s60, s57, s58")
a("s_add_u32 s56, s56, s60\ns_add_u32 s56, s56, 96\ns_add_u32 s57, s56, s52\ns_lshl_b32 s36, s57, 10\ns_sub_u32 s57, s56, s52\ns_add_u32 s57, s57, 1\ns_lshl_b32 s37, s57, 10")
for ti in (1, 2): a(f"s_add_u32 s{36+2*ti}, s36, {ti*HP*1024}\ns_add_u32 s{37+2*ti}, s37, {ti*HP*1024}")
a(f"s_lshl_b32 s57, s60, 5\ns_add_u32 s71, s59, s57\ns_add_u32 s71, s71, {FO}")
a("s_add_u32 s60, s60, s52")
a(f"s_mul_i32 s72, s60, {11*PSZ}\ns_add_u32 s72, s72, {P_OFF}\ns_mul_i32 s73, s26, {PSZ}\ns_add_u32 s73, s73, s72")
a("s_cmp_eq_u32 s26, 10\ns_cselect_b32 s75, s52, 0\ns_cmp_eq_u32 s75, 1\ns_cselect_b32 s75, 0, 0x3f803f80")
a("s_mov_b32 vcc_lo, 0xffff\ns_mov_b32 vcc_hi, 0xffff")
a("v_and_b32 v12, 15, v0\nv_lshlrev_b32 v13, 4, v12\nv_lshl_add_u32 v13, v3, 8, v13\nv_lshlrev_b32 v14, 4, v3")
a("v_add_u32 v15, 1024, v14\nv_cndmask_b32 v210, v15, v13, vcc\nv_add_u32 v15, 32, v15\nv_add_u32 v16, 512, v13\nv_cndmask_b32 v211, v15, v16, vcc")
a(f"s_lshl_b32 s54, s28, 11\ns_add_u32 s54, s54, {EXCH}\nv_add_u32 v212, s54, v{VL}\ns_xor_b32 s55, s28, 2\ns_lshl_b32 s54, s55, 11\ns_add_u32 s54, s54, {EXCH}\nv_xor_b32 v15, 0x100, v{VL}\nv_add_u32 v213, s54, v15")
a(f"s_mul_i32 s54, s28, {KVS}\ns_add_u32 s54, s54, {KVA}\ns_mul_i32 s55, s55, {KVS}\ns_add_u32 s55, s55, {KVA}")
a("v_lshlrev_b32 v15, 4, v2\nv_lshl_add_u32 v15, v3, 3, v15\nv_add_u32 v214, s54, v15")
a("v_bfe_u32 v15, v0, 2, 1\nv_lshlrev_b32 v15, 4, v15\nv_and_b32 v16, 8, v0\nv_add_u32 v15, v15, v16\nv_lshl_add_u32 v15, v10, 1, v15\nv_add_u32 v215, s54, v15")
a("v_add_u32 v14, 512, v14\nv_cndmask_b32 v15, v14, v13, vcc\nv_add_u32 v216, s54, v15\nv_cndmask_b32 v15, v13, v14, vcc\nv_add_u32 v217, s55, v15")
a(f"v_lshrrev_b32 v15, 4, v0\nv_mul_u32_u24 v15, {PSZ}, v15\nv_lshl_add_u32 v220, v12, 2, v15\nv_mov_b32 v{VMK}, 0xffffff00\nv_lshlrev_b32 v198, 3, v10")
a(f"s_mov_b32 s30, {LOG2E}\ns_mov_b32 s31, {LOG2E}\ns_mov_b32 s3, {EPS}")
m_ready()
for i in range(4): a(f"s_bfe_u32 s{32+i}, s22, {0x80000 + 8*i}")
a("v_bfe_u32 v198, v208, v198, 8")
kloop("qkv")
CK = FR; CZ = FR + 16; ONE = FR + 32; TB = FR + 36; ONE2 = FR + 44
for j in range(4): a(f"v_mov_b32 v{ONE+j}, 0x3f803f80\nv_mov_b32 v{ONE2+j}, s75")
a("s_waitcnt lgkmcnt(0)")
def phih(d, dst, h):
    b = d + 8 * h; t = (TT, TB)[h]; o = []
    for j in range(0, 8, 2): o.append(f"v_pk_mul_f32 {pr(t+j)}, {pr(b+j)}, s[30:31]")
    for j in range(8): o.append(f"v_exp_f32 v{t+j}, v{t+j} clamp")
    for j in range(8): o.append(f"v_max_f32 v{b+j}, s3, v{b+j}")
    for j in range(0, 8, 2): o.append(f"v_pk_add_f32 {pr(b+j)}, {pr(b+j)}, {pr(t+j)}")
    for j in range(4): o.append(f"v_cvt_pk_bf16_f32 v{dst+4*h+j}, v{b+2*j}, v{b+2*j+1}")
    return o
ops = []
for ti in range(3):
    dk = acc(ti, 1); dv = acc(ti, 2); one = ONE2 if ti else ONE
    for h in range(2):
        ops += phih(dk, dk, h)
        for j in range(4 * h, 4 * h + 4): ops.append(f"v_cvt_pk_bf16_f32 v{dv+j}, v{dv+2*j}, v{dv+2*j+1}")
        c0, c1 = (f"v[{CK}:{CK+15}]", f"v[{CZ}:{CZ+15}]") if ti or h else ("0", "0")
        ops.append(f"v_mfma_f32_32x32x16_bf16 v[{CZ}:{CZ+15}], v[{dk+4*h}:{dk+4*h+3}], v[{one}:{one+3}], {c1}")
        ops.append(f"v_mfma_f32_32x32x16_bf16 v[{CK}:{CK+15}], v[{dk+4*h}:{dk+4*h+3}], v[{dv+4*h}:{dv+4*h+3}], {c0}")
print("k epilogue model cycles", schedule(ops, a, window=30), file=sys.stderr)
KEEP = 48; SEND = 56; RCV = 64
schedule(phih(acc(0, 0), PQ, 0), a)
for j in range(8): a(f"v_cndmask_b32 v{SEND+j}, v{CK+8+j}, v{CZ+8+j}, vcc")
a(f"ds_write_b128 v212, v[{SEND}:{SEND+3}]\nds_write_b128 v212, v[{SEND+4}:{SEND+7}] offset:1024\nv_mov_b32 v72, 1")
for j in range(8): a(f"v_cndmask_b32 v{KEEP+j}, v{CZ+j}, v{CK+j}, vcc")
a("s_mov_b32 s67, 0\ns_waitcnt lgkmcnt(0)\nds_write_b32 v218, v72")
a("M_xw:")
a(f"ds_read_b32 v73, v219\nds_read_b128 v[{RCV}:{RCV+3}], v213\nds_read_b128 v[{RCV+4}:{RCV+7}], v213 offset:1024\ns_add_u32 s67, s67, 1\ns_waitcnt lgkmcnt(0)")
a(f"v_cmp_ne_u32 vcc, 0, v73\ns_cmp_lt_u32 s67, {SPIN}\ns_cbranch_scc0 M_xd\ns_cbranch_vccz M_xw\nM_xd:")
for j in range(0, 8, 2): a(f"v_pk_add_f32 {pr(KEEP+j)}, {pr(KEEP+j)}, {pr(RCV+j)}")
for j in range(8): a(f"v_and_or_b32 v{KEEP+j}, v{KEEP+j}, v{VMK}, s{32 + (j & 3)}")
a("s_mov_b32 exec_lo, 0x1ffff\ns_mov_b32 exec_hi, 0x1ffff")
for q in range(2): a(f"buffer_store_dwordx4 v[{KEEP+4*q}:{KEEP+4*q+3}], v{210+q}, s[44:47], s73 offen sc1")
a("s_mov_b64 exec, -1")
stamp(4)
schedule(phih(acc(0, 0), PQ, 1) + sum((phih(acc(ti, 0), PQ + 8 * ti, h) for ti in (1, 2) for h in range(2)), []), a, window=30)
GK = 120; GZ = 164
a(f"s_mov_b32 s67, 0\ns_add_u32 s57, s72, {4*PSZ}\ns_add_u32 s58, s72, {8*PSZ}\ns_branch M_g0\nM_gw:\n" + (f"s_sleep {opt('gbo')}\n" if opt("gbo") else "") + "M_g0:")
a(f"v_mov_b32 v{GZ+2}, v198\ns_add_u32 s67, s67, 1\ns_cmp_lt_u32 s67, {SPIN}\ns_cselect_b32 s62, 0xff, 0")
a(f"buffer_load_dword v{GZ}, v220, s[44:47], s72 offen offset:1024 sc1\nbuffer_load_dword v{GZ+1}, v220, s[44:47], s57 offen offset:1024 sc1")
a(f"s_mov_b32 exec_hi, 0xffff\nbuffer_load_dword v{GZ+2}, v220, s[44:47], s58 offen offset:1024 sc1\ns_mov_b32 exec_hi, -1")
GZO = not opt("nogzo")
def kvloads():
    for p in range(11):
        a(f"buffer_load_dwordx4 v[{GK+4*p}:{GK+4*p+3}], v{VL}, s[44:47], {('s72', 's57', 's58')[p//4]} offen offset:{(p%4)*PSZ} sc1")
if not GZO: kvloads()
a(f"s_waitcnt vmcnt({0 if GZO else 11})")
for i in range(3): a(f"v_xor_b32 v{GZ+i}, v198, v{GZ+i}")
a(f"v_or3_b32 v1, v{GZ}, v{GZ+1}, v{GZ+2}\nv_and_b32 v1, s62, v1\nv_cmp_ne_u32 vcc, 0, v1\nv_add_f32 v{GZ}, v{GZ}, v{GZ+1}\nv_add_f32 v{GZ}, v{GZ}, v{GZ+2}\ns_cbranch_vccnz M_gw")
if GZO: kvloads()
if not opt("nolq"): signal()
stamp(5)
a(f"v_mov_b32 v{GZ+1}, v{GZ}\ns_nop 1\nv_permlane16_swap_b32 v{GZ}, v{GZ+1}\nv_add_f32 v{GZ}, v{GZ}, v{GZ+1}\nv_mov_b32 v{GZ+1}, v{GZ}\ns_nop 1\nv_permlane32_swap_b32 v{GZ}, v{GZ+1}\nv_add_f32 v{GZ}, v{GZ}, v{GZ+1}")
a(f"v_cvt_pk_bf16_f32 v{GZ}, v{GZ}, v{GZ}\nds_write_b16 v215, v{GZ} offset:512")
for p in range(11):
    a(f"s_waitcnt vmcnt({10-p})")
    r = GK + 4 * p
    for j in range(4): a(f"v_xor_b32 v{r+j}, s{32+j}, v{r+j}")
    a(f"v_or3_b32 v1, v{r}, v{r+1}, v1\nv_or3_b32 v1, v{r+2}, v{r+3}, v1")
    if p:
        for j in range(0, 4, 2): a(f"v_pk_add_f32 {pr(GK+j)}, {pr(GK+j)}, {pr(r+j)}")
a(f"v_and_b32 v1, s62, v1\nv_cmp_ne_u32 vcc, 0, v1\nv_cvt_pk_bf16_f32 v{GK}, v{GK}, v{GK+1}\nv_cvt_pk_bf16_f32 v{GK+1}, v{GK+2}, v{GK+3}\ns_cbranch_vccnz M_gw")
a(f"ds_write_b64 v214, {pr(GK)}")
a("v_mov_b32 v1, 2\ns_mov_b32 s67, 0\ns_waitcnt lgkmcnt(0)\nds_write_b32 v218, v1")
a("M_ow:")
a(f"ds_read_b32 v1, v219\nds_read_b128 v[120:123], v216\nds_read_b128 v[124:127], v217\ns_add_u32 s67, s67, 1\ns_waitcnt lgkmcnt(0)")
a(f"v_cmp_eq_u32 vcc, 2, v1\ns_cmp_lt_u32 s67, {SPIN}\ns_cbranch_scc0 M_od\ns_cbranch_vccz M_ow\nM_od:")
OD = 0; ops = []
for ti in range(3):
    for h in range(2):
        d = OD + 32 * ti + 16 * h
        ops.append(f"v_mfma_f32_32x32x16_bf16 v[{d}:{d+15}], v[{120+4*h}:{123+4*h}], v[{PQ+8*ti+4*h}:{PQ+8*ti+4*h+3}], 0")
for ti in range(3):
    for h in range(2):
        d = OD + 32 * ti + 16 * h; num = d + 8 * h; den = d + 8 - 8 * h; o = 128 + 8 * ti + 4 * h
        ops += [f"v_add_f32 v{den}, s3, v{den}", f"v_mul_f32 v{den}, v{den}, v{VG+ti}", f"v_rcp_f32 v{den}, v{den}"]
        for j in range(0, 8, 2): ops.append(f"v_pk_mul_f32 {pr(num+j)}, {pr(num+j)}, {pr(den)} op_sel_hi:[1,0]")
        for j in range(4): ops.append(f"v_cvt_pk_bf16_f32 v{o+j}, v{num+2*j}, v{num+2*j+1}")
        ops.append(f"buffer_store_dwordx4 v[{o}:{o+3}], v{VL}, s[44:47], s{36+2*ti+h} offen sc1")
print("o block model cycles", schedule(ops, a, window=40), file=sys.stderr)

a("M_s2:")
stamp(6)
def hload(j):
    r = HB + 4 * (j % HD); imm = 0
    if j < 43: a(f"s_add_u32 s61, {'s77' if j == 14 else 's76'}, {ks0(j)*1024}")
    else:
        jj = j - 43; imm = (jj % 4) * 1024
        if jj % 4 == 0: a(f"s_add_u32 s61, s78, {(jj//4)*4096}")
    a(f"buffer_load_dwordx4 v[{r}:{r+3}], v{VL}, s[44:47], s61 offen offset:{imm} sc1")
def wreads(j):
    p = pos(j); r = []
    for c in range(2):
        for rd in range(2):
            d = WF + 8 * (j % 3) + 4 * c + 2 * rd
            r.append(f"ds_read_b64_tr_b16 v[{d}:{d+1}], v{WA[p//16]+c} offset:{(p%16)*4096 + rd*1024}")
    return r
a("s_barrier")
stamp(7)
for j in range(HD - 1): hload(j)
for x in wreads(0) + wreads(1): a(x)
issued = HD - 1
S2O = str(opt("s2o", "c"))
for j in range(59):
    bar = j in (J1, J2, J3, J4)
    h = HB + 4 * (j % HD); w = WF + 8 * (j % 3)
    c0, c1 = ("v[16:31]", "v[32:47]") if j else ("0", "0")
    m0 = f"v_mfma_f32_32x32x16_bf16 v[16:31], v[{w}:{w+3}], v[{h}:{h+3}], {c0}"
    m1 = f"v_mfma_f32_32x32x16_bf16 v[32:47], v[{w+4}:{w+7}], v[{h}:{h+3}], {c1}"
    rd = wreads(j + 2) if j + 2 < 59 else []
    a(f"s_waitcnt vmcnt({issued - 1 - j}) lgkmcnt({0 if bar or j == 58 else 4})")
    if j == 0:
        a("s_cmp_lt_u32 s27, 8\ns_cbranch_scc0 M_noflag"); setflag(208, f"v{VL}", "s71", init=False); a("s_nop 2\nM_noflag:")
    a(m0)
    if j == 0: stamp(1, True)
    if bar:
        if j != J4: stamp({J1: 2, J2: 4, J3: 6}[j], True)
        a("s_barrier")
        if j in (J1, J2): stamp({J1: 3, J2: 5}[j], True)
        if j == J3: stamp(8)
    if S2O == "b":
        if issued < 59: hload(issued); issued += 1
        a(m1)
        for x in rd: a(x)
    elif S2O == "c":
        for x in rd: a(x)
        a(m1)
        if issued < 59: hload(issued); issued += 1
    else:
        for x in rd[:2]: a(x)
        if issued < 59: hload(issued); issued += 1
        a(m1)
        for x in rd[2:]: a(x)
stamp(9)
a(f"v_lshrrev_b32 v0, 4, v{VL}")
fin_setup()
for c in range(2):
    for q in range(4): a(f"ds_write_b128 v227, v[{16+16*c+4*q}:{19+16*c+4*q}] offset:{c*128 + q*32}")
a("s_waitcnt lgkmcnt(0)")
a("L_fin:\ns_barrier")
a(f"ds_read_b128 v[16:19], v10 offset:{PART}\nds_read_b128 v[24:27], v10 offset:{PART+64*PIT}\nds_read_b128 v[20:23], v10 offset:{PART+16}\nds_read_b128 v[28:31], v10 offset:{PART+64*PIT+16}")
a("s_waitcnt lgkmcnt(0)")
for j in range(0, 8, 2): a(f"v_pk_add_f32 {pr(16+j)}, {pr(16+j)}, {pr(24+j)}")
for j in range(4): a(f"v_cvt_pk_bf16_f32 v{16+j}, v{16+2*j}, v{17+2*j}")
a("buffer_store_dwordx4 v[16:19], v8, s[48:51], s56 offen " + str(opt("outflag", "")).replace("_", " "))
stamp(10)
dump_stamps()
a("s_endpgm\nL_codeend:")
rodata(a)
kdesc(a, K, 256, 256)
open(OUT, "w").write(a.text())
```

```python
import sys
from asmlib import *
from sched import schedule
def opt(name, default=None):
    for x in sys.argv[1:]:
        if x == "--" + name: return True
        if x.startswith("--" + name + "="): return x.split("=", 1)[1]
    return default
STAMP = opt("stamp", False)
OUT = [x for x in sys.argv[1:] if not x.startswith("--")][0]
FS = 64
HD = int(opt("hd", 9))
TH = int(opt("th", 7))
V0 = int(opt("v0", 4)); VPOS = int(opt("vpos", 20))
WNT = int(opt("wnt", 0)); XNT = int(opt("xnt", 0))
VW2 = str(opt("vw2", "-"))
C3 = str(opt("c3", "4"))
N8 = int(opt("n8", 37))
VT = int(opt("vt", 0))
VWO = int(opt("vwo", 0))
XPOS = int(opt("xpos", 0))
LP = str(opt("lp", "-o-ww--"))
NS = int(opt("ns", 11))
KO = [int(x, 16) for x in str(opt("ko", "000000"))]
T1 = int(opt("t1", 7))
QW = int(opt("qw", 2))
BO = int(opt("bo", 0)); LV1 = not opt("lv3"); HST = str(opt("hst", "sc1")).replace("none", "").replace("_", " ")
SPIN = 1 << 16

SLOT = 49216; XIMG = 24576; W3OFF = 12320
NA = 37; NOV = 59 - NA
assert sum(KO) <= NOV
MISC = 2 * NA * 2048
G_LDS = MISC; XF_LDS = G_LDS + 768; EXCH = MISC + 1024; KVA = EXCH + 8192; KVS = 576
assert 3 * SLOT <= MISC and KVA + 4 * KVS <= 163840
HP = int(opt("hp", 129))
P_OFF = 9 << 20; FL_OFF = 10 << 20; S_OFF = (10 << 20) + (512 << 10); X_OFF = 11 << 20; ST_OFF = 12 << 20
FROW = 32 * FS; FH = FL_OFF; FO = FH + 22 * FROW; FK = FO + 22 * FROW
PSZ = 1152
LOG2E = 0x3fb8aa3b; NLOG2E = 0xbfb8aa3b; EPS = 0x358637bd
WSB = 16 << 20
K = NAME + "_kernel"
ORDER = [3 * p + fi for fi in range(3) for p in range(29) if 3 * p + fi < 86]
def ks0(j): return ORDER[2 * j]
for j in range(43): assert ORDER[2 * j + 1] - ORDER[2 * j] == (-83 if j == 14 else 3)
def pos(j):
    if j >= NA: j -= NA
    return 25 + j if j < 12 else j - 12

a = Asm(); MSIDE = False
header(a, ["; fused linear-attention + SwiGLU gated mix; generated by my own script",
           "; @launch grid=(256,1,1) block=(512,1,1) lds=163840"])
class VM:
    def __init__(self): self.n = 0
    def op(self, s): a(s); self.n += 1; return self.n
    def cnt(self, i): assert self.n - i < 64; return self.n - i
    def wait(self, i, extra=""): a(f"s_waitcnt vmcnt({self.cnt(i)}){extra}")
def stamp(i, det=False):
    if opt("s2") and MSIDE and (i in (1, 2, 3, 4, 5, 6)) != det: return
    if det and not opt("s2"): return
    if STAMP: a(("s_memrealtime" if opt("rt") else "s_memtime") + f" s[{80+2*i}:{81+2*i}]")
def dump_stamps():
    if not STAMP: return
    if opt("enc"):
        wg, i0, i1 = [int(x) for x in str(opt("enc")).split(":")]
        if wg >= 0: a(f"s_cmp_eq_u32 s2, {wg}\ns_cbranch_scc0 EN_d")
        a(f"s_cmp_eq_u32 s28, 0\ns_cbranch_scc0 EN_d\ns_waitcnt lgkmcnt(0)\ns_sub_u32 s30, s{80+2*i1}, s{80+2*i0}\ns_min_u32 s30, s30, 5000\ns_mul_i32 s30, s30, 10")
        a("EN_l:\ns_memrealtime s[32:33]\ns_waitcnt lgkmcnt(0)\ns_sub_u32 s32, s32, s100\ns_cmp_lt_u32 s32, s30\ns_cbranch_scc1 EN_l\nEN_d:")
        return
    a("s_waitcnt lgkmcnt(0)")
    a("s_memrealtime s[30:31]\ns_waitcnt lgkmcnt(0)")
    for i in range(16):
        if i < 11: a(f"v_mov_b32 v{i+32}, s{80+2*i}")
        elif i == 15: a("v_mov_b32 v47, s30")
        elif i == 14: a("v_mov_b32 v46, s27")
        elif i == 13: a("v_mov_b32 v45, s0")
        else: a(f"v_mov_b32 v{i+32}, 0")
    a(f"s_lshl_b32 s30, s2, 3\ns_add_u32 s30, s30, s28\ns_lshl_b32 s30, s30, 6\ns_add_u32 s30, s30, {ST_OFF}")
    a("v_mov_b32 v1, 0")
    for q in range(4): a(f"buffer_store_dwordx4 v[{32+4*q}:{35+4*q}], v1, s[44:47], s30 offen offset:{16*q}")
uid = 0
def poll(vt, voff, soff, imm=0, cnt="s67"):
    global uid; uid += 1
    a(f"s_mov_b32 {cnt}, 0\nPL{uid}:")
    a(f"buffer_load_dwordx2 v[{vt}:{vt+1}], {voff}, s[44:47], {soff} offen offset:{imm} sc1\ns_waitcnt vmcnt(0)")
    a(f"v_cmp_eq_u64 vcc, s[22:23], v[{vt}:{vt+1}]\ns_add_u32 {cnt}, {cnt}, 1\ns_nop 0\ns_cmp_eq_u64 vcc, -1\ns_cbranch_scc1 PD{uid}")
    if BO: a(f"s_sleep {BO}")
    a(f"s_cmp_lt_u32 {cnt}, {SPIN}\ns_cbranch_scc1 PL{uid}\nPD{uid}:")
def setflag(vt, vlane16, soff, imm=0, vm=None, init=True):
    if init: a(f"v_mov_b32 v{vt}, s22\nv_mov_b32 v{vt+1}, s23")
    a("s_mov_b64 exec, 1")
    s = f"buffer_store_dwordx2 v[{vt}:{vt+1}], {vlane16}, s[44:47], {soff} offen offset:{imm} sc1"
    if vm: vm.op(s)
    else: a(s)
    a("s_mov_b64 exec, -1")
def tag_load(): a(f"s_mov_b32 s67, {X_OFF}\ns_load_dwordx2 s[22:23], s[24:25], s67")
def tag_make(): a("s_add_u32 s22, s22, 0x7f4a7c15\ns_addc_u32 s23, s23, 0x9e3779b9")
def mapping():
    a("""s_and_b32 s30, s2, 1
s_lshr_b32 s31, s2, 3
s_bfe_u32 s52, s2, 0x20001
s_lshl_b32 s30, s30, 5
s_add_u32 s30, s30, s31
s_cmp_eq_u32 s52, 3
s_cselect_b32 s54, 52, 43
s_cselect_b32 s55, 5, 6
s_cselect_b32 s56, 55, 54
s_mul_i32 s26, s30, s54
s_lshr_b32 s26, s26, 8
s_mul_i32 s31, s26, s55
s_sub_u32 s27, s30, s31
s_sub_u32 s57, s30, s56
s_cmp_ge_u32 s57, 5
s_cselect_b32 s58, 10, 9
s_cselect_b32 s31, 5, 0
s_sub_u32 s59, s57, s31
s_and_b32 s60, s57, 1
s_add_u32 s60, s60, 9
s_lshr_b32 s61, s57, 1
s_cmp_eq_u32 s52, 3
s_cselect_b32 s58, s60, s58
s_cselect_b32 s59, 5, s59
s_cselect_b32 s61, s61, s52
s_cmp_lt_u32 s30, s56
s_cselect_b32 s26, s26, s58
s_cselect_b32 s27, s27, s59
s_cselect_b32 s52, s52, s61
s_lshl_b32 s52, s52, 1
s_add_u32 s31, s52, 6
s_cmp_lt_u32 s27, 2
s_cselect_b32 s31, 0, s31
s_add_u32 s27, s27, s52
s_add_u32 s27, s27, s31
s_min_u32 s27, s27, 23
s_mul_i32 s29, s26, 192""")
def pf_round(n, srdn, off):
    for i in range(n): a(f"s_buffer_load_dword s10, s[{srdn}:{srdn+3}], {off} offset:{64*i}")
def flagrow(dst, th, t1, t2):
    a(f"s_and_b32 {t1}, s2, 7\ns_lshl_b32 {t1}, {t1}, 3\ns_lshr_b32 {t2}, s2, 6\ns_lshl_b32 {t2}, {t2}, 1\ns_add_u32 {t1}, {t1}, {t2}\ns_add_u32 {t1}, {t1}, {th}")
    if dst: a(f"s_mul_i32 {t2}, {t1}, 86\ns_lshr_b32 {t2}, {t2}, 8\ns_mul_i32 {dst}, {t2}, {FROW}")
def pr(r): return f"v[{r}:{r+1}]"

a(".p2align 12")
kstart(a, K)
a("s_cmp_ge_u32 s2, 256\ns_cbranch_scc1 L_exit")
stamp(0)
a("v_lshrrev_b32 v1, 6, v0\ns_load_dwordx16 s[4:19], s[0:1], 0\nv_readfirstlane_b32 s28, v1\ns_load_dwordx2 s[20:21], s[0:1], 64\ns_load_dwordx2 s[24:25], s[0:1], 80")
if STAMP: a("s_memrealtime s[0:1]")
a("v_and_b32 v0, 63, v0\ns_cmp_ge_u32 s28, 4\ns_cbranch_scc0 M_start")
a("s_setprio 3")
mapping()
a("s_sub_u32 s52, s28, 4")
a("v_lshrrev_b32 v2, 3, v0\nv_and_b32 v3, 7, v0\nv_lshrrev_b32 v4, 4, v0\nv_lshlrev_b32 v31, 4, v0")
a("s_mul_i32 s54, s52, 48\ns_add_u32 s54, s54, s29\ns_lshl_b32 s54, s54, 10\ns_cmp_eq_u32 s27, 23\ns_cselect_b32 s54, 0x40000000, s54")
a("v_xor_b32 v5, v3, v4\nv_lshl_add_u32 v5, v5, 4, s54\nv_lshl_add_u32 v16, v2, 10, v5\nv_xor_b32 v7, 64, v16")
for i in range(1, 6): a(f"v_add_u32 v{16+i}, {i*8192}, v{16 if i%2==0 else 7}")
ROT = str(opt("rot", "c"))
a("s_mul_i32 s53, s52, 6144")
a({"0": "s_mov_b32 s54, 0",
   "a": "s_and_b32 s54, s26, 1\ns_lshl_b32 s54, s54, 1\ns_and_b32 s31, s2, 1\ns_add_u32 s54, s54, s31\ns_lshl_b32 s54, s54, 8",
   "b": "s_and_b32 s54, s26, 3\ns_lshl_b32 s54, s54, 8",
   "c": "s_and_b32 s54, s2, 1\ns_lshl_b32 s54, s54, 9",
   "d": "s_and_b32 s54, s26, 1\ns_lshl_b32 s54, s54, 9",
   "e": "s_and_b32 s54, s26, 3\ns_lshl_b32 s54, s54, 1\ns_and_b32 s31, s2, 1\ns_add_u32 s54, s54, s31\ns_lshl_b32 s54, s54, 7",
   "f": "s_add_u32 s54, s26, s27\ns_and_b32 s54, s54, 1\ns_lshl_b32 s54, s54, 1\ns_and_b32 s31, s2, 1\ns_add_u32 s54, s54, s31\ns_lshl_b32 s54, s54, 8"}[ROT])
a("s_mov_b32 s34, 0x200000\ns_mov_b32 s35, 0x00020000\ns_mov_b32 s39, s35\ns_mov_b32 s43, s35\ns_mov_b32 s51, s35\ns_mov_b32 s79, s35\ns_movk_i32 s78, 0x400")
a("v_mul_u32_u24 v12, 43, v0\nv_lshrrev_b32 v12, 8, v12\nv_mul_u32_u24 v13, 6, v12\nv_sub_u32 v13, v0, v13")
a("s_cmp_eq_u32 s52, 0\ns_cselect_b32 s63, 48, 43\ns_lshl_b32 s50, s63, 15\ns_lshl_b32 s3, s63, 12\ns_lshl_b32 s63, s63, 4\ns_mul_i32 s63, s63, s2")
a("v_mul_lo_u32 v12, v12, s3\nv_lshl_add_u32 v12, v13, 7, v12")
a("s_lshl_b32 s66, s2, 13\ns_lshl_b32 s31, s52, 11\ns_add_u32 s66, s66, s31")
a("s_cmp_lt_u32 s27, 8\ns_cbranch_scc1 L_qkv")
a("s_cmp_eq_u32 s27, 22\ns_cselect_b32 s31, 4, 12\ns_cmp_eq_u32 s27, 23\ns_cselect_b32 s31, 0, s31\nv_bfrev_b32 v11, 2")
for i in range(3):
    a(f"v_add_u32 v8, {64*i}, v0\nv_mul_u32_u24 v9, 43691, v8\nv_lshrrev_b32 v9, 19, v9\nv_mul_u32_u24 v10, 12, v9\nv_sub_u32 v10, v8, v10\nv_cmp_gt_u32 vcc, s31, v10")
    a(f"v_mul_u32_u24 v9, 2752, v9\nv_lshl_add_u32 v9, v10, 4, v9\nv_cndmask_b32 v{22+i}, v11, v9, vcc\nv_cndmask_b32 v{25+i}, v11, v9, vcc")
a("s_sub_u32 s55, s27, 8\ns_mul_i32 s55, s55, 192")
a(f"s_mul_i32 s67, s52, {16*2752}\ns_add_u32 s55, s55, s67\ns_mov_b32 s56, {64*2752}")
a(f"s_mul_i32 s67, s52, 3072\ns_add_u32 s57, s67, {XIMG}")
for i in range(1, 6): a(f"s_add_u32 s{57+i}, s57, {(i%3)*1024 + (W3OFF if i>=3 else 0)}")
a(f"s_mov_b32 s38, {512*2752}\ns_mov_b32 s30, {LOG2E}")
a("s_waitcnt lgkmcnt(0)")
a("s_mov_b32 s36, s12\ns_and_b32 s37, s13, 0xffff\ns_mov_b32 s40, s14\ns_and_b32 s41, s15, 0xffff")
a("s_branch L_go")
a("L_qkv:")
a("v_and_b32 v8, 1, v4\nv_lshlrev_b32 v8, 2, v8\nv_xor_b32 v8, v8, v3\nv_mul_u32_u24 v9, 3072, v2\nv_lshl_add_u32 v22, v8, 4, v9")
for i in range(1, 6): a(f"v_add_u32 v{22+i}, {(i//2)*1024 + (i%2)*8*3072}, v22")
a(f"s_lshl_b32 s55, s27, 7\ns_mul_i32 s67, s52, {16*3072}\ns_add_u32 s55, s55, s67\ns_mov_b32 s56, {64*3072}")
a(f"s_lshl_b32 s67, s52, 11\ns_add_u32 s57, s67, {XIMG}")
for i in range(1, 6): a(f"s_add_u32 s{57+i}, s57, {(i//2)*8192 + (i%2)*1024}")
a(f"s_mov_b32 s38, {512*3072}\ns_mov_b32 s30, {NLOG2E}")
a("s_waitcnt lgkmcnt(0)")
a("s_mov_b32 s36, s6\ns_and_b32 s37, s7, 0xffff\ns_mov_b32 s40, s6\ns_and_b32 s41, s7, 0xffff")
a("L_go:")
a("s_mov_b32 s42, s38\ns_mov_b32 s32, s4\ns_and_b32 s33, s5, 0xffff\ns_mov_b32 s76, s18\ns_and_b32 s77, s19, 0xffff")
a("s_cmp_eq_u32 s52, 0\ns_cselect_b32 s48, s6, s12\ns_cselect_b32 s49, s7, s13\ns_cmp_eq_u32 s52, 2\ns_cselect_b32 s48, s14, s48\ns_cselect_b32 s49, s15, s49\ns_and_b32 s49, s49, 0xffff\ns_mov_b32 s11, s63")
if ROT != "0": a("s_mov_b32 s19, s55\ns_lshr_b32 s31, s54, 7\ns_mul_i32 s31, s31, s56\ns_add_u32 s55, s55, s31")
stamp(1)
vm = VM()
def dma(q, c):
    sl = (c % 3) * SLOT
    if q < 6: a(f"s_add_u32 m0, s53, {sl + q*1024}\ns_nop 0"); return vm.op(f"buffer_load_dwordx4 v{16+q}, s[32:35], s54 offen{' nt' if c < XNT else ''} lds")
    i = q - 6
    a(f"s_add_u32 m0, s{57+i}, {sl}\ns_nop 0"); return vm.op(f"buffer_load_dwordx4 v{22+i}, s[{36 if i<3 else 40}:{39 if i<3 else 43}], s55 offen{' nt' if c < WNT else ''} lds")
def adv():
    a("s_add_u32 s54, s54, 128\ns_add_u32 s55, s55, s56")
    if ROT != "0": a("s_and_b32 s54, s54, 0x3ff\ns_cselect_b32 s55, s55, s19")
GR = 24 + 96
def w2touch(wo, w2):
    a("v_lshlrev_b32 v12, 7, v0")
    if wo: a("s_lshl_b32 s67, s2, 11\ns_mov_b64 exec, 0xffff\nbuffer_load_dword v14, v12, s[72:75], s67 offen")
    if w2: a("s_mul_i32 s67, s2, 5504\ns_mov_b32 exec_lo, -1\ns_movk_i32 exec_hi, 0x7ff\nbuffer_load_dword v14, v12, s[68:71], s67 offen")
    a("s_mov_b64 exec, -1")
def touches():
    a("s_cmp_eq_u32 s52, 3\ns_cbranch_scc1 L_vt3")
    if VT > V0:
        m = ((1 << (6 * VT)) - 1) & ~((1 << (6 * V0)) - 1)
        a(f"s_mov_b32 exec_lo, {m & 0xffffffff}\ns_mov_b32 exec_hi, {m >> 32}\nbuffer_load_dword v14, v12, s[48:51], s11 offen\ns_mov_b64 exec, -1")
    a("s_branch L_vt4\nL_vt3:")
    srd(a, 72, 8, 512*1024); srd(a, 68, 16, 1376*1024)
    w2touch(VWO, VW2 == "s")
    a("L_vt4:")
for q in range(21):
    if q == VPOS: touches()
    if q == XPOS:
        vm.op(f"buffer_load_dwordx4 v[{GR}:{GR+3}], v31, s[76:79], 0 offen"); vm.op(f"buffer_load_dwordx4 v[{GR+4}:{GR+7}], v31, s[32:35], s66 offen")
        gl = vm.op(f"buffer_load_dwordx4 v[{GR+8}:{GR+11}], v31, s[32:35], s66 offen offset:1024")
    if q == 2: tag_load()
    if q == 12: srd(a, 44, 24, WSB); srd(a, 72, 8, 512*1024); srd(a, 68, 16, 1376*1024); adv()
    if q < 12: last = dma(q, 0)
    elif q < 20: dma(q - 12, 1)
def gate_dots():
    a("v_mov_b32 v8, 0\nv_mov_b32 v9, 0")
    for d in range(4): a(f"v_dot2c_f32_bf16 v8, v{GR+4+d}, v{GR+d}\nv_dot2c_f32_bf16 v9, v{GR+8+d}, v{GR+d}")
    a(f"s_lshr_b32 s66, s66, 7\ns_add_u32 s66, s66, {S_OFF - 63*16}\ns_nop 0")
    for ctl in ["quad_perm:[1,0,3,2] row_mask:0xf", "quad_perm:[2,3,0,1] row_mask:0xf", "row_half_mirror row_mask:0xf", "row_mirror row_mask:0xf", "row_bcast:15 row_mask:0xa", "row_bcast:31 row_mask:0xc"]:
        a(f"v_add_f32_dpp v8, v8, v8 {ctl} bank_mask:0xf\nv_add_f32_dpp v9, v9, v9 {ctl} bank_mask:0xf\ns_nop 0")
    a("v_mov_b32 v10, s22\nv_mov_b32 v11, s23")
a("s_bfe_u32 s31, s2, 0x30003\ns_lshr_b32 s76, s52, 1\ns_and_b32 s77, s52, 1")
a("v_and_b32 v13, 1, v4\nv_lshlrev_b32 v13, 2, v13\nv_xor_b32 v13, v13, v3\nv_lshlrev_b32 v13, 4, v13\nv_lshl_add_u32 v28, v2, 10, v13")
a(f"s_lshl_b32 s31, s31, 7\ns_lshl_b32 s67, s77, 13\ns_add_u32 s31, s31, s67\ns_mul_i32 s67, s76, {3*16384}\ns_add_u32 s64, s31, s67\ns_mul_i32 s67, s76, {83*16384}\ns_sub_u32 s65, s31, s67\ns_lshl_b32 s67, s76, 18\ns_add_u32 s78, s31, s67")
a("s_lshl_b32 s63, s52, 10\nv_add_u32 v29, s63, v31\nv_add_u32 v30, 0x10000, v29\nv_add_u32 v15, 0x20000, v29")
flagrow("s79", "s77", "s31", "s67")
a(f"s_add_u32 s79, s79, {FH}")
a("s_waitcnt lgkmcnt(0)"); tag_make()
if XPOS < 6: vm.wait(gl); gate_dots()
a("s_mul_i32 s76, s2, 5504\ns_lshl_b32 s77, s2, 11\ns_setprio " + str(opt("lprio", 0)))
class W2Plan:
    def __init__(self): self.w2 = 0; self.wo = 32 if VWO else 0
    def one(self, n):
        if self.wo < 32:
            n = min(n, 32 - self.wo); a(f"s_add_u32 s67, s77, {64*self.wo}"); pf_round(n, 72, "s67"); self.wo += n
        elif self.w2 < 86:
            n = min(n, 86 - self.w2); a(f"s_add_u32 s67, s76, {64*self.w2}"); pf_round(n, 68, "s67"); self.w2 += n
    def round(self, kind):
        global uid
        if kind == "-": return
        uid += 1
        if kind == "o":
            a(f"s_lshl_b32 s67, s52, 9\ns_add_u32 s67, s67, s77"); pf_round(8, 72, "s67"); self.wo = 32
        elif kind == "w":
            n = min(NS, -(-(86 - self.w2) // 4))
            a(f"s_mul_i32 s67, s52, {64*n}\ns_add_u32 s67, s67, s76\ns_add_u32 s67, s67, {64*self.w2}"); pf_round(n, 68, "s67"); self.w2 += 4 * n
        else:
            a(f"s_cmp_eq_u32 s52, 3\ns_cbranch_scc1 PA{uid}")
            a(f"s_mul_i32 s67, s3, {int(kind)}\ns_add_u32 s67, s67, s11"); pf_round(12, 48, "s67")
            a(f"s_branch PB{uid}\nPA{uid}:"); self.one(12); a(f"PB{uid}:")
plan = W2Plan()
plan.round(LP[0])
OV = 32
def wsrc(j):
    if j < 43: return ("s65" if j == 14 else "s64"), ks0(j) * 16384, 68
    return "s78", (j - 43) * 16384, 72
ovq = list(range(43, 59)) + list(range(NA, 43))
def ovload():
    j = ovq.pop(0); r = OV + 4 * (j - NA); b, o, s_ = wsrc(j)
    if opt("noov"): return
    a(f"s_add_u32 s67, {b}, {o}"); return vm.op(f"buffer_load_dwordx4 v[{r}:{r+3}], v28, s[{s_}:{s_+3}], s67 offen")
def wdma(j, th=None):
    if opt("now"): return
    b, o, s_ = wsrc(j)
    a(f"s_add_u32 m0, s63, {pos(j)*4096}\ns_add_u32 s67, {b}, {o}")
    if th is not None: a(f"s_waitcnt vmcnt({th})")
    return vm.op(f"buffer_load_dwordx4 v28, s[{s_}:{s_+3}], s67 offen lds")
assert GR >= OV + 4 * NOV
for c in range(6):
    vm.wait(last); a("s_barrier")
    for q in range(8, 12): last = dma(q, c + 1)
    if c == (0 if XPOS <= 12 else 1):
        if XPOS >= 6: vm.wait(gl); gate_dots()
        a("s_brev_b64 exec, 1"); vm.op("buffer_store_dwordx4 v[8:11], v31, s[44:47], s66 offen sc1"); a("s_mov_b64 exec, -1")
    if VW2 == str(c):
        a("s_cmp_eq_u32 s52, 3\ns_cbranch_scc0 L_vw"); w2touch(not VWO, True); a("L_vw:")
    if C3 == str(c):
        a("s_cmp_ge_u32 s52, 2\ns_cbranch_scc0 L_c3\nv_lshlrev_b32 v12, 10, v0\ns_lshr_b32 s67, s2, 3\ns_cmp_eq_u32 s52, 2\ns_cbranch_scc0 L_c3b")
        a(f"s_mul_i32 s67, s67, {43*1024}\ns_movk_i32 exec_hi, 0x7ff\nbuffer_load_dword v14, v12, s[68:71], s67 offen offset:384\ns_branch L_c3c\nL_c3b:")
        a("s_lshl_b32 s67, s67, 14\ns_mov_b64 exec, 0xffff\nbuffer_load_dword v14, v12, s[72:75], s67 offen offset:384\nL_c3c:\ns_mov_b64 exec, -1\nL_c3:")
    if c == 5:
        a(f"s_mul_i32 s66, s52, 24\ns_lshr_b32 s67, s29, 1\ns_add_u32 s66, s66, s67\nv_min_u32 v13, 23, v0\nv_lshlrev_b32 v12, 3, v13\nv_add_u32 v13, s66, v13\nv_min_u32 v13, 0x3ff, v13\nv_lshlrev_b32 v13, 4, v13")
        a(f"s_mul_i32 s67, s52, 192\ns_add_u32 s67, s67, {G_LDS}\nv_add_u32 v12, s67, v12\ns_mov_b32 s66, {S_OFF}")
        last = vm.op("buffer_load_dwordx4 v[8:11], v13, s[44:47], s66 offen sc1")
    plan.round(LP[c + 1])
    adv()
    k_ = KO[c]
    for q in range(8):
        dma(q, c + 2)
        if q >= 8 - k_: ovload()
print("w2 lines", plan.w2, "wo lines", plan.wo, file=sys.stderr)
vm.wait(last); a("s_barrier")
for q in range(8, 12): last = dma(q, 7)
wq = [("d", j) for j in range(12)] + [("o", 0)] * len(ovq) + [("d", j) for j in range(12, 24)]
if opt("ovlast"): wq = [("d", j) for j in range(24)] + [("o", 0)] * len(ovq)
def wnext(th=None):
    k_, j = wq.pop(0)
    if k_ == "d": wdma(j, th)
    else:
        if th is not None: a(f"s_waitcnt vmcnt({th})")
        ovload()
N6 = int(opt("n6", 10)); N7 = int(opt("n7", 20)); TH2 = int(opt("th2", 8))
for n in range(4): wnext()
a("s_mov_b32 s31, 0\nL_gw:\nv_cmp_eq_u64 vcc, s[22:23], v[10:11]\ns_add_u32 s31, s31, 1\ns_nop 0\ns_cmp_eq_u64 vcc, -1\ns_cbranch_scc1 L_gd")
a(f"buffer_load_dwordx4 v[8:11], v13, s[44:47], s66 offen sc1\ns_cmp_lt_u32 s31, {SPIN}\ns_waitcnt vmcnt(0)\ns_cbranch_scc1 L_gw\nL_gd:")
a("v_mul_f32 v8, s30, v8\nv_mul_f32 v9, s30, v9\nv_exp_f32 v8, v8\nv_exp_f32 v9, v9\ns_mov_b32 s67, 0x7f000000\nv_add_f32 v8, 1.0, v8\nv_add_f32 v9, 1.0, v9\nv_min_f32 v8, s67, v8\nv_min_f32 v9, s67, v9")
a("ds_write_b64 v12, v[8:9]")
assert 4 <= N6 <= 12
for n in range(4, N6): wnext()
a(f"v_min_u32 v12, 28, v0\nv_lshlrev_b32 v12, 6, v12\nv_min_u32 v13, 15, v0\nv_lshlrev_b32 v13, 6, v13\nv_add_u32 v13, {FO-FH}, v13\nv_mov_b32 v14, {XF_LDS+16}")
vm.wait(last, " lgkmcnt(0)")
stamp(2)
a("s_barrier")
for n in range(N7): wnext(TH2)
stamp(3)
a(f"s_mov_b32 s31, 0\nL_rw:\nds_read_b32 v8, v14\ns_add_u32 s31, s31, 1\ns_waitcnt lgkmcnt(0)\nv_cmp_le_u32 vcc, 4, v8\ns_cmp_lt_u32 s31, {SPIN}\ns_cbranch_scc0 L_rd\ns_cbranch_vccnz L_rd\ns_sleep 1\ns_branch L_rw\nL_rd:")
while wq: wnext(TH)
for j in range(24, NA): wdma(j, TH)
a("s_waitcnt vmcnt(0)")
stamp(4)
J1 = int(opt("j1", 9)) if LV1 else 15 - HD; J2 = int(opt("j2", 23)) if LV1 else 30 - HD; J3 = min(44 - HD, NA - 2); B1 = J1 + 2
B2 = min(NOV, B1 + int(opt("b2", 6))); J4 = NA + B2 - 2 if B2 < NOV else -1
assert J2 + 2 >= NOV and J2 < J3
def lpoll(voff, imm, between=None):
    global uid; uid += 1; u = uid
    if between is None:
        a(f"s_cmp_lt_u32 s52, 2\ns_cbranch_scc0 NP{u}"); poll(8, voff, "s79", imm); a(f"NP{u}:"); return
    a(f"s_cmp_lt_u32 s52, 2\ns_cbranch_scc0 NQ{u}\nbuffer_load_dwordx2 v[8:9], {voff}, s[44:47], s79 offen offset:{imm} sc1\nNQ{u}:")
    between()
    a(f"s_cbranch_scc0 NP{u}\ns_waitcnt vmcnt(0)\nv_cmp_eq_u64 vcc, s[22:23], v[8:9]\ns_nop 1\ns_cmp_eq_u64 vcc, -1\ns_cbranch_scc1 NP{u}")
    poll(8, voff, "s79", imm); a(f"NP{u}:")
def ovwrite(n0, n1):
    for n in range(n0, n1):
        p = pos(n); a(f"ds_write_b128 v{(29, 30, 15)[p // 16]}, v[{OV+4*n}:{OV+3+4*n}] offset:{(p % 16) * 4096}" + ("\ns_waitcnt lgkmcnt(0)" if opt("pw") else ""))
if not opt("nolq"):
    a(f"s_cmp_lt_u32 s27, 8\ns_cbranch_scc0 L_qd\ns_mov_b32 s31, 0\nL_qw:\nds_read_b32 v8, v14\ns_add_u32 s31, s31, 1\ns_waitcnt lgkmcnt(0)\nv_cmp_lt_u32 vcc, 4, v8\ns_cmp_lt_u32 s31, {SPIN}\ns_cbranch_scc0 L_qd\ns_cbranch_vccnz L_qd\ns_sleep 2\ns_branch L_qw\nL_qd:")
lpoll("v12", 16 if LV1 else 0)
stamp(5)
a("s_barrier")
if not LV1: lpoll("v12", 8)
a("s_barrier")
if LV1: ovwrite(0, B1)
else: lpoll("v12", 16, lambda: ovwrite(0, B1))
stamp(6)
a("s_waitcnt lgkmcnt(0)\ns_barrier")
lpoll("v13", 0, lambda: ovwrite(B1, B2))
stamp(7)
a("s_waitcnt lgkmcnt(0)\ns_barrier")
if J4 >= 0: ovwrite(B2, NOV); a("s_waitcnt lgkmcnt(0)\ns_barrier")
a(f"s_lshl_b32 s67, s2, 2\ns_add_u32 s67, s67, s52\ns_cmp_eq_u32 s67, 0\ns_cbranch_scc0 L_nox\ns_mov_b32 s67, {X_OFF}")
setflag(8, "v31", "s67")
a("L_nox:")
PIT = 272; PART = 10 * 4096
def fin_setup():
    srd(a, 48, 20, 2048*1024)
    a(f"v_lshrrev_b32 v8, 3, v0\ns_lshl_b32 s56, s28, 3\nv_add_u32 v8, s56, v8\nv_and_b32 v9, 7, v0\nv_mul_u32_u24 v10, {PIT}, v8\nv_lshl_add_u32 v10, v9, 5, v10")
    a("v_lshlrev_b32 v8, 10, v8\nv_lshl_add_u32 v8, v9, 4, v8")
    a("s_and_b32 s56, s2, 7\ns_lshl_b32 s56, s56, 2\ns_lshr_b32 s57, s2, 6\ns_add_u32 s56, s56, s57\ns_lshl_b32 s56, s56, 16\ns_bfe_u32 s57, s2, 0x30003\ns_lshl_b32 s57, s57, 7\ns_add_u32 s56, s56, s57")
fin_setup()
a("s_branch L_fin")
a("L_exit:\ns_endpgm")

FR = 144; VX = 192; VW = 196; VGA = 197; VMK = 199; TT = 200; VL = 228; VG = 229; PQ = 232
WA = (221, 223, 225)
def acc(ti, fi): return 16 * (3 * fi + ti)
def fx(st, ti): return FR + 24 * st + 4 * ti
def fw(st, fi): return FR + 24 * st + 12 + 4 * fi
a("M_start:"); MSIDE = True
a(f"v_lshlrev_b32 v{VL}, 4, v0")
a(f"s_getpc_b64 s[48:49]\nM_pc:\ns_sub_u32 s48, s48, M_pc-{K}\ns_subb_u32 s49, s49, 0\ns_and_b32 s49, s49, 0xffff\ns_mov_b32 s50, L_codeend-{K}\ns_mov_b32 s51, 0x00020000")
a("s_lshr_b32 s30, s2, 3\ns_lshl_b32 s30, s30, 2\ns_add_u32 s30, s30, s28\ns_mul_i32 s30, s30, 192\ns_waitcnt lgkmcnt(0)")
tag_load()
if not opt("nocpf"): pf_round(3, 48, "s30")
srd(a, 44, 24, WSB)
mapping()
a("s_lshr_b32 s52, s28, 1\ns_and_b32 s53, s28, 1")
a("v_and_b32 v2, 31, v0\nv_lshrrev_b32 v3, 5, v0\nv_bfe_u32 v4, v0, 1, 3")
a("s_mul_i32 s54, s52, 96\nv_add_u32 v5, s54, v2\nv_lshlrev_b32 v6, 7, v5")
for s in range(4): a(f"v_add_u32 v7, {2*s}, v3\nv_xor_b32 v7, v7, v4\nv_lshl_add_u32 v{VX+s}, v7, 4, v6")
a(f"v_lshlrev_b32 v{VGA}, 2, v5\nv_add_u32 v{VGA}, {G_LDS}, v{VGA}")
a("v_bfe_u32 v8, v0, 4, 1\nv_bfe_u32 v9, v0, 2, 2\nv_and_b32 v10, 3, v0\nv_lshl_add_u32 v11, v3, 3, v9")
a(f"s_mov_b32 s63, 0\ns_mov_b32 s66, 0\ns_mov_b32 s65, {SLOT}")
a("v_lshl_add_u32 v14, v3, 2, v9\nv_lshrrev_b32 v12, 1, v9\nv_lshlrev_b32 v12, 6, v12\nv_lshl_add_u32 v12, v14, 7, v12\nv_lshl_add_u32 v12, v8, 5, v12\nv_lshl_add_u32 v12, v10, 3, v12")
a(f"s_lshl_b32 s57, s52, 11\nv_add_u32 v{WA[0]}, s57, v12\nv_xor_b32 v{WA[0]+1}, 64, v{WA[0]}")
for g in (1, 2): a(f"v_add_u32 v{WA[g]}, {g*0x10000}, v{WA[0]}\nv_add_u32 v{WA[g]+1}, {g*0x10000}, v{WA[0]+1}")
flagrow(None, "s53", "s60", "s62")
a(f"s_mul_i32 s60, s60, {HP*1024}\ns_mul_i32 s57, s52, 3072\ns_add_u32 s76, s60, s57\ns_mul_i32 s57, s52, {83*1024}\ns_sub_u32 s77, s60, s57")
a(f"s_lshl_b32 s57, s52, 14\ns_add_u32 s78, s60, s57\ns_add_u32 s78, s78, {96*1024}")
a(f"s_lshl_b32 s56, s53, 5\nv_add_u32 v12, s56, v2\nv_mul_u32_u24 v12, {PIT}, v12\nv_lshl_add_u32 v12, v3, 4, v12\ns_mul_i32 s56, s52, {64*PIT}\ns_add_u32 s56, s56, {PART}\nv_add_u32 v227, s56, v12")
a(f"s_lshl_b32 s59, s26, 1\ns_add_u32 s59, s59, s52\ns_mul_i32 s56, s59, {3*HP}\ns_mul_i32 s59, s59, {FROW}")
def m_ready():
    a(f"v_mov_b32 v12, {XF_LDS+16}\nv_mov_b32 v13, 0\nds_write_b32 v12, v13")
    for r in range(0, 144, 2): a(f"v_mov_b64 v[{r}:{r+1}], 0")
    a("s_waitcnt lgkmcnt(0)")
    tag_make()
    a("v_mov_b32 v208, s22\nv_mov_b32 v209, s23")
    stamp(1)
a("s_cmp_lt_u32 s27, 8\ns_cbranch_scc1 M_qkv")

SIG = str(opt("sig", "d"))
def signal(): a(f"v_mov_b32 v{VX}, {XF_LDS+16}\nv_mov_b32 v{VX+1}, 1\ns_mov_b64 exec, 1\nds_add_u32 v{VX}, v{VX+1}\ns_mov_b64 exec, -1")
def kloop(kind):
    def wimm(s, fi, rd):
        return s * 3072 + rd * 768 + 32 * fi if kind == "ffn" else fi * 8192 + s * 2048 + rd * 512
    def reads(st, s):
        r = [f"ds_read_b128 v[{fx(st,i)}:{fx(st,i)+3}], v{VX+s} offset:{4096*i}" for i in range(3)]
        w = [[f"ds_read_b64_tr_b16 v[{fw(st,i)+2*rd}:{fw(st,i)+2*rd+1}], v{VW} offset:{wimm(s,i,rd)}" for rd in range(2)] for i in range(3)]
        return [r[0], w[0][0], w[0][1], r[1], r[2], w[1][0], w[1][1], w[2][0], w[2][1]]
    def mf(st, ti, fi):
        d = acc(ti, fi); A, B = fw(st, fi), fx(st, ti)
        if kind == "qkv" and fi > 0: A, B = B, A
        return f"v_mfma_f32_32x32x16_bf16 v[{d}:{d+15}], v[{A}:{A+3}], v[{B}:{B+3}], v[{d}:{d+15}]"
    a("s_setprio " + str(opt("mprio", 2)))
    a("s_barrier")
    stamp(2)
    for x in reads(0, 0): a(x)
    a(f"M_loop_{kind}:")
    for s in range(4):
        st = s & 1
        rd = reads(st ^ 1, (s + 1) & 3)
        a("s_waitcnt lgkmcnt(0)")
        n = 0
        for fi in range(3):
            for ti in range(3):
                a(mf(st, ti, fi))
                if n == 5 and s == 2:
                    a(f"s_cmp_eq_u32 s63, {2*SLOT}\ns_cselect_b32 s64, {(-2*SLOT) & 0xffffffff}, s65\ns_add_u32 s63, s63, s64")
                if n == 6 and s == 2:
                    a(f"v_add_u32 v{VX}, s64, v{VX}\nv_add_u32 v{VW}, s64, v{VW}\nv_add_u32 v{VX+1}, s64, v{VX+1}")
                if n == 7 and s == 2:
                    a(f"v_add_u32 v{VX+2}, s64, v{VX+2}\nv_add_u32 v{VX+3}, s64, v{VX+3}\ns_add_u32 s66, s66, 1\ns_cmp_lt_u32 s66, 8")
                if n == 0 and s == 3: a(f"s_cbranch_scc0 M_nb_{kind}\ns_barrier\nM_nb_{kind}:")
                if n < 5:
                    for x in rd[2*n:2*n+2]: a(x)
                n += 1
    a(f"s_cbranch_scc1 M_loop_{kind}")
    stamp(3)
    if kind == "qkv" or SIG == "k": signal()
    for i in range(3):
        if kind == "ffn": a(f"ds_read2_b32 v[{TT+2*i}:{TT+2*i+1}], v{VGA} offset0:{32*i} offset1:{32*i}")
        else: a(f"ds_read_b32 v{VG+i}, v{VGA} offset:{128*i}")

HB = 72; WF = 48
assert HB + 4 * HD <= 120

a(f"v_mul_u32_u24 v12, {W3OFF}, v8\nv_mul_u32_u24 v13, 192, v11\nv_add_u32 v12, v12, v13\ns_mul_i32 s54, s53, 96\ns_add_u32 s54, s54, {XIMG}\nv_lshl_add_u32 v12, v10, 3, v12\nv_add_u32 v{VW}, s54, v12")
a("s_sub_u32 s60, s27, 8\ns_lshl_b32 s60, s60, 1\ns_add_u32 s60, s60, s53\ns_mul_i32 s57, s60, 3\ns_add_u32 s56, s56, s57\ns_lshl_b32 s68, s56, 10")
a(f"s_add_u32 s69, s68, {HP*1024}\ns_add_u32 s70, s68, {2*HP*1024}")
a(f"s_lshl_b32 s60, s60, 6\ns_add_u32 s71, s59, s60\ns_add_u32 s71, s71, {FH}")
a(f"s_mov_b32 s30, {NLOG2E}\ns_mov_b32 s31, {NLOG2E}")
m_ready()
kloop("ffn")
a("s_waitcnt lgkmcnt(0)")
vm = VM(); sid = []; ops = []
def stored():
    vm.n += 1; sid.append(vm.n)
    if SIG == str(len(sid)): signal()
    if len(sid) == T1 and not LV1: vm.wait(sid[2]); setflag(208, f"v{VL}", "s71", 0, vm, False)
for fi in range(3):
    for ti in range(3):
        d = acc(ti, fi); t = FR + 12 * ((3 * fi + ti) & 3); g = pr(TT + 2 * ti)
        for j in range(0, 8, 2): ops.append(f"v_pk_mul_f32 {pr(t+j)}, {pr(d+j)}, s[30:31]")
        for j in range(8): ops.append(f"v_exp_f32 v{t+j}, v{t+j}")
        for j in range(0, 8, 2): ops.append(f"v_pk_fma_f32 {pr(t+j)}, {pr(t+j)}, {g}, {g}")
        for j in range(0, 8, 2): ops.append(f"v_pk_mul_f32 {pr(d+j)}, {pr(d+j)}, {pr(d+8+j)}")
        for j in range(8): ops.append(f"v_rcp_f32 v{t+j}, v{t+j}")
        for j in range(0, 8, 2): ops.append(f"v_pk_mul_f32 {pr(d+j)}, {pr(d+j)}, {pr(t+j)}")
        for j in range(4): ops.append(f"v_cvt_pk_bf16_f32 v{t+8+j}, v{d+2*j}, v{d+2*j+1}")
        if not opt("nost"): ops.append((f"buffer_store_dwordx4 v[{t+8}:{t+11}], v{VL}, s[44:47], s{68+ti} offen offset:{1024*fi} {HST}", stored))
print("ffn epilogue model cycles", schedule(ops, a, window=int(opt("win", 40))), file=sys.stderr)
stamp(4)
if SIG == "e": signal()
if not LV1: vm.wait(sid[5]); setflag(208, f"v{VL}", "s71", 8, vm, False)
if sid: vm.wait(sid[8])
setflag(208, f"v{VL}", "s71", 16, vm, False)
if SIG == "d": signal()
stamp(5)
a("s_branch M_s2")

a("M_qkv:")
a(f"v_lshrrev_b32 v13, 1, v9\nv_xor_b32 v13, s53, v13\nv_lshlrev_b32 v13, 6, v13\nv_lshl_add_u32 v13, v11, 7, v13\nv_xor_b32 v12, s52, v8\nv_lshl_add_u32 v13, v12, 5, v13\nv_lshl_add_u32 v13, v10, 3, v13\nv_add_u32 v{VW}, {XIMG}, v13")
a(f"s_lshl_b32 s54, s28, 2\ns_add_u32 s54, s54, {XF_LDS}\nv_mov_b32 v218, s54\nv_mov_b32 v12, 0\nds_write_b32 v218, v12\nv_xor_b32 v219, 8, v218")
a("s_lshl_b32 s57, s27, 2\ns_lshl_b32 s58, s53, 1\ns_add_u32 s60, s57, s58")
a("s_add_u32 s56, s56, s60\ns_add_u32 s56, s56, 96\ns_add_u32 s57, s56, s52\ns_lshl_b32 s36, s57, 10\ns_sub_u32 s57, s56, s52\ns_add_u32 s57, s57, 1\ns_lshl_b32 s37, s57, 10")
for ti in (1, 2): a(f"s_add_u32 s{36+2*ti}, s36, {ti*HP*1024}\ns_add_u32 s{37+2*ti}, s37, {ti*HP*1024}")
a(f"s_lshl_b32 s57, s60, 5\ns_add_u32 s71, s59, s57\ns_add_u32 s71, s71, {FO}")
a("s_add_u32 s60, s60, s52")
a(f"s_mul_i32 s72, s60, {11*PSZ}\ns_add_u32 s72, s72, {P_OFF}\ns_mul_i32 s73, s26, {PSZ}\ns_add_u32 s73, s73, s72")
a("s_cmp_eq_u32 s26, 10\ns_cselect_b32 s75, s52, 0\ns_cmp_eq_u32 s75, 1\ns_cselect_b32 s75, 0, 0x3f803f80")
a("s_mov_b32 vcc_lo, 0xffff\ns_mov_b32 vcc_hi, 0xffff")
a("v_and_b32 v12, 15, v0\nv_lshlrev_b32 v13, 4, v12\nv_lshl_add_u32 v13, v3, 8, v13\nv_lshlrev_b32 v14, 4, v3")
a("v_add_u32 v15, 1024, v14\nv_cndmask_b32 v210, v15, v13, vcc\nv_add_u32 v15, 32, v15\nv_add_u32 v16, 512, v13\nv_cndmask_b32 v211, v15, v16, vcc")
a(f"s_lshl_b32 s54, s28, 11\ns_add_u32 s54, s54, {EXCH}\nv_add_u32 v212, s54, v{VL}\ns_xor_b32 s55, s28, 2\ns_lshl_b32 s54, s55, 11\ns_add_u32 s54, s54, {EXCH}\nv_xor_b32 v15, 0x100, v{VL}\nv_add_u32 v213, s54, v15")
a(f"s_mul_i32 s54, s28, {KVS}\ns_add_u32 s54, s54, {KVA}\ns_mul_i32 s55, s55, {KVS}\ns_add_u32 s55, s55, {KVA}")
a("v_lshlrev_b32 v15, 4, v2\nv_lshl_add_u32 v15, v3, 3, v15\nv_add_u32 v214, s54, v15")
a("v_bfe_u32 v15, v0, 2, 1\nv_lshlrev_b32 v15, 4, v15\nv_and_b32 v16, 8, v0\nv_add_u32 v15, v15, v16\nv_lshl_add_u32 v15, v10, 1, v15\nv_add_u32 v215, s54, v15")
a("v_add_u32 v14, 512, v14\nv_cndmask_b32 v15, v14, v13, vcc\nv_add_u32 v216, s54, v15\nv_cndmask_b32 v15, v13, v14, vcc\nv_add_u32 v217, s55, v15")
a(f"v_lshrrev_b32 v15, 4, v0\nv_mul_u32_u24 v15, {PSZ}, v15\nv_lshl_add_u32 v220, v12, 2, v15\nv_mov_b32 v{VMK}, 0xffffff00\nv_lshlrev_b32 v198, 3, v10")
a(f"s_mov_b32 s30, {LOG2E}\ns_mov_b32 s31, {LOG2E}\ns_mov_b32 s3, {EPS}")
m_ready()
for i in range(4): a(f"s_bfe_u32 s{32+i}, s22, {0x80000 + 8*i}")
a("v_bfe_u32 v198, v208, v198, 8")
kloop("qkv")
CK = FR; CZ = FR + 16; ONE = FR + 32; TB = FR + 36; ONE2 = FR + 44
for j in range(4): a(f"v_mov_b32 v{ONE+j}, 0x3f803f80\nv_mov_b32 v{ONE2+j}, s75")
a("s_waitcnt lgkmcnt(0)")
def phih(d, dst, h):
    b = d + 8 * h; t = (TT, TB)[h]; o = []
    for j in range(0, 8, 2): o.append(f"v_pk_mul_f32 {pr(t+j)}, {pr(b+j)}, s[30:31]")
    for j in range(8): o.append(f"v_exp_f32 v{t+j}, v{t+j} clamp")
    for j in range(8): o.append(f"v_max_f32 v{b+j}, s3, v{b+j}")
    for j in range(0, 8, 2): o.append(f"v_pk_add_f32 {pr(b+j)}, {pr(b+j)}, {pr(t+j)}")
    for j in range(4): o.append(f"v_cvt_pk_bf16_f32 v{dst+4*h+j}, v{b+2*j}, v{b+2*j+1}")
    return o
ops = []
for ti in range(3):
    dk = acc(ti, 1); dv = acc(ti, 2); one = ONE2 if ti else ONE
    for h in range(2):
        ops += phih(dk, dk, h)
        for j in range(4 * h, 4 * h + 4): ops.append(f"v_cvt_pk_bf16_f32 v{dv+j}, v{dv+2*j}, v{dv+2*j+1}")
        c0, c1 = (f"v[{CK}:{CK+15}]", f"v[{CZ}:{CZ+15}]") if ti or h else ("0", "0")
        ops.append(f"v_mfma_f32_32x32x16_bf16 v[{CZ}:{CZ+15}], v[{dk+4*h}:{dk+4*h+3}], v[{one}:{one+3}], {c1}")
        ops.append(f"v_mfma_f32_32x32x16_bf16 v[{CK}:{CK+15}], v[{dk+4*h}:{dk+4*h+3}], v[{dv+4*h}:{dv+4*h+3}], {c0}")
print("k epilogue model cycles", schedule(ops, a, window=30), file=sys.stderr)
KEEP = 48; SEND = 56; RCV = 64
schedule(phih(acc(0, 0), PQ, 0), a)
for j in range(8): a(f"v_cndmask_b32 v{SEND+j}, v{CK+8+j}, v{CZ+8+j}, vcc")
a(f"ds_write_b128 v212, v[{SEND}:{SEND+3}]\nds_write_b128 v212, v[{SEND+4}:{SEND+7}] offset:1024\nv_mov_b32 v72, 1")
for j in range(8): a(f"v_cndmask_b32 v{KEEP+j}, v{CZ+j}, v{CK+j}, vcc")
a("s_mov_b32 s67, 0\ns_waitcnt lgkmcnt(0)\nds_write_b32 v218, v72")
a("M_xw:")
a(f"ds_read_b32 v73, v219\nds_read_b128 v[{RCV}:{RCV+3}], v213\nds_read_b128 v[{RCV+4}:{RCV+7}], v213 offset:1024\ns_add_u32 s67, s67, 1\ns_waitcnt lgkmcnt(0)")
a(f"v_cmp_ne_u32 vcc, 0, v73\ns_cmp_lt_u32 s67, {SPIN}\ns_cbranch_scc0 M_xd\ns_cbranch_vccz M_xw\nM_xd:")
for j in range(0, 8, 2): a(f"v_pk_add_f32 {pr(KEEP+j)}, {pr(KEEP+j)}, {pr(RCV+j)}")
for j in range(8): a(f"v_and_or_b32 v{KEEP+j}, v{KEEP+j}, v{VMK}, s{32 + (j & 3)}")
a("s_mov_b32 exec_lo, 0x1ffff\ns_mov_b32 exec_hi, 0x1ffff")
for q in range(2): a(f"buffer_store_dwordx4 v[{KEEP+4*q}:{KEEP+4*q+3}], v{210+q}, s[44:47], s73 offen sc1")
a("s_mov_b64 exec, -1")
stamp(4)
schedule(phih(acc(0, 0), PQ, 1) + sum((phih(acc(ti, 0), PQ + 8 * ti, h) for ti in (1, 2) for h in range(2)), []), a, window=30)
GK = 120; GZ = 164
a(f"s_mov_b32 s67, 0\ns_add_u32 s57, s72, {4*PSZ}\ns_add_u32 s58, s72, {8*PSZ}\ns_branch M_g0\nM_gw:\n" + (f"s_sleep {opt('gbo')}\n" if opt("gbo") else "") + "M_g0:")
a(f"v_mov_b32 v{GZ+2}, v198\ns_add_u32 s67, s67, 1\ns_cmp_lt_u32 s67, {SPIN}\ns_cselect_b32 s62, 0xff, 0")
a(f"buffer_load_dword v{GZ}, v220, s[44:47], s72 offen offset:1024 sc1\nbuffer_load_dword v{GZ+1}, v220, s[44:47], s57 offen offset:1024 sc1")
a(f"s_mov_b32 exec_hi, 0xffff\nbuffer_load_dword v{GZ+2}, v220, s[44:47], s58 offen offset:1024 sc1\ns_mov_b32 exec_hi, -1")
GZO = not opt("nogzo")
def kvloads():
    for p in range(11):
        a(f"buffer_load_dwordx4 v[{GK+4*p}:{GK+4*p+3}], v{VL}, s[44:47], {('s72', 's57', 's58')[p//4]} offen offset:{(p%4)*PSZ} sc1")
if not GZO: kvloads()
a(f"s_waitcnt vmcnt({0 if GZO else 11})")
for i in range(3): a(f"v_xor_b32 v{GZ+i}, v198, v{GZ+i}")
a(f"v_or3_b32 v1, v{GZ}, v{GZ+1}, v{GZ+2}\nv_and_b32 v1, s62, v1\nv_cmp_ne_u32 vcc, 0, v1\nv_add_f32 v{GZ}, v{GZ}, v{GZ+1}\nv_add_f32 v{GZ}, v{GZ}, v{GZ+2}\ns_cbranch_vccnz M_gw")
if GZO: kvloads()
if not opt("nolq"): signal()
stamp(5)
a(f"v_mov_b32 v{GZ+1}, v{GZ}\ns_nop 1\nv_permlane16_swap_b32 v{GZ}, v{GZ+1}\nv_add_f32 v{GZ}, v{GZ}, v{GZ+1}\nv_mov_b32 v{GZ+1}, v{GZ}\ns_nop 1\nv_permlane32_swap_b32 v{GZ}, v{GZ+1}\nv_add_f32 v{GZ}, v{GZ}, v{GZ+1}")
a(f"v_cvt_pk_bf16_f32 v{GZ}, v{GZ}, v{GZ}\nds_write_b16 v215, v{GZ} offset:512")
for p in range(11):
    a(f"s_waitcnt vmcnt({10-p})")
    r = GK + 4 * p
    for j in range(4): a(f"v_xor_b32 v{r+j}, s{32+j}, v{r+j}")
    a(f"v_or3_b32 v1, v{r}, v{r+1}, v1\nv_or3_b32 v1, v{r+2}, v{r+3}, v1")
    if p:
        for j in range(0, 4, 2): a(f"v_pk_add_f32 {pr(GK+j)}, {pr(GK+j)}, {pr(r+j)}")
a(f"v_and_b32 v1, s62, v1\nv_cmp_ne_u32 vcc, 0, v1\nv_cvt_pk_bf16_f32 v{GK}, v{GK}, v{GK+1}\nv_cvt_pk_bf16_f32 v{GK+1}, v{GK+2}, v{GK+3}\ns_cbranch_vccnz M_gw")
a(f"ds_write_b64 v214, {pr(GK)}")
a("v_mov_b32 v1, 2\ns_mov_b32 s67, 0\ns_waitcnt lgkmcnt(0)\nds_write_b32 v218, v1")
a("M_ow:")
a(f"ds_read_b32 v1, v219\nds_read_b128 v[120:123], v216\nds_read_b128 v[124:127], v217\ns_add_u32 s67, s67, 1\ns_waitcnt lgkmcnt(0)")
a(f"v_cmp_eq_u32 vcc, 2, v1\ns_cmp_lt_u32 s67, {SPIN}\ns_cbranch_scc0 M_od\ns_cbranch_vccz M_ow\nM_od:")
OD = 0; ops = []
for ti in range(3):
    for h in range(2):
        d = OD + 32 * ti + 16 * h
        ops.append(f"v_mfma_f32_32x32x16_bf16 v[{d}:{d+15}], v[{120+4*h}:{123+4*h}], v[{PQ+8*ti+4*h}:{PQ+8*ti+4*h+3}], 0")
for ti in range(3):
    for h in range(2):
        d = OD + 32 * ti + 16 * h; num = d + 8 * h; den = d + 8 - 8 * h; o = 128 + 8 * ti + 4 * h
        ops += [f"v_add_f32 v{den}, s3, v{den}", f"v_mul_f32 v{den}, v{den}, v{VG+ti}", f"v_rcp_f32 v{den}, v{den}"]
        for j in range(0, 8, 2): ops.append(f"v_pk_mul_f32 {pr(num+j)}, {pr(num+j)}, {pr(den)} op_sel_hi:[1,0]")
        for j in range(4): ops.append(f"v_cvt_pk_bf16_f32 v{o+j}, v{num+2*j}, v{num+2*j+1}")
        ops.append(f"buffer_store_dwordx4 v[{o}:{o+3}], v{VL}, s[44:47], s{36+2*ti+h} offen sc1")
print("o block model cycles", schedule(ops, a, window=40), file=sys.stderr)

a("M_s2:")
stamp(6)
def hload(j):
    r = HB + 4 * (j % HD); imm = 0
    if j < 43: a(f"s_add_u32 s61, {'s77' if j == 14 else 's76'}, {ks0(j)*1024}")
    else:
        jj = j - 43; imm = (jj % 4) * 1024
        if jj % 4 == 0: a(f"s_add_u32 s61, s78, {(jj//4)*4096}")
    a(f"buffer_load_dwordx4 v[{r}:{r+3}], v{VL}, s[44:47], s61 offen offset:{imm} sc1")
def wreads(j):
    p = pos(j); r = []
    for c in range(2):
        for rd in range(2):
            d = WF + 8 * (j % 3) + 4 * c + 2 * rd
            r.append(f"ds_read_b64_tr_b16 v[{d}:{d+1}], v{WA[p//16]+c} offset:{(p%16)*4096 + rd*1024}")
    return r
a("s_barrier")
stamp(7)
for j in range(HD - 1): hload(j)
for x in wreads(0) + wreads(1): a(x)
issued = HD - 1
S2O = str(opt("s2o", "c"))
for j in range(59):
    bar = j in (J1, J2, J3, J4)
    h = HB + 4 * (j % HD); w = WF + 8 * (j % 3)
    c0, c1 = ("v[16:31]", "v[32:47]") if j else ("0", "0")
    m0 = f"v_mfma_f32_32x32x16_bf16 v[16:31], v[{w}:{w+3}], v[{h}:{h+3}], {c0}"
    m1 = f"v_mfma_f32_32x32x16_bf16 v[32:47], v[{w+4}:{w+7}], v[{h}:{h+3}], {c1}"
    rd = wreads(j + 2) if j + 2 < 59 else []
    a(f"s_waitcnt vmcnt({issued - 1 - j}) lgkmcnt({0 if bar or j == 58 else 4})")
    if j == 0:
        a("s_cmp_lt_u32 s27, 8\ns_cbranch_scc0 M_noflag"); setflag(208, f"v{VL}", "s71", init=False); a("s_nop 2\nM_noflag:")
    a(m0)
    if j == 0: stamp(1, True)
    if bar:
        if j != J4: stamp({J1: 2, J2: 4, J3: 6}[j], True)
        a("s_barrier")
        if j in (J1, J2): stamp({J1: 3, J2: 5}[j], True)
        if j == J3: stamp(8)
    if S2O == "b":
        if issued < 59: hload(issued); issued += 1
        a(m1)
        for x in rd: a(x)
    elif S2O == "c":
        for x in rd: a(x)
        a(m1)
        if issued < 59: hload(issued); issued += 1
    else:
        for x in rd[:2]: a(x)
        if issued < 59: hload(issued); issued += 1
        a(m1)
        for x in rd[2:]: a(x)
stamp(9)
a(f"v_lshrrev_b32 v0, 4, v{VL}")
fin_setup()
for c in range(2):
    for q in range(4): a(f"ds_write_b128 v227, v[{16+16*c+4*q}:{19+16*c+4*q}] offset:{c*128 + q*32}")
a("s_waitcnt lgkmcnt(0)")
a("L_fin:\ns_barrier")
a(f"ds_read_b128 v[16:19], v10 offset:{PART}\nds_read_b128 v[24:27], v10 offset:{PART+64*PIT}\nds_read_b128 v[20:23], v10 offset:{PART+16}\nds_read_b128 v[28:31], v10 offset:{PART+64*PIT+16}")
a("s_waitcnt lgkmcnt(0)")
for j in range(0, 8, 2): a(f"v_pk_add_f32 {pr(16+j)}, {pr(16+j)}, {pr(24+j)}")
for j in range(4): a(f"v_cvt_pk_bf16_f32 v{16+j}, v{16+2*j}, v{17+2*j}")
a("buffer_store_dwordx4 v[16:19], v8, s[48:51], s56 offen " + str(opt("outflag", "")).replace("_", " "))
stamp(10)
dump_stamps()
a("s_endpgm\nL_codeend:")
rodata(a)
kdesc(a, K, 256, 256)
open(OUT, "w").write(a.text())
```

```python
import re
def regs(tok):
    tok = tok.strip()
    m = re.fullmatch(r"-?v\[(\d+):(\d+)\]", tok)
    if m: return list(range(int(m.group(1)), int(m.group(2)) + 1))
    m = re.fullmatch(r"-?v(\d+)", tok)
    if m: return [int(m.group(1))]
    return []
TR = ("v_exp_f32", "v_rcp_f32", "v_log_f32", "v_rsq_f32")
class Op:
    def __init__(self, text, idx, after=None):
        self.text = text; self.idx = idx; self.after = after
        name, rest = text.split(None, 1)
        toks = [t.split()[0] for t in rest.split(",")]
        self.name = name
        if name.startswith(("buffer_store", "ds_write")):
            self.w = []; self.r = sum((regs(t) for t in toks), []); self.kind = "s"
        else:
            self.w = regs(toks[0]); self.r = sum((regs(t) for t in toks[1:]), [])
            if name.startswith(("v_fmac", "v_permlane")): self.r += self.w
            if name.startswith("v_permlane"): self.w = self.w + regs(toks[1])
            self.kind = "m" if name.startswith("v_mfma") else "t" if name.startswith(TR) else "p"
        self.srcc = regs(toks[3]) if self.kind == "m" else []
        self.cost = 8 if name.startswith("v_permlane") else {"m": 8, "t": 8, "p": 4, "s": 4}[self.kind]
def need(p, c, passes=8):
    raw = set(p.w) & set(c.r); waw = set(p.w) & set(c.w); war = set(p.r) & set(c.w)
    if not (raw or waw or war):
        return 0 if (p.kind == "s" and c.kind == "s") else None
    n = 0
    if p.kind == "m" and (raw or waw):
        if c.kind == "m" and c.srcc == p.w and not (set(p.w) & (set(c.r) - set(c.srcc))): n = 0
        else: n = 8 if "16x16" in p.name else 12
    elif raw:
        if c.kind == "m" or c.name.startswith("v_permlane") or "dpp" in c.name: n = 2
        elif p.kind == "t": n = 1
    if war and p.kind == "s": n = max(n, 2)
    if war and p.kind == "m" and set(p.srcc) & set(c.w) and c.kind != "m": n = max(n, 3 if "16x16" in p.name else 7)
    return n
PKGAP = 0
def schedule(texts, emit, window=80, soft=1):
    ops = [Op(t, i) if isinstance(t, str) else Op(t[0], i, t[1]) for i, t in enumerate(texts)]
    deps = []
    for i, c in enumerate(ops):
        d = []
        for p in ops[:i]:
            n = need(p, c)
            if n is not None: d.append((p.idx, n, bool(set(p.w) & set(c.r))))
        deps.append(d)
    at = {}; slot = 0; clk = 0; mfree = 0; lastkind = "p"; todo = list(range(len(ops)))
    while todo:
        def ready(i, extra):
            for p, n, raw in deps[i]:
                if p not in at or slot - at[p] - 1 < max(n, extra if raw and ops[p].kind != "m" else 0): return False
            return True
        pick = None
        for extra in (soft, 0):
            cand = [i for i in todo[:window] if ready(i, extra) and (ops[i].kind != "m" or clk >= mfree)]
            if clk < mfree + PKGAP:
                c2 = [i for i in cand if not ops[i].name.startswith("v_pk_")]
                if c2: cand = c2
            if cand:
                ms = [i for i in cand if ops[i].kind in "ms"]
                want = [i for i in cand if (ops[i].kind == "t") != (lastkind == "t")]
                pick = ms[0] if ms else want[0] if want else cand[0]
                break
        if pick is None:
            cand = [i for i in todo[:window] if ready(i, 0)]
            if cand: pick = cand[0]
        if pick is None:
            emit("s_nop 0"); slot += 1; clk += 4; continue
        o = ops[pick]
        if o.kind == "m": clk = max(clk, mfree); mfree = clk + (16 if "16x16" in o.name else 32)
        emit(o.text); at[pick] = slot; slot += 1; clk += o.cost; lastkind = o.kind; todo.remove(pick)
        if o.after: o.after()
    return clk
```

```python
import sys
from asmlib import *
import sched
from sched import schedule
def opt(name, default=None):
    for x in sys.argv[1:]:
        if x == "--" + name: return True
        if x.startswith("--" + name + "="): return x.split("=", 1)[1]
    return default
STAMP = opt("stamp", False)
OUT = [x for x in sys.argv[1:] if not x.startswith("--")][0]
FS = 64
HD = int(opt("hd", 9))
TH = int(opt("th", 7))
V0 = int(opt("v0", 4)); VPOS = int(opt("vpos", 20))
WNT = int(opt("wnt", 0)); XNT = int(opt("xnt", 0))
VW2 = str(opt("vw2", "-"))
C3 = str(opt("c3", "4"))
N8 = int(opt("n8", 37))
VT = int(opt("vt", 0))
VWO = int(opt("vwo", 0))
XPOS = int(opt("xpos", 0))
LP = str(opt("lp", "-o-ww--"))
NS = int(opt("ns", 11))
KO = [int(x, 16) for x in str(opt("ko", "000000"))]
T1 = int(opt("t1", 7))
QW = int(opt("qw", 2))
BO = int(opt("bo", 0)); LV1 = not opt("lv3"); HST = str(opt("hst", "sc1")).replace("none", "").replace("_", " ")
sched.PKGAP = int(opt("pkgap", 32))
WARM = int(opt("warm", 768))
TLB = opt("tlb")
PRE = int(opt("pre", 0))
SPIN = 1 << 16

SLOT = 49152; XIMG = 24576; W3OFF = 12288
NA = 39; NOV = 59 - NA; G1 = 15; G2 = 27
assert sum(KO) <= NOV
MISC = 2 * NA * 2048
G_LDS = MISC; XF_LDS = G_LDS + 768
assert 3 * SLOT <= MISC and XF_LDS + 64 <= 163840
HP = int(opt("hp", 129))
P_OFF = 9 << 20; FL_OFF = 10 << 20; S_OFF = (10 << 20) + (512 << 10); X_OFF = 11 << 20; ST_OFF = 12 << 20
FROW = 32 * FS; FH = FL_OFF; FO = FH + 22 * FROW; FK = FO + 22 * FROW
PSZ = 1152
LOG2E = 0x3fb8aa3b; NLOG2E = 0xbfb8aa3b; EPS = 0x358637bd
WSB = 16 << 20
K = NAME + "_kernel"
ORDER = [3 * p + fi for fi in range(3) for p in range(29) if 3 * p + fi < 86]
def ks0(j): return ORDER[2 * j]
for j in range(43): assert ORDER[2 * j + 1] - ORDER[2 * j] == (-83 if j == 14 else 3)
def pos(j):
    if j >= NA: j -= NA
    return 24 + j if j < G1 else j - G1

a = Asm(); MSIDE = False
header(a, ["; fused linear-attention + SwiGLU gated mix; generated by my own script",
           "; @launch grid=(256,1,1) block=(512,1,1) lds=163840"])
class VM:
    def __init__(self): self.n = 0
    def op(self, s): a(s); self.n += 1; return self.n
    def cnt(self, i): assert self.n - i < 64; return self.n - i
    def wait(self, i, extra=""): a(f"s_waitcnt vmcnt({self.cnt(i)}){extra}")
def stamp(i, det=False):
    if opt("kq") and MSIDE:
        if det == "kq" or (i in (3, 4, 10) and not det): a(f"s_memtime s[{80+2*i}:{81+2*i}]")
        return
    if det == "kq": return
    if opt("s2") and MSIDE and (i in (1, 2, 3, 4, 5, 6)) != det: return
    if det and not opt("s2"): return
    if STAMP: a(("s_memrealtime" if opt("rt") else "s_memtime") + f" s[{80+2*i}:{81+2*i}]")
def dump_stamps():
    if not STAMP: return
    if opt("enc"):
        wg, i0, i1 = [int(x) for x in str(opt("enc")).split(":")]
        if wg >= 0: a(f"s_cmp_eq_u32 s2, {wg}\ns_cbranch_scc0 EN_d")
        a(f"s_cmp_eq_u32 s28, 0\ns_cbranch_scc0 EN_d\ns_waitcnt lgkmcnt(0)\ns_sub_u32 s30, s{80+2*i1}, s{80+2*i0}\ns_min_u32 s30, s30, 5000\ns_mul_i32 s30, s30, 10")
        a("EN_l:\ns_memrealtime s[32:33]\ns_waitcnt lgkmcnt(0)\ns_sub_u32 s32, s32, s100\ns_cmp_lt_u32 s32, s30\ns_cbranch_scc1 EN_l\nEN_d:")
        return
    a("s_waitcnt lgkmcnt(0)")
    a("s_memrealtime s[30:31]\ns_waitcnt lgkmcnt(0)")
    for i in range(16):
        if i < 11: a(f"v_mov_b32 v{i+32}, s{80+2*i}")
        elif i == 15: a("v_mov_b32 v47, s30")
        elif i == 14: a("v_mov_b32 v46, s27")
        elif i == 13: a("v_mov_b32 v45, s0")
        else: a(f"v_mov_b32 v{i+32}, 0")
    a(f"s_lshl_b32 s30, s2, 3\ns_add_u32 s30, s30, s28\ns_lshl_b32 s30, s30, 6\ns_add_u32 s30, s30, {ST_OFF}")
    a("v_mov_b32 v1, 0")
    for q in range(4): a(f"buffer_store_dwordx4 v[{32+4*q}:{35+4*q}], v1, s[44:47], s30 offen offset:{16*q}")
uid = 0
def poll(vt, voff, soff, imm=0, cnt="s67"):
    global uid; uid += 1
    a(f"s_mov_b32 {cnt}, 0\nPL{uid}:")
    a(f"buffer_load_dwordx2 v[{vt}:{vt+1}], {voff}, s[44:47], {soff} offen offset:{imm} sc1\ns_waitcnt vmcnt(0)")
    a(f"v_cmp_eq_u64 vcc, s[22:23], v[{vt}:{vt+1}]\ns_add_u32 {cnt}, {cnt}, 1\ns_nop 0\ns_cmp_eq_u64 vcc, -1\ns_cbranch_scc1 PD{uid}")
    if BO: a(f"s_sleep {BO}")
    a(f"s_cmp_lt_u32 {cnt}, {SPIN}\ns_cbranch_scc1 PL{uid}\nPD{uid}:")
def setflag(vt, vlane16, soff, imm=0, vm=None, init=True):
    if init: a(f"v_mov_b32 v{vt}, s22\nv_mov_b32 v{vt+1}, s23")
    a("s_mov_b64 exec, 1")
    s = f"buffer_store_dwordx2 v[{vt}:{vt+1}], {vlane16}, s[44:47], {soff} offen offset:{imm} sc1"
    if vm: vm.op(s)
    else: a(s)
    a("s_mov_b64 exec, -1")
def tag_load(): a(f"s_mov_b32 s67, {X_OFF}\ns_load_dwordx2 s[22:23], s[24:25], s67")
def tag_make(): a("s_add_u32 s22, s22, 0x7f4a7c15\ns_addc_u32 s23, s23, 0x9e3779b9")
def mapping():
    a("""s_and_b32 s30, s2, 1
s_lshr_b32 s31, s2, 3
s_bfe_u32 s52, s2, 0x20001
s_lshl_b32 s30, s30, 5
s_add_u32 s30, s30, s31
s_cmp_eq_u32 s52, 3
s_cselect_b32 s54, 52, 43
s_cselect_b32 s55, 5, 6
s_cselect_b32 s56, 55, 54
s_mul_i32 s26, s30, s54
s_lshr_b32 s26, s26, 8
s_mul_i32 s31, s26, s55
s_sub_u32 s27, s30, s31
s_sub_u32 s57, s30, s56
s_cmp_ge_u32 s57, 5
s_cselect_b32 s58, 10, 9
s_cselect_b32 s31, 5, 0
s_sub_u32 s59, s57, s31
s_and_b32 s60, s57, 1
s_add_u32 s60, s60, 9
s_lshr_b32 s61, s57, 1
s_cmp_eq_u32 s52, 3
s_cselect_b32 s58, s60, s58
s_cselect_b32 s59, 5, s59
s_cselect_b32 s61, s61, s52
s_cmp_lt_u32 s30, s56
s_cselect_b32 s26, s26, s58
s_cselect_b32 s27, s27, s59
s_cselect_b32 s52, s52, s61
s_lshl_b32 s52, s52, 1
s_add_u32 s31, s52, 6
s_cmp_lt_u32 s27, 2
s_cselect_b32 s31, 0, s31
s_add_u32 s27, s27, s52
s_add_u32 s27, s27, s31
s_min_u32 s27, s27, 23
s_mul_i32 s29, s26, 192""")
def pf_round(n, srdn, off):
    for i in range(n): a(f"s_buffer_load_dword s10, s[{srdn}:{srdn+3}], {off} offset:{64*i}")
def flagrow(dst, th, t1, t2):
    a(f"s_and_b32 {t1}, s2, 7\ns_lshl_b32 {t1}, {t1}, 3\ns_lshr_b32 {t2}, s2, 6\ns_lshl_b32 {t2}, {t2}, 1\ns_add_u32 {t1}, {t1}, {t2}\ns_add_u32 {t1}, {t1}, {th}")
    if dst: a(f"s_mul_i32 {t2}, {t1}, 86\ns_lshr_b32 {t2}, {t2}, 8\ns_mul_i32 {dst}, {t2}, {FROW}")
def pr(r): return f"v[{r}:{r+1}]"

a(".p2align 12")
kstart(a, K)
a("s_cmp_ge_u32 s2, 256\ns_cbranch_scc1 L_exit")
stamp(0)
a("v_lshrrev_b32 v1, 6, v0\ns_load_dwordx16 s[4:19], s[0:1], 0\nv_readfirstlane_b32 s28, v1\ns_load_dwordx2 s[20:21], s[0:1], 64\ns_load_dwordx2 s[24:25], s[0:1], 80")
if STAMP: a("s_memrealtime s[0:1]")
a("v_and_b32 v0, 63, v0\nv_lshlrev_b32 v228, 4, v0\ns_cmp_ge_u32 s28, 4\ns_cbranch_scc1 L_start")
a(f"s_getpc_b64 s[48:49]\nM_pc:\ns_and_b32 s49, s49, 0xffff\ns_mov_b32 s50, L_codeend-M_pc\ns_mov_b32 s51, 0x00020000")
a("s_lshr_b32 s30, s2, 3\ns_lshl_b32 s30, s30, 2\ns_add_u32 s30, s30, s28\ns_mul_i32 s30, s30, 192")
if not opt("nocpf"):
    for i in range(3): a(f"s_buffer_load_dword s3, s[48:51], s30 offset:{64*i}")
a("s_branch M_start\nL_start:")
a("s_setprio 3")
mapping()
a("s_sub_u32 s52, s28, 4")
a("v_lshrrev_b32 v2, 3, v0\nv_and_b32 v3, 7, v0\nv_lshrrev_b32 v4, 4, v0\nv_lshlrev_b32 v31, 4, v0")
a("s_mul_i32 s54, s52, 48\ns_add_u32 s54, s54, s29\ns_lshl_b32 s54, s54, 10\ns_cmp_eq_u32 s27, 23\ns_cselect_b32 s54, 0x40000000, s54")
a("v_xor_b32 v5, v3, v4\nv_lshl_add_u32 v5, v5, 4, s54\nv_lshl_add_u32 v16, v2, 10, v5\nv_xor_b32 v7, 64, v16")
for i in range(1, 6): a(f"v_add_u32 v{16+i}, {i*8192}, v{16 if i%2==0 else 7}")
ROT = str(opt("rot", "a"))
a("s_mul_i32 s53, s52, 6144")
a({"0": "s_mov_b32 s54, 0",
   "a": "s_and_b32 s54, s26, 1\ns_lshl_b32 s54, s54, 1\ns_and_b32 s31, s2, 1\ns_add_u32 s54, s54, s31\ns_lshl_b32 s54, s54, 8",
   "b": "s_and_b32 s54, s26, 3\ns_lshl_b32 s54, s54, 8",
   "c": "s_and_b32 s54, s2, 1\ns_lshl_b32 s54, s54, 9",
   "d": "s_and_b32 s54, s26, 1\ns_lshl_b32 s54, s54, 9",
   "e": "s_and_b32 s54, s26, 3\ns_lshl_b32 s54, s54, 1\ns_and_b32 s31, s2, 1\ns_add_u32 s54, s54, s31\ns_lshl_b32 s54, s54, 7",
   "f": "s_add_u32 s54, s26, s27\ns_and_b32 s54, s54, 1\ns_lshl_b32 s54, s54, 1\ns_and_b32 s31, s2, 1\ns_add_u32 s54, s54, s31\ns_lshl_b32 s54, s54, 8"}[ROT])
a("s_mov_b32 s34, 0x200000\ns_mov_b32 s35, 0x00020000\ns_mov_b32 s39, s35\ns_mov_b32 s43, s35\ns_mov_b32 s51, s35\ns_mov_b32 s79, s35\ns_movk_i32 s78, 0x400")
a("v_mul_u32_u24 v12, 43, v0\nv_lshrrev_b32 v12, 8, v12\nv_mul_u32_u24 v13, 6, v12\nv_sub_u32 v13, v0, v13")
a("s_cmp_eq_u32 s52, 0\ns_cselect_b32 s63, 48, 43\ns_lshl_b32 s50, s63, 15\ns_lshl_b32 s3, s63, 12\ns_lshl_b32 s63, s63, 4\ns_mul_i32 s63, s63, s2")
a("v_mul_lo_u32 v12, v12, s3\nv_lshl_add_u32 v12, v13, 7, v12")
a("s_lshl_b32 s66, s2, 13\ns_lshl_b32 s31, s52, 11\ns_add_u32 s66, s66, s31")
a("s_cmp_lt_u32 s27, 8\ns_cbranch_scc1 L_qkv")
a("s_cmp_eq_u32 s27, 22\ns_cselect_b32 s31, 4, 12\ns_cmp_eq_u32 s27, 23\ns_cselect_b32 s31, 0, s31\nv_bfrev_b32 v11, 2")
for i in range(3):
    a(f"v_add_u32 v8, {64*i}, v0\nv_mul_u32_u24 v9, 43691, v8\nv_lshrrev_b32 v9, 19, v9\nv_mul_u32_u24 v10, 12, v9\nv_sub_u32 v10, v8, v10\nv_cmp_gt_u32 vcc, s31, v10")
    a(f"v_lshrrev_b32 v8, 2, v9\nv_and_b32 v8, 2, v8\nv_xor_b32 v10, v10, v8\nv_mul_u32_u24 v9, 2752, v9\nv_lshl_add_u32 v9, v10, 4, v9\nv_cndmask_b32 v{22+i}, v11, v9, vcc\nv_cndmask_b32 v{25+i}, v11, v9, vcc")
a("s_sub_u32 s55, s27, 8\ns_mul_i32 s55, s55, 192")
a(f"s_mul_i32 s67, s52, {16*2752}\ns_add_u32 s55, s55, s67\ns_mov_b32 s56, {64*2752}")
a(f"s_mul_i32 s67, s52, 3072\ns_add_u32 s57, s67, {XIMG}")
for i in range(1, 6): a(f"s_add_u32 s{57+i}, s57, {(i%3)*1024 + (W3OFF if i>=3 else 0)}")
a(f"s_mov_b32 s38, {512*2752}\ns_mov_b32 s30, {LOG2E}")
a("s_waitcnt lgkmcnt(0)")
a("s_mov_b32 s36, s12\ns_and_b32 s37, s13, 0xffff\ns_mov_b32 s40, s14\ns_and_b32 s41, s15, 0xffff")
a("s_branch L_go")
a("L_qkv:")
a("v_and_b32 v8, 1, v4\nv_lshlrev_b32 v8, 2, v8\nv_xor_b32 v8, v8, v3\nv_mul_u32_u24 v9, 3072, v2\nv_lshl_add_u32 v22, v8, 4, v9")
a("v_xor_b32 v8, 32, v22")
for i in range(1, 6): a(f"v_add_u32 v{22+i}, {(i//2)*1024 + (i%2)*8*3072}, v{8 if i%2 else 22}")
a(f"s_lshl_b32 s55, s27, 7\ns_mul_i32 s67, s52, {16*3072}\ns_add_u32 s55, s55, s67\ns_mov_b32 s56, {64*3072}")
a(f"s_lshl_b32 s67, s52, 11\ns_add_u32 s57, s67, {XIMG}")
for i in range(1, 6): a(f"s_add_u32 s{57+i}, s57, {(i//2)*8192 + (i%2)*1024}")
a(f"s_mov_b32 s38, {512*3072}\ns_mov_b32 s30, {NLOG2E}")
a("s_waitcnt lgkmcnt(0)")
a("s_mov_b32 s36, s6\ns_and_b32 s37, s7, 0xffff\ns_mov_b32 s40, s6\ns_and_b32 s41, s7, 0xffff")
a("L_go:")
a("s_mov_b32 s42, s38\ns_mov_b32 s32, s4\ns_and_b32 s33, s5, 0xffff\ns_mov_b32 s76, s18\ns_and_b32 s77, s19, 0xffff")
a("s_cmp_eq_u32 s52, 0\ns_cselect_b32 s48, s6, s12\ns_cselect_b32 s49, s7, s13\ns_cmp_eq_u32 s52, 2\ns_cselect_b32 s48, s14, s48\ns_cselect_b32 s49, s15, s49\ns_and_b32 s49, s49, 0xffff\ns_mov_b32 s11, s63")
if ROT != "0": a("s_mov_b32 s19, s55\ns_lshr_b32 s31, s54, 7\ns_mul_i32 s31, s31, s56\ns_add_u32 s55, s55, s31")
stamp(1)
vm = VM()
def dma(q, c):
    sl = (c % 3) * SLOT
    if q < 6: a(f"s_add_u32 m0, s53, {sl + q*1024}\ns_nop 0"); return vm.op(f"buffer_load_dwordx4 v{16+q}, s[32:35], s54 offen{' nt' if c < XNT else ''} lds")
    i = q - 6
    a(f"s_add_u32 m0, s{57+i}, {sl}\ns_nop 0"); return vm.op(f"buffer_load_dwordx4 v{22+i}, s[{36 if i<3 else 40}:{39 if i<3 else 43}], s55 offen{' nt' if c < WNT else ''} lds")
def adv():
    a("s_add_u32 s54, s54, 128\ns_add_u32 s55, s55, s56")
    if ROT != "0": a("s_and_b32 s54, s54, 0x3ff\ns_cselect_b32 s55, s55, s19")
GR = 24 + 96
def w2touch(wo, w2):
    a("v_lshlrev_b32 v12, 7, v0")
    if wo: a("s_lshl_b32 s67, s2, 11\ns_mov_b64 exec, 0xffff\nbuffer_load_dword v14, v12, s[72:75], s67 offen")
    if w2: a("s_mul_i32 s67, s2, 5504\ns_mov_b32 exec_lo, -1\ns_movk_i32 exec_hi, 0x7ff\nbuffer_load_dword v14, v12, s[68:71], s67 offen")
    a("s_mov_b64 exec, -1")
def touches():
    a("s_cmp_eq_u32 s52, 3\ns_cbranch_scc1 L_vt3")
    if VT > V0:
        m = ((1 << (6 * VT)) - 1) & ~((1 << (6 * V0)) - 1)
        a(f"s_mov_b32 exec_lo, {m & 0xffffffff}\ns_mov_b32 exec_hi, {m >> 32}\nbuffer_load_dword v14, v12, s[48:51], s11 offen\ns_mov_b64 exec, -1")
    a("s_branch L_vt4\nL_vt3:")
    srd(a, 72, 8, 512*1024); srd(a, 68, 16, 1376*1024)
    w2touch(VWO, VW2 == "s")
    a("L_vt4:")
for q in range(21):
    if q == VPOS: touches()
    if q == XPOS:
        vm.op(f"buffer_load_dwordx4 v[{GR}:{GR+3}], v31, s[76:79], 0 offen"); vm.op(f"buffer_load_dwordx4 v[{GR+4}:{GR+7}], v31, s[32:35], s66 offen")
        gl = vm.op(f"buffer_load_dwordx4 v[{GR+8}:{GR+11}], v31, s[32:35], s66 offen offset:1024")
    if q == 2: tag_load()
    if q == 12: srd(a, 44, 24, WSB); srd(a, 72, 8, 512*1024); srd(a, 68, 16, 1376*1024); adv()
    if q < 12: last = dma(q, 0)
    elif q < 20: dma(q - 12, 1)
def gate_dots():
    a("v_mov_b32 v8, 0\nv_mov_b32 v9, 0")
    for d in range(4): a(f"v_dot2c_f32_bf16 v8, v{GR+4+d}, v{GR+d}\nv_dot2c_f32_bf16 v9, v{GR+8+d}, v{GR+d}")
    a(f"s_lshr_b32 s66, s66, 7\ns_add_u32 s66, s66, {S_OFF - 63*16}\ns_nop 0")
    for ctl in ["quad_perm:[1,0,3,2] row_mask:0xf", "quad_perm:[2,3,0,1] row_mask:0xf", "row_half_mirror row_mask:0xf", "row_mirror row_mask:0xf", "row_bcast:15 row_mask:0xa", "row_bcast:31 row_mask:0xc"]:
        a(f"v_add_f32_dpp v8, v8, v8 {ctl} bank_mask:0xf\nv_add_f32_dpp v9, v9, v9 {ctl} bank_mask:0xf\ns_nop 0")
    a("v_mov_b32 v10, s22\nv_mov_b32 v11, s23")
a("s_bfe_u32 s31, s2, 0x30003\ns_lshr_b32 s76, s52, 1\ns_and_b32 s77, s52, 1")
a("v_and_b32 v13, 1, v4\nv_lshlrev_b32 v13, 2, v13\nv_xor_b32 v13, v13, v3\nv_lshlrev_b32 v13, 4, v13\nv_lshl_add_u32 v28, v2, 10, v13")
a(f"s_lshl_b32 s31, s31, 7\ns_lshl_b32 s67, s77, 13\ns_add_u32 s31, s31, s67\ns_mul_i32 s67, s76, {3*16384}\ns_add_u32 s64, s31, s67\ns_mul_i32 s67, s76, {83*16384}\ns_sub_u32 s65, s31, s67\ns_lshl_b32 s67, s76, 18\ns_add_u32 s78, s31, s67")
a("s_lshl_b32 s63, s52, 10\nv_add_u32 v29, s63, v31\nv_add_u32 v30, 0x10000, v29\nv_add_u32 v15, 0x20000, v29")
flagrow("s79", "s77", "s31", "s67")
a(f"s_lshr_b32 s67, s67, 1\ns_mul_i32 s18, s67, {FROW}\ns_add_u32 s18, s18, {FO}\ns_add_u32 s79, s79, {FH}")
a("s_waitcnt lgkmcnt(0)"); tag_make()
if XPOS < 6: vm.wait(gl); gate_dots()
a("s_mul_i32 s76, s2, 5504\ns_lshl_b32 s77, s2, 11\ns_setprio " + str(opt("lprio", 0)))
class W2Plan:
    def __init__(self): self.w2 = 0; self.wo = 32 if VWO else 0
    def one(self, n):
        if self.wo < 32:
            n = min(n, 32 - self.wo); a(f"s_add_u32 s67, s77, {64*self.wo}"); pf_round(n, 72, "s67"); self.wo += n
        elif self.w2 < 86:
            n = min(n, 86 - self.w2); a(f"s_add_u32 s67, s76, {64*self.w2}"); pf_round(n, 68, "s67"); self.w2 += n
    def round(self, kind):
        global uid
        if kind == "-": return
        uid += 1
        if kind == "o":
            a(f"s_lshl_b32 s67, s52, 9\ns_add_u32 s67, s67, s77"); pf_round(8, 72, "s67"); self.wo = 32
        elif kind == "w":
            n = min(NS, -(-(86 - self.w2) // 4))
            a(f"s_mul_i32 s67, s52, {64*n}\ns_add_u32 s67, s67, s76\ns_add_u32 s67, s67, {64*self.w2}"); pf_round(n, 68, "s67"); self.w2 += 4 * n
        else:
            a(f"s_cmp_eq_u32 s52, 3\ns_cbranch_scc1 PA{uid}")
            a(f"s_mul_i32 s67, s3, {int(kind)}\ns_add_u32 s67, s67, s11"); pf_round(12, 48, "s67")
            a(f"s_branch PB{uid}\nPA{uid}:"); self.one(12); a(f"PB{uid}:")
plan = W2Plan()
plan.round(LP[0])
OV = 32
def wsrc(j):
    if j < 43: return ("s65" if j == 14 else "s64"), ks0(j) * 16384, 68
    return "s78", (j - 43) * 16384, 72
ovq = list(range(43, 59)) + list(range(NA, 43))
def ovload():
    j = ovq.pop(0); r = OV + 4 * (j - NA); b, o, s_ = wsrc(j)
    if opt("noov"): return
    a(f"s_add_u32 s67, {b}, {o}"); return vm.op(f"buffer_load_dwordx4 v[{r}:{r+3}], v28, s[{s_}:{s_+3}], s67 offen")
def wdma(j, th=None):
    if opt("now"): return
    b, o, s_ = wsrc(j)
    a(f"s_add_u32 m0, s63, {pos(j)*4096}\ns_add_u32 s67, {b}, {o}")
    if th is not None: a(f"s_waitcnt vmcnt({th})")
    return vm.op(f"buffer_load_dwordx4 v28, s[{s_}:{s_+3}], s67 offen lds")
assert GR >= OV + 4 * NOV
for c in range(6):
    vm.wait(last); a("s_barrier")
    for q in range(8, 12): last = dma(q, c + 1)
    if c == (0 if XPOS <= 12 else 1):
        if XPOS >= 6: vm.wait(gl); gate_dots()
        a("s_brev_b64 exec, 1"); vm.op("buffer_store_dwordx4 v[8:11], v31, s[44:47], s66 offen sc1"); a("s_mov_b64 exec, -1")
    if VW2 == str(c):
        a("s_cmp_eq_u32 s52, 3\ns_cbranch_scc0 L_vw"); w2touch(not VWO, True); a("L_vw:")
    if TLB and c == int(opt("tlbc", 1)):
        a("s_cmp_eq_u32 s52, 1\ns_cbranch_scc0 L_tl")
        if TLB == "2m": a("v_lshlrev_b32 v12, 21, v0\ns_mov_b32 s67, 0x10000\ns_mov_b64 exec, 63")
        elif TLB == "64k": a("v_lshlrev_b32 v12, 16, v0\ns_lshr_b32 s67, s2, 3\ns_mul_i32 s67, s67, 0x60000\ns_mov_b64 exec, 63")
        elif TLB == "4k": a("v_lshlrev_b32 v12, 12, v0\ns_lshr_b32 s67, s2, 3\ns_mul_i32 s67, s67, 0x48000")
        a("buffer_load_dword v14, v12, s[44:47], s67 offen")
        if TLB == "4k": a("s_add_u32 s67, s67, 0x40000\ns_mov_b64 exec, 0xff\nbuffer_load_dword v14, v12, s[44:47], s67 offen")
        a("s_mov_b64 exec, -1\nL_tl:")
    if C3 == str(c):
        a("s_cmp_ge_u32 s52, 2\ns_cbranch_scc0 L_c3\nv_lshlrev_b32 v12, 10, v0\ns_lshr_b32 s67, s2, 3\ns_cmp_eq_u32 s52, 2\ns_cbranch_scc0 L_c3b")
        a(f"s_mul_i32 s67, s67, {43*1024}\ns_movk_i32 exec_hi, 0x7ff\nbuffer_load_dword v14, v12, s[68:71], s67 offen offset:384\ns_branch L_c3c\nL_c3b:")
        a("s_lshl_b32 s67, s67, 14\ns_mov_b64 exec, 0xffff\nbuffer_load_dword v14, v12, s[72:75], s67 offen offset:384\nL_c3c:\ns_mov_b64 exec, -1\nL_c3:")
    if c == 5:
        a(f"s_mul_i32 s66, s52, 24\ns_lshr_b32 s67, s29, 1\ns_add_u32 s66, s66, s67\nv_min_u32 v13, 23, v0\nv_lshlrev_b32 v12, 3, v13\nv_add_u32 v13, s66, v13\nv_min_u32 v13, 0x3ff, v13\nv_lshlrev_b32 v13, 4, v13")
        a(f"s_mul_i32 s67, s52, 192\ns_add_u32 s67, s67, {G_LDS}\nv_add_u32 v12, s67, v12\ns_mov_b32 s66, {S_OFF}")
        last = vm.op("buffer_load_dwordx4 v[8:11], v13, s[44:47], s66 offen sc1")
    plan.round(LP[c + 1])
    adv()
    k_ = KO[c]
    for q in range(8):
        dma(q, c + 2)
        if q >= 8 - k_: ovload()
print("w2 lines", plan.w2, "wo lines", plan.wo, file=sys.stderr)
vm.wait(last); a("s_barrier")
for q in range(8, 12): last = dma(q, 7)
wq = [("d", j) for j in range(G1)] + [("o", 0)] * len(ovq) + [("d", j) for j in range(G1, G2)]
def wnext(th=None):
    k_, j = wq.pop(0)
    if k_ == "d": wdma(j, th)
    else:
        if th is not None: a(f"s_waitcnt vmcnt({th})")
        ovload()
N6 = int(opt("n6", 12)); N7 = int(opt("n7", 22)); TH2 = int(opt("th2", 8))
for n in range(4): wnext()
a("s_mov_b32 s31, 0\nL_gw:\nv_cmp_eq_u64 vcc, s[22:23], v[10:11]\ns_add_u32 s31, s31, 1\ns_nop 0\ns_cmp_eq_u64 vcc, -1\ns_cbranch_scc1 L_gd")
a(f"buffer_load_dwordx4 v[8:11], v13, s[44:47], s66 offen sc1\ns_cmp_lt_u32 s31, {SPIN}\ns_waitcnt vmcnt(0)\ns_cbranch_scc1 L_gw\nL_gd:")
a("v_mul_f32 v8, s30, v8\nv_mul_f32 v9, s30, v9\nv_exp_f32 v8, v8\nv_exp_f32 v9, v9\ns_mov_b32 s67, 0x7f000000\nv_add_f32 v8, 1.0, v8\nv_add_f32 v9, 1.0, v9\nv_min_f32 v8, s67, v8\nv_min_f32 v9, s67, v9")
a("ds_write_b64 v12, v[8:9]")
assert 4 <= N6 <= G1 + len(ovq)
for n in range(4, N6): wnext()
a(f"v_min_u32 v12, 28, v0\nv_lshlrev_b32 v12, 6, v12\nv_and_b32 v13, 31, v0\nv_lshlrev_b32 v13, 6, v13\nv_mov_b32 v14, {XF_LDS+16}")
vm.wait(last, " lgkmcnt(0)")
stamp(2)
a("s_barrier")
for n in range(N7): wnext(TH2)
stamp(3)
a(f"s_mov_b32 s31, 0\nL_rw:\nds_read_b32 v8, v14\ns_add_u32 s31, s31, 1\ns_waitcnt lgkmcnt(0)\nv_and_b32 v8, 15, v8\nv_cmp_eq_u32 vcc, 4, v8\ns_cmp_lt_u32 s31, {SPIN}\ns_cbranch_scc0 L_rd\ns_cbranch_vccnz L_rd\ns_sleep 1\ns_branch L_rw\nL_rd:")
while wq: wnext(TH)
for j in range(G2, NA): wdma(j, TH)
a("s_waitcnt vmcnt(0)")
stamp(4)
J1 = int(opt("j1", 9)) if LV1 else 15 - HD; J2 = int(opt("j2", 23)) if LV1 else 30 - HD; J3 = min(44 - HD, NA - 2); B1 = J1 + 2
B2 = min(NOV, B1 + int(opt("b2", 6))); J4 = NA + B2 - 2 if B2 < NOV else -1
assert J2 + 2 >= NOV and J2 < J3
def lpoll(voff, imm, between=None, so="s79"):
    global uid; uid += 1; u = uid
    if between is None:
        a(f"s_cmp_lt_u32 s52, 2\ns_cbranch_scc0 NP{u}"); poll(8, voff, so, imm); a(f"NP{u}:"); return
    a(f"s_cmp_lt_u32 s52, 2\ns_cbranch_scc0 NQ{u}\nbuffer_load_dwordx2 v[8:9], {voff}, s[44:47], {so} offen offset:{imm} sc1\nNQ{u}:")
    between()
    a(f"s_cbranch_scc0 NP{u}\ns_waitcnt vmcnt(0)\nv_cmp_eq_u64 vcc, s[22:23], v[8:9]\ns_nop 1\ns_cmp_eq_u64 vcc, -1\ns_cbranch_scc1 NP{u}")
    poll(8, voff, so, imm); a(f"NP{u}:")
def ovwrite(n0, n1):
    for n in range(n0, n1):
        p = pos(n); a(f"ds_write_b128 v{(29, 30, 15)[p // 16]}, v[{OV+4*n}:{OV+3+4*n}] offset:{(p % 16) * 4096}" + ("\ns_waitcnt lgkmcnt(0)" if opt("pw") else ""))
if not opt("nolq"):
    a(f"s_cmp_lt_u32 s27, 8\ns_cbranch_scc0 L_qd\ns_mov_b32 s31, 0\nL_qw:\nds_read_b32 v8, v14\ns_add_u32 s31, s31, 1\ns_waitcnt lgkmcnt(0)\nv_cmp_lt_u32 vcc, 15, v8\ns_cmp_lt_u32 s31, {SPIN}\ns_cbranch_scc0 L_qd\ns_cbranch_vccnz L_qd\ns_sleep 2\ns_branch L_qw\nL_qd:")
lpoll("v12", 16 if LV1 else 0)
stamp(5)
a("s_barrier")
if not LV1: lpoll("v12", 8)
a("s_barrier")
if LV1: ovwrite(0, B1)
else: lpoll("v12", 16, lambda: ovwrite(0, B1))
stamp(6)
a("s_waitcnt lgkmcnt(0)\ns_barrier")
lpoll("v13", 0, lambda: ovwrite(B1, B2), "s18")
stamp(7)
a("s_waitcnt lgkmcnt(0)\ns_barrier")
if J4 >= 0: ovwrite(B2, NOV); a("s_waitcnt lgkmcnt(0)\ns_barrier")
a(f"s_lshl_b32 s67, s2, 2\ns_add_u32 s67, s67, s52\ns_cmp_eq_u32 s67, 0\ns_cbranch_scc0 L_nox\ns_mov_b32 s67, {X_OFF}")
setflag(8, "v31", "s67")
a("L_nox:")
PIT = 272; PART = 5 * 4096
def fin_setup():
    srd(a, 48, 20, 2048*1024)
    a(f"v_lshrrev_b32 v8, 3, v0\ns_lshl_b32 s56, s28, 3\nv_add_u32 v8, s56, v8\nv_and_b32 v9, 7, v0\nv_mul_u32_u24 v10, {PIT}, v8\nv_lshl_add_u32 v10, v9, 5, v10")
    a("v_lshlrev_b32 v8, 10, v8\nv_lshl_add_u32 v8, v9, 4, v8")
    a("s_and_b32 s56, s2, 7\ns_lshl_b32 s56, s56, 2\ns_lshr_b32 s57, s2, 6\ns_add_u32 s56, s56, s57\ns_lshl_b32 s56, s56, 16\ns_bfe_u32 s57, s2, 0x30003\ns_lshl_b32 s57, s57, 7\ns_add_u32 s56, s56, s57")
fin_setup()
a("s_branch L_fin")
a("L_exit:\ns_endpgm")

FR = 144; VX = 216; VW = 218; VGA = 220; VL = 228; TG = 230; VZS = 232; VZG = 233; VMK = 234; VG = 236; VS = 248
WA = (221, 223, 225)
HB = 72; WF = 48
assert HB + 4 * HD <= 120
a("M_start:"); MSIDE = True
mapping()
a("s_lshr_b32 s52, s28, 1\ns_and_b32 s53, s28, 1")
a("v_and_b32 v2, 31, v0\nv_lshrrev_b32 v3, 5, v0\nv_bfe_u32 v4, v0, 1, 3\nv_and_b32 v14, 15, v0\nv_lshrrev_b32 v15, 4, v0")
a("s_mul_i32 s54, s52, 96\ns_cmp_lt_u32 s27, 8\ns_cselect_b32 s54, 0, s54\nv_add_u32 v5, s54, v14\nv_lshlrev_b32 v6, 7, v5")
a(f"v_xor_b32 v7, v15, v4\nv_lshl_add_u32 v{VX}, v7, 4, v6\nv_xor_b32 v{VX+1}, 64, v{VX}")
a(f"v_lshlrev_b32 v{VGA}, 2, v5\nv_add_u32 v{VGA}, {G_LDS}, v{VGA}")
a("v_bfe_u32 v8, v0, 4, 1\nv_bfe_u32 v9, v0, 2, 2\nv_and_b32 v10, 3, v0\nv_lshl_add_u32 v11, v15, 3, v9")
a(f"s_mov_b32 s63, 0\ns_mov_b32 s66, 0\ns_mov_b32 s65, {SLOT}")
a("v_lshl_add_u32 v13, v3, 3, v9\nv_lshrrev_b32 v12, 1, v9\nv_lshlrev_b32 v12, 6, v12\nv_lshl_add_u32 v12, v13, 7, v12\nv_lshl_add_u32 v12, v8, 5, v12\nv_lshl_add_u32 v12, v10, 3, v12")
a(f"s_lshl_b32 s57, s52, 11\nv_add_u32 v{WA[0]}, s57, v12\nv_xor_b32 v{WA[0]+1}, 64, v{WA[0]}")
for g in (1, 2): a(f"v_add_u32 v{WA[g]}, {g*0x10000}, v{WA[0]}\nv_add_u32 v{WA[g]+1}, {g*0x10000}, v{WA[0]+1}")
flagrow(None, "s53", "s60", "s62")
a(f"s_mul_i32 s60, s60, {HP*1024}\ns_mul_i32 s57, s52, 3072\ns_add_u32 s76, s60, s57\ns_mul_i32 s57, s52, {83*1024}\ns_sub_u32 s77, s60, s57")
a(f"s_lshl_b32 s57, s52, 14\ns_add_u32 s78, s60, s57\ns_add_u32 s78, s78, {96*1024}")
a(f"s_lshl_b32 s56, s53, 5\nv_add_u32 v12, s56, v2\nv_mul_u32_u24 v12, {PIT}, v12\nv_lshl_add_u32 v12, v3, 4, v12\ns_mul_i32 s56, s52, {64*PIT}\ns_add_u32 s56, s56, {PART}\nv_add_u32 v227, s56, v12")
a(f"v_mov_b32 v{VS}, {XF_LDS+16}\nv_mov_b32 v{VS+1}, 0\nds_write_b32 v{VS}, v{VS+1}")
a("s_waitcnt lgkmcnt(0)")
tag_load()
srd(a, 44, 24, WSB)
if WARM:
    a("s_mov_b64 exec, 0")
    for w in range(3): a(f"s_cmp_eq_u32 s28, {w}\ns_cbranch_scc1 WS_{w}")
    a("s_branch WS_3\nWRET:\ns_mov_b64 exec, -1\nWDONE:")
for r in range(16, 144, 2): a(f"v_mov_b64 v[{r}:{r+1}], 0")
def m_ready():
    for r in range(0, 16, 2): a(f"v_mov_b64 v[{r}:{r+1}], 0")
    a("s_waitcnt lgkmcnt(0)")
    tag_make()
    a(f"v_mov_b32 v{TG}, s22\nv_mov_b32 v{TG+1}, s23")
    stamp(1)
a("s_cmp_lt_u32 s27, 8\ns_cbranch_scc1 M_qkv")

SIG = str(opt("sig", "d"))
def signal(v=1): a(f"v_mov_b32 v{VS+1}, {v}\ns_mov_b64 exec, 1\nds_add_u32 v{VS}, v{VS+1}\ns_mov_b64 exec, -1")
def q4(r): return f"v[{r}:{r+3}]"
def kloop(kind):
    ffn = kind == "ffn"
    no, ni = (6, 6) if ffn else (12, 3)
    def O(o): return FR + 4 * o
    def I(st, i): return FR + 4 * no + 4 * ni * st + 4 * i
    def rx(r, ti, s): return [f"ds_read_b128 {q4(r)}, v{VX+s} offset:{2048*ti}"]
    def rw(r, k_, s):
        if ffn:
            fi, mat = k_ >> 1, k_ & 1; va = VW + (fi & 1); off = mat * W3OFF + s * 6144 + 32 * (fi & 2); st = 768
        else: va = VW; off = k_ * 8192 + s * 4096; st = 512
        return [f"ds_read_b64_tr_b16 {pr(r+2*rd)}, v{va} offset:{off + rd*st}" for rd in range(2)]
    rO = (lambda o, s: rw(O(o), o, s)) if ffn else (lambda o, s: rx(O(o), o, s))
    rI = (lambda st, i, s: rx(I(st, i), i, s)) if ffn else (lambda st, i, s: rw(I(st, i), i, s))
    def mf(o, i, st):
        if ffn: d = 24 * o + 4 * i; A, B = O(o), I(st, i)
        else:
            d = 48 * i + 4 * o; A, B = (I(st, i), O(o)) if i == 0 else (O(o), I(st, i))
        return f"v_mfma_f32_16x16x32_bf16 {q4(d)}, {q4(A)}, {q4(B)}, {q4(d)}"
    SY = int(opt("sy", 8)); NTOP = 4 if ffn else 3
    a("s_setprio " + str(opt("mprio", 2)))
    a("s_barrier")
    stamp(2)
    first = rO(0, 0) + sum((rI(0, i, 0) for i in range(ni)), []) + sum((rO(o, 0) for o in range(1, no)), [])
    for n, x in enumerate(first):
        if n == 12: a("s_waitcnt lgkmcnt(8)")
        a(x)
    a(f"M_loop_{kind}:")
    for s in range(2):
        ns = s ^ 1; qu = []; n = 0
        misc = []
        if s == 1:
            misc = [f"s_cmp_eq_u32 s63, {2*SLOT}\ns_cselect_b32 s64, {(-2*SLOT) & 0xffffffff}, s65", f"s_add_u32 s63, s63, s64\nv_add_u32 v{VX}, s64, v{VX}",
                    f"v_add_u32 v{VX+1}, s64, v{VX+1}", f"v_add_u32 v{VW}, s64, v{VW}"] + ([f"v_add_u32 v{VW+1}, s64, v{VW+1}"] if ffn else []) + ["s_add_u32 s66, s66, 1\ns_cmp_lt_u32 s66, 8"]
        a(f"s_waitcnt lgkmcnt({NTOP})")
        for o in range(no):
            for i in range(ni):
                a(mf(o, i, s)); n += 1
                if i == ni - 1: qu += rO(o, ns)
                if n < SY:
                    if misc: a(misc.pop(0))
                elif n == SY:
                    assert not misc
                    a("s_waitcnt lgkmcnt(0)")
                    if s == 0 and PRE:
                        g_ = int(opt("preg", 128)); fl = str(opt("pref", "sc1")).replace("none", "")
                        a(f"s_cmp_eq_u32 s66, {PRE}\ns_cbranch_scc0 M_np_{kind}")
                        lanes = (3072 if ffn else 1024) // g_
                        op = "load" if opt("prel") else "store"
                        if ffn:
                            a(f"s_mov_b32 exec_lo, {((1 << lanes) - 1) & 0xffffffff}\ns_mov_b32 exec_hi, {((1 << lanes) - 1) >> 32}")
                            for k_ in range(3): a(f"buffer_{op}_dword v{VS+3}, v{VS+2}, s[44:47], s{68+k_} offen {fl}")
                        else:
                            for k_ in range(1 if g_ == 128 else 2):
                                a(f"s_mov_b32 exec_hi, 0xffff\nbuffer_{op}_dword v{VS+3}, v{VS+2}, s[44:47], s36 offen offset:{64*k_} {fl}")
                        a(f"s_mov_b64 exec, -1\nM_np_{kind}:")
                    if s == 1: a(f"s_cbranch_scc0 M_nb_{kind}\ns_barrier\nM_nb_{kind}:")
                    qu = qu[:2] + sum((rI(ns, k_, ns) for k_ in range(ni)), []) + qu[2:]
                elif qu: a(qu.pop(0))
        assert len(qu) <= 1, qu
        for x in qu: a(x)
    a(f"s_cbranch_scc1 M_loop_{kind}")
    stamp(3)
    if not ffn or SIG == "k": signal()
    for i in range(3 if ffn else 6): a(f"ds_read2_b32 {pr(VG+2*i)}, v{VGA} offset0:{32*i} offset1:{32*i+16}")
def bsel(hi, n): return " op_sel:[0" + ",1" * n + "]" if hi else " op_sel_hi:[1" + ",0" * n + "]"
def swaps(o): return [f"v_permlane16_swap_b32 v{o}, v{o+2}", f"v_permlane16_swap_b32 v{o+1}, v{o+3}"]

a(f"v_mul_u32_u24 v13, 192, v11\nv_lshl_add_u32 v13, v10, 3, v13\nv_add_u32 v13, {XIMG}, v13\ns_mul_i32 s54, s53, 3\nv_xor_b32 v12, s54, v8\nv_lshl_add_u32 v{VW}, v12, 5, v13\ns_add_u32 s54, s54, 1\nv_xor_b32 v12, s54, v8\nv_lshl_add_u32 v{VW+1}, v12, 5, v13")
a(f"s_lshl_b32 s59, s26, 1\ns_add_u32 s59, s59, s52\ns_mul_i32 s56, s59, {3*HP}\ns_mul_i32 s59, s59, {FROW}")
a("s_sub_u32 s60, s27, 8\ns_lshl_b32 s60, s60, 1\ns_add_u32 s60, s60, s53\ns_mul_i32 s57, s60, 3\ns_add_u32 s56, s56, s57\ns_lshl_b32 s68, s56, 10")
a(f"s_add_u32 s69, s68, {HP*1024}\ns_add_u32 s70, s68, {2*HP*1024}")
a(f"s_lshl_b32 s60, s60, 6\ns_add_u32 s71, s59, s60\ns_add_u32 s71, s71, {FH}")
a(f"s_mov_b32 s30, {NLOG2E}\ns_mov_b32 s31, {NLOG2E}")
if PRE: a(f"v_mul_u32_u24 v{VS+2}, {int(opt('preg', 128))}, v0\nv_mov_b32 v{VS+3}, 0")
m_ready()
kloop("ffn")
a("s_waitcnt vmcnt(0) lgkmcnt(0)")
vm = VM(); sid = []; ops = []
def stored():
    vm.n += 1; sid.append(vm.n)
    if SIG == str(len(sid)): signal()
    if len(sid) == T1 and not LV1: vm.wait(sid[2]); setflag(TG, f"v{VL}", "s71", 0, vm, False)
for fi in range(3):
    for ti in range(3):
        d = 48 * fi + 8 * ti; u = d + 24; t = FR + 12 * ((3 * fi + ti) % 6); g = pr(VG + 2 * ti)
        for j in range(0, 8, 2): ops.append(f"v_pk_mul_f32 {pr(t+j)}, {pr(d+j)}, s[30:31]")
        for j in range(8): ops.append(f"v_exp_f32 v{t+j}, v{t+j}")
        for j in range(0, 8, 2): ops.append(f"v_pk_fma_f32 {pr(t+j)}, {pr(t+j)}, {g}, {g}" + bsel(j >= 4, 2))
        for j in range(0, 8, 2): ops.append(f"v_pk_mul_f32 {pr(d+j)}, {pr(d+j)}, {pr(u+j)}")
        for j in range(8): ops.append(f"v_rcp_f32 v{t+j}, v{t+j}")
        for j in range(0, 8, 2): ops.append(f"v_pk_mul_f32 {pr(d+j)}, {pr(d+j)}, {pr(t+j)}")
        for j in range(4): ops.append(f"v_cvt_pk_bf16_f32 v{t+8+j}, v{d+2*j}, v{d+2*j+1}")
        ops += swaps(t + 8)
        if not opt("nost"): ops.append((f"buffer_store_dwordx4 {q4(t+8)}, v{VL}, s[44:47], s{68+ti} offen offset:{1024*fi} {HST}", stored))
print("ffn epilogue model cycles", schedule(ops, a, window=int(opt("win", 40))), file=sys.stderr)
stamp(4)
if SIG == "e": signal()
if not LV1: vm.wait(sid[5]); setflag(TG, f"v{VL}", "s71", 8, vm, False)
if sid: vm.wait(sid[8])
setflag(TG, f"v{VL}", "s71", 16, vm, False)
if SIG == "d": signal()
stamp(5)
a("s_branch M_s2")

a("M_qkv:")
a(f"v_and_b32 v12, 2, v9\nv_or_b32 v12, v12, v8\nv_xor_b32 v12, s28, v12\nv_lshlrev_b32 v12, 5, v12\nv_lshl_add_u32 v12, v11, 7, v12\nv_lshl_add_u32 v12, v10, 3, v12\nv_add_u32 v{VW}, {XIMG}, v12")
a("s_lshl_b32 s60, s27, 2\ns_add_u32 s60, s60, s28")
a(f"s_mul_i32 s56, s26, {6*HP}\ns_add_u32 s56, s56, s60\ns_add_u32 s56, s56, 96\ns_lshl_b32 s36, s56, 10")
for ti in range(1, 6): a(f"s_add_u32 s{36+ti}, s36, {ti*HP*1024}")
a(f"s_mul_i32 s59, s26, {FROW}\ns_lshl_b32 s57, s60, 6\ns_add_u32 s71, s59, s57\ns_add_u32 s71, s71, {FO}")
a(f"s_mul_i32 s72, s60, {11*PSZ}\ns_add_u32 s72, s72, {P_OFF}\ns_mul_i32 s73, s26, {PSZ}\ns_add_u32 s73, s73, s72\ns_add_u32 s57, s72, {4*PSZ}\ns_add_u32 s58, s72, {8*PSZ}")
a("s_cmp_eq_u32 s26, 10\ns_cselect_b32 s75, 0, 0x3f803f80")
a(f"v_lshlrev_b32 v{VZS}, 4, v15\nv_mul_u32_u24 v12, {PSZ}, v14\nv_add_u32 v{VZG}, v12, v{VZS}\nv_mov_b32 v{VMK}, 0xffffff00")
a(f"s_mov_b32 s30, {LOG2E}\ns_mov_b32 s31, {LOG2E}\ns_mov_b32 s3, {EPS}")
if PRE: a(f"v_lshrrev_b32 v12, 3, v0\nv_mul_u32_u24 v12, {HP*1024}, v12\nv_and_b32 v13, 7, v0\nv_lshl_add_u32 v{VS+2}, v13, 7, v12\nv_mov_b32 v{VS+3}, 0")
m_ready()
for i in range(4): a(f"s_bfe_u32 s{32+i}, s22, {0x80000 + 8*i}")
kloop("qkv")
CK = FR; CZ = FR + 4; ONE = FR + 8; ONE2 = FR + 12; TP = FR + 16
a("s_waitcnt vmcnt(0) lgkmcnt(0)")
def phi8(b, t):
    o = []
    for j in range(0, 8, 2): o.append(f"v_pk_mul_f32 {pr(t+j)}, {pr(b+j)}, s[30:31]")
    for j in range(8): o.append(f"v_exp_f32 v{t+j}, v{t+j} clamp")
    for j in range(8): o.append(f"v_max_f32 v{b+j}, s3, v{b+j}")
    for j in range(0, 8, 2): o.append(f"v_pk_add_f32 {pr(b+j)}, {pr(b+j)}, {pr(t+j)}")
    for j in range(4): o.append(f"v_cvt_pk_bf16_f32 v{b+j}, v{b+2*j}, v{b+2*j+1}")
    return o
ops = []
for p in range(6):
    dk = 48 + 8 * p; dv = 96 + 8 * p; one = ONE2 if p >= 4 else ONE
    ops += phi8(dk, TP + 8 * (p & 1))
    if p in (0, 4): ops += [f"v_mov_b32 v{one+j}, {'s75' if p else '0x3f803f80'}" for j in range(4)]
    for j in range(4): ops.append(f"v_cvt_pk_bf16_f32 v{dv+j}, v{dv+2*j}, v{dv+2*j+1}")
    ops.append(f"v_mfma_f32_16x16x32_bf16 {q4(CK)}, {q4(dk)}, {q4(dv)}, {q4(CK) if p else 0}")
    ops.append(f"v_mfma_f32_16x16x32_bf16 {q4(CZ)}, {q4(dk)}, {q4(one)}, {q4(CZ) if p else 0}")
print("k epilogue model cycles", schedule(ops, a, window=30), file=sys.stderr)
stamp(1, "kq")
qops = sum((phi8(8 * p, TP + 8 * (p & 1)) for p in range(6)), [])
assert all(x.startswith("v_max") for x in qops[12:20])
for x in qops[:4] + qops[12:20]: a(x)
for j in range(8): a(f"v_and_or_b32 v{CK+j}, v{CK+j}, v{VMK}, s{32 + (j & 3)}")
stamp(2, "kq")
a(f"buffer_store_dwordx4 {q4(CK)}, v{VL}, s[44:47], s73 offen sc1\ns_mov_b32 exec_lo, 0x10001\ns_mov_b32 exec_hi, 0x10001")
a(f"buffer_store_dwordx4 {q4(CZ)}, v{VZS}, s[44:47], s73 offen offset:1024 sc1\ns_mov_b64 exec, -1")
stamp(4)
schedule(qops[4:12] + qops[20:], a, window=30)
stamp(5, "kq")
GK = 48; GZ = 92; GA = 96
GZO = not opt("nogzo")
a("s_mov_b32 s67, 0\nM_gw:")
for j in range(4): a(f"v_mov_b32 v{GZ+j}, s{32+j}")
a(f"s_add_u32 s67, s67, 1\ns_cmp_lt_u32 s67, {SPIN}\ns_cselect_b32 s62, 0xff, 0\ns_mov_b32 exec_lo, 0x7ff07ff\ns_mov_b32 exec_hi, 0x7ff07ff")
a(f"buffer_load_dwordx4 {q4(GZ)}, v{VZG}, s[44:47], s72 offen offset:1024 sc1\ns_mov_b64 exec, -1")
def kvloads():
    for p in range(11): a(f"buffer_load_dwordx4 {q4(GK+4*p)}, v{VL}, s[44:47], {('s72', 's57', 's58')[p//4]} offen offset:{(p%4)*PSZ} sc1")
if not GZO: kvloads()
a(f"s_waitcnt vmcnt({0 if GZO else 11})")
for j in range(4): a(f"v_xor_b32 v{GZ+j}, s{32+j}, v{GZ+j}")
a(f"v_or3_b32 v{GA}, v{GZ}, v{GZ+1}, v{GZ+2}\nv_or_b32 v{GA}, v{GA}, v{GZ+3}\nv_and_b32 v{GA}, s62, v{GA}\nv_cmp_ne_u32 vcc, 0, v{GA}\ns_nop 0\ns_cbranch_vccnz M_gw")
if GZO: kvloads()
if not opt("nolq"): signal(16)
stamp(5); stamp(6, "kq")
for ctl in ["quad_perm:[1,0,3,2]", "quad_perm:[2,3,0,1]", "row_half_mirror", "row_mirror"]:
    for j in range(4): a(f"v_add_f32_dpp v{GZ+j}, v{GZ+j}, v{GZ+j} {ctl} row_mask:0xf bank_mask:0xf")
ZA = FR; KA = FR + 4
a(f"s_mov_b32 vcc_lo, 0x55555555\ns_mov_b32 vcc_hi, 0x55555555\nv_cvt_pk_bf16_f32 v{GZ}, v{GZ}, v{GZ+1}\nv_cvt_pk_bf16_f32 v{GZ+1}, v{GZ+2}, v{GZ+3}")
a(f"v_cndmask_b32 v{ZA}, 0, v{GZ}, vcc\nv_cndmask_b32 v{ZA+1}, 0, v{GZ+1}, vcc\nv_xor_b32 v{ZA+2}, v{ZA}, v{GZ}\nv_xor_b32 v{ZA+3}, v{ZA+1}, v{GZ+1}")
DN = 100
ops = []
for p in range(6): ops.append(f"v_mfma_f32_16x16x32_bf16 {q4(DN+4*p)}, {q4(ZA)}, {q4(8*p)}, 0")
for p in range(6):
    for h in range(2):
        r = DN + 4 * p + h; ops += [f"v_add_f32 v{r}, s3, v{r}", f"v_mul_f32 v{r}, v{r}, v{VG+2*p+h}", f"v_rcp_f32 v{r}, v{r}"]
a("s_nop 1"); schedule(ops, a)
for p in range(11):
    a(f"s_waitcnt vmcnt({10-p})")
    r = GK + 4 * p
    for j in range(4): a(f"v_xor_b32 v{r+j}, s{32+j}, v{r+j}")
    a(f"v_or3_b32 v{GA}, v{r}, v{r+1}, v{GA}\nv_or3_b32 v{GA}, v{r+2}, v{r+3}, v{GA}")
    if p:
        for j in range(0, 4, 2): a(f"v_pk_add_f32 {pr(GK+j)}, {pr(GK+j)}, {pr(r+j)}")
a(f"v_and_b32 v{GA}, s62, v{GA}\nv_cmp_ne_u32 vcc, 0, v{GA}\nv_cvt_pk_bf16_f32 v{KA}, v{GK}, v{GK+1}\nv_cvt_pk_bf16_f32 v{KA+1}, v{GK+2}, v{GK+3}\ns_cbranch_vccnz M_gw\ns_nop 0")
stamp(7, "kq"); stamp(8, "kq")
ops = []
for p in range(6):
    for h in range(2): ops.append(f"v_mfma_f32_16x16x16_bf16 {q4(48+8*p+4*h)}, {pr(KA)}, {pr(8*p+2*h)}, 0")
for p in range(6):
    n_ = 48 + 8 * p; o = 192 + 4 * p
    for j in range(8): ops.append(f"v_mul_f32 v{n_+j}, v{n_+j}, v{DN+4*p+(j>>2)}") if p < 2 else None
    if p >= 2:
        for j in range(0, 8, 2): ops.append(f"v_pk_mul_f32 {pr(n_+j)}, {pr(n_+j)}, {pr(DN+4*p)}" + bsel(j >= 4, 1))
    for j in range(4): ops.append(f"v_cvt_pk_bf16_f32 v{o+j}, v{n_+2*j}, v{n_+2*j+1}")
    ops += swaps(o)
    ops.append(f"buffer_store_dwordx4 {q4(o)}, v{VL}, s[44:47], s{36+p} offen sc1")
print("o block model cycles", schedule(ops, a, window=40), file=sys.stderr)

stamp(9, "kq")
a("M_s2:")
stamp(6)
def hload(j):
    r = HB + 4 * (j % HD); imm = 0
    if j < 43: a(f"s_add_u32 s61, {'s77' if j == 14 else 's76'}, {ks0(j)*1024}")
    else:
        jj = j - 43; imm = (jj % 4) * 1024
        if jj % 4 == 0: a(f"s_add_u32 s61, s78, {(jj//4)*4096}")
    a(f"buffer_load_dwordx4 v[{r}:{r+3}], v{VL}, s[44:47], s61 offen offset:{imm} sc1")
def wreads(j):
    p = pos(j); r = []
    for c in range(2):
        for rd in range(2):
            d = WF + 8 * (j % 3) + 4 * c + 2 * rd
            r.append(f"ds_read_b64_tr_b16 v[{d}:{d+1}], v{WA[p//16]+c} offset:{(p%16)*4096 + rd*512}")
    return r
a("s_barrier")
stamp(7)
for j in range(HD - 1): hload(j)
for x in wreads(0) + wreads(1): a(x)
issued = HD - 1
S2O = str(opt("s2o", "c"))
for j in range(59):
    bar = j in (J1, J2, J3, J4)
    h = HB + 4 * (j % HD); w = WF + 8 * (j % 3)
    c0, c1 = ("v[16:31]", "v[32:47]") if j else ("0", "0")
    m0 = f"v_mfma_f32_32x32x16_bf16 v[16:31], v[{w}:{w+3}], v[{h}:{h+3}], {c0}"
    m1 = f"v_mfma_f32_32x32x16_bf16 v[32:47], v[{w+4}:{w+7}], v[{h}:{h+3}], {c1}"
    rd = wreads(j + 2) if j + 2 < 59 else []
    a(f"s_waitcnt vmcnt({issued - 1 - j}) lgkmcnt({0 if bar or j == 58 else 4})")
    if j == 0:
        a("s_cmp_lt_u32 s27, 8\ns_cbranch_scc0 M_noflag"); setflag(TG, f"v{VL}", "s71", init=False); a("s_nop 2\nM_noflag:")
    a(m0)
    if j == 0: stamp(1, True)
    if bar:
        if j != J4: stamp({J1: 2, J2: 4, J3: 6}[j], True)
        a("s_barrier")
        if j in (J1, J2): stamp({J1: 3, J2: 5}[j], True)
        if j == J3: stamp(8)
    if S2O == "b":
        if issued < 59: hload(issued); issued += 1
        a(m1)
        for x in rd: a(x)
    elif S2O == "c":
        for x in rd: a(x)
        a(m1)
        if issued < 59: hload(issued); issued += 1
    else:
        for x in rd[:2]: a(x)
        if issued < 59: hload(issued); issued += 1
        a(m1)
        for x in rd[2:]: a(x)
stamp(9)
a(f"v_lshrrev_b32 v0, 4, v{VL}")
fin_setup()
for c in range(2):
    for q in range(4): a(f"ds_write_b128 v227, v[{16+16*c+4*q}:{19+16*c+4*q}] offset:{c*128 + q*32}")
a("s_waitcnt lgkmcnt(0)")
a("L_fin:\ns_barrier")
a(f"ds_read_b128 v[16:19], v10 offset:{PART}\nds_read_b128 v[24:27], v10 offset:{PART+64*PIT}\nds_read_b128 v[20:23], v10 offset:{PART+16}\nds_read_b128 v[28:31], v10 offset:{PART+64*PIT+16}")
a("s_waitcnt lgkmcnt(0)")
for j in range(0, 8, 2): a(f"v_pk_add_f32 {pr(16+j)}, {pr(16+j)}, {pr(24+j)}")
for j in range(4): a(f"v_cvt_pk_bf16_f32 v{16+j}, v{16+2*j}, v{17+2*j}")
a("buffer_store_dwordx4 v[16:19], v8, s[48:51], s56 offen " + str(opt("outflag", "nt")).replace("_", " "))
stamp(10)
dump_stamps()
a("s_endpgm\nL_codeend:")
if WARM:
    import re
    def isize(x):
        x = x.strip()
        if not x or x.endswith(":") or x.startswith((".", ";")): return 0
        if re.match(r"(s_nop|s_waitcnt|s_barrier|s_cbranch|s_branch|s_setprio|s_sleep)", x): return 4
        lit = any(not (-16 <= int(t, 0) <= 64) for t in re.findall(r"(?<![\w\[:.])(-?0x[0-9a-f]+|-?\d+)(?![\w\].:])", x.split(" offset")[0]))
        if re.match(r"(buffer_|ds_|v_mfma|v_pk_|v_cvt_pk|s_buffer|s_load|s_mem|v_lshl_add|v_bfe|v_or3|v_and_or|v_mul_lo)", x) or "dpp" in x or "clamp" in x: return 8
        return 8 if lit else 4
    out = []; off = 0; nxt = int(opt("warm0", 2048)); noins = False; marks = []
    for i, x in enumerate(a.l):
        if x.startswith("M_start:") or x.startswith("M_loop_"): noins = True
        if off >= nxt and not noins and isize(x) and not a.l[i-1].strip().startswith(("s_add_u32 m0", "s_mov_b32 exec", "s_mov_b64 exec", "s_movk_i32 exec", "s_brev_b64 exec")):
            marks.append(len(out)); out.append(None); off += 4; nxt = off + WARM
        if x.startswith("WDONE:") or x.startswith("s_cbranch_scc1 M_loop_"): noins = False
        out.append(x); off += isize(x)
    n = len(marks); print("warm stubs", n, "code bytes ~", off, file=sys.stderr)
    for k_, m_ in enumerate(marks):
        out[m_] = (f"WS_{k_}:\n" if True else "") + f"s_cbranch_execz {'WS_%d' % (k_ + 4) if k_ + 4 < n else 'WRET'}"
    a.l = out
rodata(a)
kdesc(a, K, 256, 256)
open(OUT, "w").write(a.text())
```

```python
import re
def regs(tok):
    tok = tok.strip()
    m = re.fullmatch(r"-?v\[(\d+):(\d+)\]", tok)
    if m: return list(range(int(m.group(1)), int(m.group(2)) + 1))
    m = re.fullmatch(r"-?v(\d+)", tok)
    if m: return [int(m.group(1))]
    return []
TR = ("v_exp_f32", "v_rcp_f32", "v_log_f32", "v_rsq_f32")
class Op:
    def __init__(self, text, idx, after=None):
        self.text = text; self.idx = idx; self.after = after
        name, rest = text.split(None, 1)
        toks = [t.split()[0] for t in rest.split(",")]
        self.name = name
        if name.startswith(("buffer_store", "ds_write")):
            self.w = []; self.r = sum((regs(t) for t in toks), []); self.kind = "s"
        else:
            self.w = regs(toks[0]); self.r = sum((regs(t) for t in toks[1:]), [])
            if name.startswith(("v_fmac", "v_permlane")): self.r += self.w
            if name.startswith("v_permlane"): self.w = self.w + regs(toks[1])
            self.kind = "m" if name.startswith("v_mfma") else "t" if name.startswith(TR) else "p"
        self.srcc = regs(toks[3]) if self.kind == "m" else []
        self.cost = 8 if name.startswith("v_permlane") else {"m": 8, "t": 8, "p": 4, "s": 4}[self.kind]
def need(p, c, passes=8):
    raw = set(p.w) & set(c.r); waw = set(p.w) & set(c.w); war = set(p.r) & set(c.w)
    if not (raw or waw or war):
        return 0 if (p.kind == "s" and c.kind == "s") else None
    n = 0
    if p.kind == "m" and (raw or waw):
        if c.kind == "m" and c.srcc == p.w and not (set(p.w) & (set(c.r) - set(c.srcc))): n = 0
        else: n = 8 if "16x16" in p.name else 12
    elif raw:
        if c.kind == "m" or c.name.startswith("v_permlane") or "dpp" in c.name: n = 2
        elif p.kind == "t": n = 1
    if war and p.kind == "s": n = max(n, 2)
    if war and p.kind == "m" and set(p.srcc) & set(c.w) and c.kind != "m": n = max(n, 3 if "16x16" in p.name else 7)
    return n
PKGAP = 0
def schedule(texts, emit, window=80, soft=1, holdpk=False):
    ops = [Op(t, i) if isinstance(t, str) else Op(t[0], i, t[1]) for i, t in enumerate(texts)]
    deps = []
    for i, c in enumerate(ops):
        d = []
        for p in ops[:i]:
            n = need(p, c)
            if n is not None: d.append((p.idx, n, bool(set(p.w) & set(c.r))))
        deps.append(d)
    at = {}; slot = 0; clk = 0; mfree = 0; lastkind = "p"; todo = list(range(len(ops)))
    while todo:
        def ready(i, extra):
            for p, n, raw in deps[i]:
                if p not in at or slot - at[p] - 1 < max(n, extra if raw and ops[p].kind != "m" else 0): return False
            return True
        pick = None
        for extra in (soft, 0):
            cand = [i for i in todo[:window] if ready(i, extra) and (ops[i].kind != "m" or clk >= mfree)]
            if holdpk and any(ops[i].kind == "m" and (holdpk is True or i < holdpk) for i in todo):
                cand = [i for i in cand if ops[i].kind == "m" or (not ops[i].name.startswith("v_pk_") and clk + ops[i].cost <= mfree)]
            elif clk < mfree + PKGAP:
                c2 = [i for i in cand if not ops[i].name.startswith("v_pk_")]
                if c2: cand = c2
            if cand:
                ms = [i for i in cand if ops[i].kind in "ms"]
                want = [i for i in cand if (ops[i].kind == "t") != (lastkind == "t")]
                pick = ms[0] if ms else want[0] if want else cand[0]
                break
        if pick is None:
            cand = [i for i in todo[:window] if ready(i, 0)]
            if cand: pick = cand[0]
        if pick is None:
            emit("s_nop 0"); slot += 1; clk += 4; continue
        o = ops[pick]
        if o.kind == "m": clk = max(clk, mfree); mfree = clk + (16 if "16x16" in o.name else 32)
        emit(o.text); at[pick] = slot; slot += 1; clk += o.cost; lastkind = o.kind; todo.remove(pick)
        if o.after: o.after()
    return clk
```

```python
import sys, re
from asmlib import *
import sched
from sched import schedule
def opt(name, default=None):
    for x in sys.argv[1:]:
        if x == "--" + name: return True
        if x.startswith("--" + name + "="): return x.split("=", 1)[1]
    return default
STAMP = opt("stamp", False)
OUT = [x for x in sys.argv[1:] if not x.startswith("--")][0]
HD = int(opt("hd", 9))
TH = int(opt("th", 7)); TH2 = int(opt("th2", 8))
N6 = int(opt("n6", 12)); N7 = int(opt("n7", 33))
PA = int(opt("pa", 0))
XPOS = int(opt("xpos", 0))
LP = str(opt("lp", "o-ww--"))
C3 = str(opt("c3", "4")); SPC = int(opt("spc", 1)); ROT = str(opt("rot", "a")); SIG = str(opt("sig", "e"))
WARM = int(opt("warm", 1100))
sched.PKGAP = int(opt("pkgap", 32))
SPIN = 1 << 16

SLOT = 49152; XIMG = 24576; W3OFF = 12288
NA = 39; NOV = 59 - NA; G1 = 15; G2 = 27
G_LDS = NA * 4096; CNT_LDS = G_LDS + 768
assert CNT_LDS + 64 <= 163840
HP = 129
P_OFF = 9 << 20; FH = 10 << 20; S_OFF = (10 << 20) + (512 << 10); X_OFF = 11 << 20; ST_OFF = 12 << 20
FSH = int(opt("fsh", 6)); FW = int(opt("fw", 0))
FROW = 32 << FSH; FO = FH + 22 * FROW
PSZ = 1152; PIT = 272; PART = 5 * 4096
LOG2E = 0x3fb8aa3b; NLOG2E = 0xbfb8aa3b; EPS = 0x358637bd
WSB = 16 << 20
K = NAME + "_kernel"
def pos(j):
    if j >= NA: j -= NA
    return 24 + j if j < G1 else j - G1
J1 = int(opt("j1", 9)); J2 = int(opt("j2", 23)); J3 = min(44 - HD, NA - 2); B1 = J1 + 2
B2 = min(NOV, B1 + int(opt("b2", 6))); J4 = NA + B2 - 2 if B2 < NOV else -1
assert J2 + 2 >= NOV and J2 < J3 and B1 <= G1

a = Asm(); MSIDE = False
header(a, ["; fused linear-attention + SwiGLU gated mix; generated by my own script",
           "; @launch grid=(256,1,1) block=(512,1,1) lds=163840"])
class VM:
    def __init__(self): self.n = 0
    def op(self, s): a(s); self.n += 1; return self.n
    def cnt(self, i): return min(self.n - i, 63)
    def wait(self, i, extra=""): a(f"s_waitcnt vmcnt({self.cnt(i)}){extra}")
def stamp(i, det=False):
    if not STAMP: return
    if opt("kq") and MSIDE:
        if det == "kq" or (i in (3, 4, 10) and not det): a(f"s_memtime s[{80+2*i}:{81+2*i}]")
        return
    if det == "kq": return
    if opt("s2") and MSIDE and (i in (1, 2, 3, 4, 5, 6)) != det: return
    if det and not opt("s2"): return
    a(("s_memrealtime" if opt("rt") else "s_memtime") + f" s[{80+2*i}:{81+2*i}]")
def dump_stamps():
    if not STAMP: return
    if opt("enc"):
        wg, i0, i1 = [int(x) for x in str(opt("enc")).split(":")]
        if wg >= 0: a(f"s_cmp_eq_u32 s2, {wg}\ns_cbranch_scc0 EN_d")
        a(f"s_cmp_eq_u32 s28, 0\ns_cbranch_scc0 EN_d\ns_waitcnt lgkmcnt(0)\ns_sub_u32 s30, s{80+2*i1}, s{80+2*i0}\ns_min_u32 s30, s30, 5000\ns_mul_i32 s30, s30, 10")
        a("EN_l:\ns_memrealtime s[32:33]\ns_waitcnt lgkmcnt(0)\ns_sub_u32 s32, s32, s100\ns_cmp_lt_u32 s32, s30\ns_cbranch_scc1 EN_l\nEN_d:")
        return
    a("s_waitcnt lgkmcnt(0)\ns_memrealtime s[30:31]\ns_waitcnt lgkmcnt(0)")
    for i in range(16):
        a(f"v_mov_b32 v{i+32}, " + (f"s{80+2*i}" if i < 11 else {15: "s30", 14: "s27", 13: "s0"}.get(i, "0")))
    a(f"s_lshl_b32 s30, s2, 3\ns_add_u32 s30, s30, s28\ns_lshl_b32 s30, s30, 6\ns_add_u32 s30, s30, {ST_OFF}\nv_mov_b32 v1, 0")
    for q in range(4): a(f"buffer_store_dwordx4 v[{32+4*q}:{35+4*q}], v1, s[44:47], s30 offen offset:{16*q}")
uid = 0
def lab():
    global uid; uid += 1; return uid
def pr(r): return f"v[{r}:{r+1}]"
def q4(r): return f"v[{r}:{r+3}]"
def poll(vt, voff, soff):
    u = lab()
    a(f"s_mov_b32 s67, 0\nPL{u}:\nbuffer_load_dwordx2 {pr(vt)}, {voff}, s[44:47], {soff} offen sc1\ns_waitcnt vmcnt(0)")
    a(f"v_cmp_eq_u64 vcc, s[22:23], {pr(vt)}\ns_add_u32 s67, s67, 1\ns_nop 0\ns_cmp_eq_u64 vcc, -1\ns_cbranch_scc1 PD{u}")
    a(f"s_cmp_lt_u32 s67, {SPIN}\ns_cbranch_scc1 PL{u}\nPD{u}:")
def setflag(vt, vlane16, soff, wide=False):
    if wide and FW:
        a(f"s_mov_b64 exec, {(1 << FW) - 1}\nbuffer_store_dwordx4 {q4(vt)}, {vlane16}, s[44:47], {soff} offen sc1\ns_mov_b64 exec, -1"); return
    a(f"s_mov_b64 exec, 1\nbuffer_store_dwordx2 {pr(vt)}, {vlane16}, s[44:47], {soff} offen sc1\ns_mov_b64 exec, -1")
def tag_load(): a(f"s_mov_b32 s67, {X_OFF}\ns_load_dwordx2 s[22:23], s[24:25], s67")
def tag_make(): a("s_add_u32 s22, s22, 0x7f4a7c15\ns_addc_u32 s23, s23, 0x9e3779b9")
def mapping():
    a("""s_and_b32 s30, s2, 1
s_lshr_b32 s31, s2, 3
s_bfe_u32 s52, s2, 0x20001
s_lshl_b32 s30, s30, 5
s_add_u32 s30, s30, s31
s_cmp_eq_u32 s52, 3
s_cselect_b32 s54, 52, 43
s_cselect_b32 s55, 5, 6
s_cselect_b32 s56, 55, 54
s_mul_i32 s26, s30, s54
s_lshr_b32 s26, s26, 8
s_mul_i32 s31, s26, s55
s_sub_u32 s27, s30, s31
s_sub_u32 s57, s30, s56
s_cmp_ge_u32 s57, 5
s_cselect_b32 s58, 10, 9
s_cselect_b32 s31, 5, 0
s_sub_u32 s59, s57, s31
s_and_b32 s60, s57, 1
s_add_u32 s60, s60, 9
s_lshr_b32 s61, s57, 1
s_cmp_eq_u32 s52, 3
s_cselect_b32 s58, s60, s58
s_cselect_b32 s59, 5, s59
s_cselect_b32 s61, s61, s52
s_cmp_lt_u32 s30, s56
s_cselect_b32 s26, s26, s58
s_cselect_b32 s27, s27, s59
s_cselect_b32 s52, s52, s61
s_lshl_b32 s52, s52, 1
s_add_u32 s31, s52, 6
s_cmp_lt_u32 s27, 2
s_cselect_b32 s31, 0, s31
s_add_u32 s27, s27, s52
s_add_u32 s27, s27, s31
s_min_u32 s27, s27, 23""")
def toktile(dst, th, t):
    a(f"s_and_b32 {dst}, s2, 7\ns_lshl_b32 {dst}, {dst}, 3\ns_lshr_b32 {t}, s2, 6\ns_lshl_b32 {t}, {t}, 1\ns_add_u32 {dst}, {dst}, {t}\ns_add_u32 {dst}, {dst}, {th}")
VFA = 250; VFO = 251
def fin_setup(t0, t1):
    srd(a, 48, 20, 2048*1024)
    a(f"v_lshrrev_b32 {t0}, 3, v0\ns_lshl_b32 s42, s28, 3\nv_add_u32 {t0}, s42, {t0}\nv_and_b32 {t1}, 7, v0\nv_mul_u32_u24 v{VFA}, {PIT}, {t0}\nv_lshl_add_u32 v{VFA}, {t1}, 5, v{VFA}")
    a(f"v_lshlrev_b32 {t0}, 10, {t0}\nv_lshl_add_u32 v{VFO}, {t1}, 4, {t0}")
    a("s_and_b32 s42, s2, 7\ns_lshl_b32 s42, s42, 2\ns_lshr_b32 s43, s2, 6\ns_add_u32 s42, s42, s43\ns_lshl_b32 s42, s42, 16\ns_bfe_u32 s43, s2, 0x30003\ns_lshl_b32 s43, s43, 7\ns_add_u32 s42, s42, s43")

a(".p2align 12")
kstart(a, K)
a("s_cmp_ge_u32 s2, 256\ns_cbranch_scc1 L_exit")
stamp(0)
a("v_lshrrev_b32 v1, 6, v0\ns_load_dwordx16 s[4:19], s[0:1], 0\nv_readfirstlane_b32 s28, v1\ns_load_dwordx2 s[20:21], s[0:1], 64\ns_load_dwordx2 s[24:25], s[0:1], 80")
if STAMP: a("s_memrealtime s[0:1]")
VL = 228
a(f"v_and_b32 v0, 63, v0\nv_lshlrev_b32 v{VL}, 4, v0\ns_cmp_ge_u32 s28, 4\ns_cbranch_scc1 L_start")
a("s_getpc_b64 s[48:49]\nM_pc:\ns_and_b32 s49, s49, 0xffff\ns_mov_b32 s50, L_codeend-M_pc\ns_mov_b32 s51, 0x00020000")
a("s_lshr_b32 s30, s2, 3\ns_lshl_b32 s30, s30, 2\ns_add_u32 s30, s30, s28\ns_mul_i32 s30, s30, 192")
for i in range(3): a(f"s_buffer_load_dword s3, s[48:51], s30 offset:{64*i}")
a("s_branch M_start")
a("L_start:\ns_setprio 3")
mapping()
a("s_sub_u32 s52, s28, 4\ns_mul_i32 s29, s26, 192")
a("v_lshrrev_b32 v2, 3, v0\nv_and_b32 v3, 7, v0\nv_lshrrev_b32 v4, 4, v0")
a("s_mul_i32 s54, s52, 48\ns_add_u32 s54, s54, s29\ns_lshl_b32 s54, s54, 10\ns_cmp_eq_u32 s27, 23\ns_cselect_b32 s54, 0x40000000, s54")
a("v_xor_b32 v5, v3, v4\nv_lshl_add_u32 v5, v5, 4, s54\nv_lshl_add_u32 v16, v2, 10, v5\nv_xor_b32 v7, 64, v16")
for i in range(1, 6): a(f"v_add_u32 v{16+i}, {i*8192}, v{16 if i%2==0 else 7}")
a("s_mul_i32 s53, s52, 6144")
a({"0": "s_mov_b32 s65, 0",
   "a": "s_and_b32 s65, s26, 1\ns_lshl_b32 s65, s65, 1\ns_and_b32 s31, s2, 1\ns_add_u32 s65, s65, s31\ns_lshl_b32 s65, s65, 1",
   "c": "s_and_b32 s65, s2, 1\ns_lshl_b32 s65, s65, 2"}[ROT])
a("s_lshl_b32 s54, s65, 7")
a("s_mov_b32 s34, 0x200000\ns_mov_b32 s35, 0x00020000\ns_mov_b32 s39, s35\ns_mov_b32 s43, s35\ns_mov_b32 s51, s35\ns_movk_i32 s50, 0x400")
a("s_lshl_b32 s66, s2, 13\ns_lshl_b32 s31, s52, 11\ns_add_u32 s66, s66, s31")
a("s_cmp_lt_u32 s27, 8\ns_cbranch_scc1 L_qkv")
a("s_cmp_eq_u32 s27, 22\ns_cselect_b32 s31, 4, 12\ns_cmp_eq_u32 s27, 23\ns_cselect_b32 s31, 0, s31\nv_bfrev_b32 v11, 2")
for i in range(3):
    a(f"v_add_u32 v8, {64*i}, v0\nv_mul_u32_u24 v9, 43691, v8\nv_lshrrev_b32 v9, 19, v9\nv_mul_u32_u24 v10, 12, v9\nv_sub_u32 v10, v8, v10\nv_cmp_gt_u32 vcc, s31, v10")
    a(f"v_lshrrev_b32 v8, 2, v9\nv_and_b32 v8, 2, v8\nv_xor_b32 v10, v10, v8\nv_mul_u32_u24 v9, 2752, v9\nv_lshl_add_u32 v9, v10, 4, v9\nv_cndmask_b32 v{22+i}, v11, v9, vcc\nv_cndmask_b32 v{25+i}, v11, v9, vcc")
a(f"s_sub_u32 s3, s27, 8\ns_mul_i32 s3, s3, 192\ns_mul_i32 s67, s52, {16*2752}\ns_add_u32 s3, s3, s67\ns_mov_b32 s56, {64*2752}")
a(f"s_mul_i32 s67, s52, 3072\ns_add_u32 s57, s67, {XIMG}")
for i in range(1, 6): a(f"s_add_u32 s{57+i}, s57, {(i%3)*1024 + (W3OFF if i>=3 else 0)}")
a(f"s_mov_b32 s38, {512*2752}\ns_mov_b32 s30, {LOG2E}\ns_mul_i32 s55, s65, s56\ns_add_u32 s55, s55, s3\ns_mov_b32 s42, s38")
a("s_waitcnt lgkmcnt(0)")
a("s_mov_b32 s36, s12\ns_and_b32 s37, s13, 0xffff\ns_mov_b32 s40, s14\ns_and_b32 s41, s15, 0xffff")
a("s_branch L_go")
a("L_qkv:")
a("v_and_b32 v8, 1, v4\nv_lshlrev_b32 v8, 2, v8\nv_xor_b32 v8, v8, v3\nv_mul_u32_u24 v9, 3072, v2\nv_lshl_add_u32 v22, v8, 4, v9\nv_xor_b32 v8, 32, v22")
for i in range(1, 6): a(f"v_add_u32 v{22+i}, {(i//2)*1024 + (i%2)*8*3072}, v{8 if i%2 else 22}")
a(f"s_lshl_b32 s3, s27, 7\ns_mul_i32 s67, s52, {16*3072}\ns_add_u32 s3, s3, s67\ns_mov_b32 s56, {64*3072}")
a(f"s_lshl_b32 s67, s52, 11\ns_add_u32 s57, s67, {XIMG}")
for i in range(1, 6): a(f"s_add_u32 s{57+i}, s57, {(i//2)*8192 + (i%2)*1024}")
a(f"s_mov_b32 s38, {512*3072}\ns_mov_b32 s30, {NLOG2E}\ns_mul_i32 s55, s65, s56\ns_add_u32 s55, s55, s3\ns_mov_b32 s42, s38")
a("s_waitcnt lgkmcnt(0)")
a("s_mov_b32 s36, s6\ns_and_b32 s37, s7, 0xffff\ns_mov_b32 s40, s6\ns_and_b32 s41, s7, 0xffff")
a("L_go:")
a("s_mov_b32 s32, s4\ns_and_b32 s33, s5, 0xffff\ns_mov_b32 s48, s18\ns_and_b32 s49, s19, 0xffff")
stamp(1)
vm = VM()
def dma(q, c):
    sl = (c % 3) * SLOT
    if q < 6: a(f"s_add_u32 m0, s53, {sl + q*1024}\ns_nop 0"); return vm.op(f"buffer_load_dwordx4 v{16+q}, s[32:35], s54 offen lds")
    i = q - 6
    a(f"s_add_u32 m0, s{57+i}, {sl}\ns_nop 0"); return vm.op(f"buffer_load_dwordx4 v{22+i}, s[{36 if i<3 else 40}:{39 if i<3 else 43}], s55 offen lds")
def adv(): a("s_add_u32 s54, s54, 128\ns_add_u32 s55, s55, s56\ns_and_b32 s54, s54, 0x3ff\ns_cselect_b32 s55, s55, s3")
OV = 32; GR = 120
for q in range(20):
    if q == XPOS:
        vm.op(f"buffer_load_dwordx4 {q4(GR+4)}, v{VL}, s[32:35], s66 offen"); vm.op(f"buffer_load_dwordx4 {q4(GR+8)}, v{VL}, s[32:35], s66 offen offset:1024")
        gl = vm.op(f"buffer_load_dwordx4 {q4(GR)}, v{VL}, s[48:51], 0 offen")
    if q == 2:
        tag_load(); a(f"s_lshl_b32 s67, s2, 6\ns_add_u32 s67, s67, {S_OFF}\ns_load_dword s10, s[24:25], s67")
    if q == 12: srd(a, 44, 24, WSB); srd(a, 72, 8, 512*1024); srd(a, 68, 16, 1376*1024); adv()
    if q < 12: last = dma(q, 0)
    else: dma(q - 12, 1)
def gate_dots():
    a("v_mov_b32 v8, 0\nv_mov_b32 v9, 0")
    for d in range(4): a(f"v_dot2c_f32_bf16 v8, v{GR+4+d}, v{GR+d}\nv_dot2c_f32_bf16 v9, v{GR+8+d}, v{GR+d}")
    a(f"s_lshr_b32 s66, s66, 7\ns_add_u32 s66, s66, {S_OFF - 63*16}\ns_nop 0")
    for ctl in ["quad_perm:[1,0,3,2] row_mask:0xf", "quad_perm:[2,3,0,1] row_mask:0xf", "row_half_mirror row_mask:0xf", "row_mirror row_mask:0xf", "row_bcast:15 row_mask:0xa", "row_bcast:31 row_mask:0xc"]:
        a(f"v_add_f32_dpp v8, v8, v8 {ctl} bank_mask:0xf\nv_add_f32_dpp v9, v9, v9 {ctl} bank_mask:0xf\ns_nop 0")
    a("v_mov_b32 v10, s22\nv_mov_b32 v11, s23")
a("s_waitcnt lgkmcnt(0)"); tag_make()
if XPOS < 6 and opt("gearly"): vm.wait(gl); gate_dots()
a("s_setprio " + str(opt("lprio", 0)))
def pf(n, srdn, off):
    for i in range(n): a(f"s_buffer_load_dword s10, s[{srdn}:{srdn+3}], {off} offset:{64*i}")
w2done = 0
for c in range(6):
    vm.wait(last); a("s_barrier")
    for q in range(8, 12): last = dma(q, c + 1)
    if c == 0:
        if not (XPOS < 6 and opt("gearly")): vm.wait(gl); gate_dots()
        a("s_brev_b64 exec, 1"); vm.op(f"buffer_store_dwordx4 v[8:11], v{VL}, s[44:47], s66 offen sc1"); a("s_mov_b64 exec, -1")
    if c == SPC:
        a("s_cmp_lt_u32 s27, 8\ns_cbranch_scc1 L_spq")
        a(f"s_lshl_b32 s67, s26, 1\ns_lshr_b32 s31, s52, 1\ns_add_u32 s67, s67, s31\ns_lshl_b32 s67, s67, 4\ns_add_u32 s67, s67, s27\ns_lshl_b32 s67, s67, 1\ns_and_b32 s31, s52, 1\ns_add_u32 s67, s67, s31\ns_lshl_b32 s67, s67, {FSH}\ns_add_u32 s67, s67, {FH - (16 << FSH)}\ns_buffer_load_dword s10, s[44:47], s67\ns_buffer_load_dword s10, s[44:47], s67 offset:64")
        a("s_branch L_spd\nL_spq:\ns_lshl_b32 s31, s27, 2\ns_add_u32 s31, s31, s52")
        a(f"s_lshl_b32 s67, s26, 5\ns_add_u32 s67, s67, s31\ns_lshl_b32 s67, s67, {FSH}\ns_add_u32 s67, s67, {FO}\ns_buffer_load_dword s10, s[44:47], s67\ns_buffer_load_dword s10, s[44:47], s67 offset:64")
        a(f"s_mul_i32 s67, s31, 11\ns_add_u32 s67, s67, s26\ns_mul_i32 s67, s67, {PSZ}\ns_add_u32 s67, s67, {P_OFF}")
        for i in range(9): a(f"s_buffer_load_dword s10, s[44:47], s67 offset:{128*i}")
        a("s_buffer_load_dword s10, s[44:47], s67 offset:1088\nL_spd:")
    if c == 2:
        a("s_bfe_u32 s31, s2, 0x30003\ns_lshr_b32 s76, s52, 1\ns_and_b32 s77, s52, 1")
        a("v_and_b32 v13, 1, v4\nv_lshlrev_b32 v13, 2, v13\nv_xor_b32 v13, v13, v3\nv_lshlrev_b32 v13, 4, v13\nv_lshl_add_u32 v28, v2, 10, v13")
        a(f"s_lshl_b32 s31, s31, 7\ns_lshl_b32 s67, s77, 13\ns_add_u32 s31, s31, s67\ns_mul_i32 s67, s76, {43*16384}\ns_add_u32 s64, s31, s67\ns_lshl_b32 s67, s76, 18\ns_add_u32 s78, s31, s67")
        a(f"s_lshl_b32 s63, s52, 10\nv_add_u32 v29, s63, v{VL}\nv_add_u32 v30, 0x10000, v29\nv_add_u32 v15, 0x20000, v29")
        toktile("s31", "s77", "s67")
        a(f"s_mul_i32 s67, s31, 86\ns_lshr_b32 s67, s67, 8\ns_lshl_b32 s79, s67, {FSH+5}\ns_add_u32 s79, s79, {FH}\ns_lshr_b32 s67, s67, 1\ns_lshl_b32 s18, s67, {FSH+5}\ns_add_u32 s18, s18, {FO}")
    if C3 == str(c):
        a("s_cmp_ge_u32 s52, 2\ns_cbranch_scc0 L_c3\nv_lshlrev_b32 v12, 10, v0\ns_lshr_b32 s67, s2, 3\ns_cmp_eq_u32 s52, 2\ns_cbranch_scc0 L_c3b")
        a(f"s_mul_i32 s67, s67, {43*1024}\ns_movk_i32 exec_hi, 0x7ff\nbuffer_load_dword v14, v12, s[68:71], s67 offen offset:384\ns_branch L_c3c\nL_c3b:")
        a("s_lshl_b32 s67, s67, 14\ns_mov_b64 exec, 0xffff\nbuffer_load_dword v14, v12, s[72:75], s67 offen offset:384\nL_c3c:\ns_mov_b64 exec, -1\nL_c3:")
    if c == 5:
        a(f"s_mul_i32 s66, s52, 24\ns_lshr_b32 s67, s29, 1\ns_add_u32 s66, s66, s67\nv_min_u32 v13, 23, v0\nv_lshlrev_b32 v12, 3, v13\nv_add_u32 v13, s66, v13\nv_min_u32 v13, 0x3ff, v13\nv_lshlrev_b32 v13, 4, v13")
        a(f"s_mul_i32 s67, s52, 192\ns_add_u32 s67, s67, {G_LDS}\nv_add_u32 v12, s67, v12\ns_mov_b32 s66, {S_OFF}")
        last = vm.op("buffer_load_dwordx4 v[8:11], v13, s[44:47], s66 offen sc1")
    if LP[c] == "o": a("s_lshl_b32 s67, s2, 2\ns_add_u32 s67, s67, s52\ns_lshl_b32 s67, s67, 9"); pf(8, 72, "s67")
    if LP[c] == "w":
        a(f"s_mul_i32 s67, s2, 5504\ns_mul_i32 s31, s52, 704\ns_add_u32 s67, s67, s31\ns_add_u32 s67, s67, {2816*w2done}"); pf(11, 68, "s67"); w2done += 1
    adv()
    for q in range(8): dma(q, c + 2)
vm.wait(last); a("s_barrier")
for q in range(8, 12): last = dma(q, 7)
wq = list(range(G1)) + list(range(43, 59)) + list(range(NA, 43)) + list(range(G1, NA))
wid = {}
def wnext(th=None):
    j = wq.pop(0)
    if opt("now"): wid[j] = vm.n; return
    b, o, s_ = ("s64", j * 16384, 68) if j < 43 else ("s78", (j - 43) * 16384, 72)
    if j < NA: a(f"s_add_u32 m0, s63, {pos(j)*4096}")
    a(f"s_add_u32 s67, {b}, {o}")
    if th is not None: a(f"s_waitcnt vmcnt({th})")
    wid[j] = vm.op(f"buffer_load_dwordx4 v28, s[{s_}:{s_+3}], s67 offen lds" if j < NA else f"buffer_load_dwordx4 {q4(OV + 4*(j-NA))}, v28, s[{s_}:{s_+3}], s67 offen")
for n in range(4): wnext()
a("s_mov_b32 s31, 0\nL_gw:\nv_cmp_eq_u64 vcc, s[22:23], v[10:11]\ns_add_u32 s31, s31, 1\ns_nop 0\ns_cmp_eq_u64 vcc, -1\ns_cbranch_scc1 L_gd")
a(f"buffer_load_dwordx4 v[8:11], v13, s[44:47], s66 offen sc1\ns_cmp_lt_u32 s31, {SPIN}\ns_waitcnt vmcnt(0)\ns_cbranch_scc1 L_gw\nL_gd:")
a("v_mul_f32 v8, s30, v8\nv_mul_f32 v9, s30, v9\nv_exp_f32 v8, v8\nv_exp_f32 v9, v9\ns_mov_b32 s67, 0x7f000000\nv_add_f32 v8, 1.0, v8\nv_add_f32 v9, 1.0, v9\nv_min_f32 v8, s67, v8\nv_min_f32 v9, s67, v9")
a("ds_write_b64 v12, v[8:9]")
assert 4 <= N6 <= G1 + NOV and N6 + N7 <= G2 + NOV
for n in range(4, N6): wnext()
a(f"v_min_u32 v12, 28, v0\nv_lshlrev_b32 v12, {FSH}, v12\nv_and_b32 v13, 31, v0\nv_lshlrev_b32 v13, {FSH}, v13\nv_mov_b32 v14, {CNT_LDS}")
vm.wait(last, " lgkmcnt(0)")
stamp(2)
a("s_barrier")
for n in range(N7): wnext(TH2)
fin_setup("v8", "v9")
stamp(3)
def ldswait(cmp, sl):
    u = lab()
    a(f"s_mov_b32 s31, 0\nLW{u}:\nds_read_b32 v8, v14\ns_add_u32 s31, s31, 1\ns_waitcnt lgkmcnt(0)\n{cmp}\ns_cmp_lt_u32 s31, {SPIN}\ns_cbranch_scc0 LD{u}\ns_cbranch_vccnz LD{u}\ns_sleep {sl}\ns_branch LW{u}\nLD{u}:")
ldswait("v_and_b32 v8, 15, v8\nv_cmp_eq_u32 vcc, 4, v8", 1)
a("s_cmp_lt_u32 s27, 8\ns_cselect_b32 s19, 4, s52")
while len(wq) > PA: wnext(TH)
a("s_cmp_lt_u32 s19, 2\ns_cbranch_scc0 L_np\nbuffer_load_dwordx2 v[8:9], v12, s[44:47], s79 offen sc1\nL_np:")
npa = 0 if opt("now") else len(wq)
while wq: wnext(TH)
stamp(4)
a("s_cmp_lt_u32 s52, 2\ns_cbranch_scc0 L_s0\ns_cmp_lt_u32 s27, 8\ns_cbranch_scc1 L_sq")
a(f"s_waitcnt vmcnt({npa})\nv_cmp_eq_u64 vcc, s[22:23], v[8:9]\ns_nop 1\ns_cmp_eq_u64 vcc, -1\ns_cbranch_scc1 L_s0\ns_branch L_sp\nL_sq:")
ldswait("v_cmp_lt_u32 vcc, 15, v8", 2)
a("L_sp:")
poll(8, "v12", "s79")
a("L_s0:")
vm.wait(wid[G1 - 1])
stamp(5)
a("s_barrier")
a("s_waitcnt vmcnt(0)\ns_barrier")
def ovwrite(n0, n1):
    for n in range(n0, n1):
        p = pos(n); a(f"ds_write_b128 v{(29, 30, 15)[p // 16]}, {q4(OV+4*n)} offset:{(p % 16) * 4096}")
ovwrite(0, B1)
stamp(6)
a("s_waitcnt lgkmcnt(0)\ns_barrier")
a("s_cmp_eq_u32 s52, 0\ns_cbranch_scc0 L_o1\nbuffer_load_dwordx2 v[8:9], v13, s[44:47], s18 offen sc1\nL_o1:")
ovwrite(B1, B2)
a("s_cbranch_scc0 L_o2\ns_waitcnt vmcnt(0)\nv_cmp_eq_u64 vcc, s[22:23], v[8:9]\ns_nop 1\ns_cmp_eq_u64 vcc, -1\ns_cbranch_scc1 L_o2")
poll(8, "v13", "s18")
a("L_o2:")
stamp(7)
a("s_waitcnt lgkmcnt(0)\ns_barrier")
if J4 >= 0: ovwrite(B2, NOV); a("s_waitcnt lgkmcnt(0)\ns_barrier")
a(f"s_lshl_b32 s67, s2, 2\ns_add_u32 s67, s67, s52\ns_cmp_eq_u32 s67, 0\ns_cbranch_scc0 L_fin\ns_mov_b32 s67, {X_OFF}\nv_mov_b32 v8, s22\nv_mov_b32 v9, s23")
setflag(8, f"v{VL}", "s67")
a("s_branch L_fin")
a("L_exit:\ns_endpgm")

FR = 144; VX = 216; VW = 218; VGA = 220; TG = 230; VZS = 232; VZG = 233; VMK = 234; VG = 236; VS = 248
WA = (221, 223, 225)
HB = 72; WF = 48
assert HB + 4 * HD <= 120
a("M_start:"); MSIDE = True
mapping()
a("s_lshr_b32 s52, s28, 1\ns_and_b32 s53, s28, 1")
a("v_and_b32 v2, 31, v0\nv_lshrrev_b32 v3, 5, v0\nv_bfe_u32 v4, v0, 1, 3\nv_and_b32 v14, 15, v0\nv_lshrrev_b32 v15, 4, v0")
a("s_mul_i32 s54, s52, 96\ns_cmp_lt_u32 s27, 8\ns_cselect_b32 s54, 0, s54\nv_add_u32 v5, s54, v14\nv_lshlrev_b32 v6, 7, v5")
a(f"v_xor_b32 v7, v15, v4\nv_lshl_add_u32 v{VX}, v7, 4, v6\nv_xor_b32 v{VX+1}, 64, v{VX}")
a(f"v_lshlrev_b32 v{VGA}, 2, v5\nv_add_u32 v{VGA}, {G_LDS}, v{VGA}")
a("v_bfe_u32 v8, v0, 4, 1\nv_bfe_u32 v9, v0, 2, 2\nv_and_b32 v10, 3, v0\nv_lshl_add_u32 v11, v15, 3, v9")
a(f"s_mov_b32 s63, 0\ns_mov_b32 s66, 0\ns_mov_b32 s65, {SLOT}")
a("v_lshl_add_u32 v13, v3, 3, v9\nv_lshrrev_b32 v12, 1, v9\nv_lshlrev_b32 v12, 6, v12\nv_lshl_add_u32 v12, v13, 7, v12\nv_lshl_add_u32 v12, v8, 5, v12\nv_lshl_add_u32 v12, v10, 3, v12")
a(f"s_lshl_b32 s57, s52, 11\nv_add_u32 v{WA[0]}, s57, v12\nv_xor_b32 v{WA[0]+1}, 64, v{WA[0]}")
for g in (1, 2): a(f"v_add_u32 v{WA[g]}, {g*0x10000}, v{WA[0]}\nv_add_u32 v{WA[g]+1}, {g*0x10000}, v{WA[0]+1}")
toktile("s60", "s53", "s62")
a(f"s_mul_i32 s60, s60, {HP*1024}\ns_mul_i32 s57, s52, {43*1024}\ns_add_u32 s76, s60, s57\ns_lshl_b32 s57, s52, 14\ns_add_u32 s78, s60, s57\ns_add_u32 s78, s78, {96*1024}")
a(f"s_lshl_b32 s56, s53, 5\nv_add_u32 v12, s56, v2\nv_mul_u32_u24 v12, {PIT}, v12\nv_lshl_add_u32 v12, v3, 4, v12\ns_mul_i32 s56, s52, {64*PIT}\ns_add_u32 s56, s56, {PART}\nv_add_u32 v227, s56, v12")
a(f"v_mov_b32 v{VS}, {CNT_LDS}\nv_mov_b32 v{VS+1}, 0\nds_write_b32 v{VS}, v{VS+1}")
a("s_waitcnt lgkmcnt(0)")
tag_load()
if WARM:
    a("s_mov_b64 exec, 0")
    for w in range(3): a(f"s_cmp_eq_u32 s28, {w}\ns_cbranch_scc1 WS_{w}")
    a("s_branch WS_3\nWRET:\ns_mov_b64 exec, -1\nWDONE:")
srd(a, 44, 24, WSB)
fin_setup("v12", "v13")
for r in range(16, 144, 2): a(f"v_mov_b64 {pr(r)}, 0")
def m_ready():
    for r in range(0, 16, 2): a(f"v_mov_b64 {pr(r)}, 0")
    a(f"v_mov_b32 v{VS+1}, 1\ns_waitcnt lgkmcnt(0)")
    tag_make()
    a(f"v_mov_b32 v{TG}, s22\nv_mov_b32 v{TG+1}, s23")
    stamp(1)
a("s_cmp_lt_u32 s27, 8\ns_cbranch_scc1 M_qkv")

def signal(): a(f"s_mov_b64 exec, 1\nds_add_u32 v{VS}, v{VS+1}\ns_mov_b64 exec, -1")
def kloop(kind, nleft):
    ffn = kind == "ffn"
    no, ni = (6, 6) if ffn else (12, 3)
    def O(o): return FR + 4 * o
    def I(st, i): return FR + 4 * no + 4 * ni * st + 4 * i
    def rx(r, ti, s): return [f"ds_read_b128 {q4(r)}, v{VX+s} offset:{2048*ti}"]
    def rw(r, k_, s):
        if ffn:
            fi, mat = k_ >> 1, k_ & 1; va = VW + (fi & 1); off = mat * W3OFF + s * 6144 + 32 * (fi & 2); st = 768
        else: va = VW; off = k_ * 8192 + s * 4096; st = 512
        return [f"ds_read_b64_tr_b16 {pr(r+2*rd)}, v{va} offset:{off + rd*st}" for rd in range(2)]
    rO = (lambda o, s: rw(O(o), o, s)) if ffn else (lambda o, s: rx(O(o), o, s))
    rI = (lambda st, i, s: rx(I(st, i), i, s)) if ffn else (lambda st, i, s: rw(I(st, i), i, s))
    def mf(o, i, st):
        if ffn: d = 24 * o + 4 * i; A, B = O(o), I(st, i)
        else:
            d = 48 * i + 4 * o; A, B = (I(st, i), O(o)) if i == 0 else (O(o), I(st, i))
        return f"v_mfma_f32_16x16x32_bf16 {q4(d)}, {q4(A)}, {q4(B)}, {q4(d)}"
    SY = int(opt("sy", 8)); NTOP = 4 if ffn else 3
    def step(s):
        ns = s ^ 1; qu = []; n = 0
        late = []; early = []
        if s == 0: late = [f"s_cmp_eq_u32 s63, {2*SLOT}", f"s_cselect_b32 s64, {(-2*SLOT) & 0xffffffff}, s65", "s_add_u32 s63, s63, s64", "s_add_u32 s66, s66, 1", "s_cmp_lt_u32 s66, 8"]
        else: early = [f"v_add_u32 v{r}, s64, v{r}" for r in ([VX, VX + 1, VW] + ([VW + 1] if ffn else []))]
        if s == 0: early, late = late, []
        a(f"s_waitcnt lgkmcnt({NTOP})")
        for o in range(no):
            for i in range(ni):
                a(mf(o, i, s)); n += 1
                if i == ni - 1: qu += rO(o, ns)
                if n < SY:
                    if early: a(early.pop(0))
                elif n == SY:
                    assert not early
                    a("s_waitcnt lgkmcnt(0)")
                    if s == 1: a("s_barrier")
                    qu = qu[:2] + sum((rI(ns, k_, ns) for k_ in range(ni)), []) + qu[2:]
                elif qu: a(qu.pop(0))
        assert len(qu) <= 1, qu
        for x in qu: a(x)
    a("s_setprio " + str(opt("mprio", 2)))
    a("s_barrier")
    stamp(2)
    first = rO(0, 0) + sum((rI(0, i, 0) for i in range(ni)), []) + sum((rO(o, 0) for o in range(1, no)), [])
    for n, x in enumerate(first):
        if n == 12: a("s_waitcnt lgkmcnt(8)")
        a(x)
    a(f"s_branch M_in_{kind}\nM_loop_{kind}:")
    step(1)
    a(f"M_in_{kind}:")
    step(0)
    a(f"s_cbranch_scc1 M_loop_{kind}")
    order = [(o, i) for o in range(no) for i in range(ni)] if ffn else [(o, i) for o in range(no) for i in (1, 2)] + [(o, 0) for o in range(no)]
    ms = [mf(o, i, 1) for o, i in order]
    gr = [f"ds_read2_b32 {pr(VG+2*i)}, v{VGA} offset0:{32*i} offset1:{32*i+16}" for i in range(3 if ffn else 6)]
    a(f"s_waitcnt lgkmcnt({NTOP})")
    for n, x in enumerate(ms[:36 - nleft]):
        a(x)
        if gr: a(gr.pop(0))
        if n == 10:
            a("s_waitcnt lgkmcnt(0)")
            if not ffn or SIG == "k": signal()
    a("M_kend_%s:" % kind)
    stamp(3)
    return ms[36 - nleft:]
def bsel(hi, n): return " op_sel:[0" + ",1" * n + "]" if hi else " op_sel_hi:[1" + ",0" * n + "]"
def swaps(o): return [f"v_permlane16_swap_b32 v{o}, v{o+2}", f"v_permlane16_swap_b32 v{o+1}, v{o+3}"]

a(f"v_mul_u32_u24 v13, 192, v11\nv_lshl_add_u32 v13, v10, 3, v13\nv_add_u32 v13, {XIMG}, v13\ns_mul_i32 s54, s53, 3\nv_xor_b32 v12, s54, v8\nv_lshl_add_u32 v{VW}, v12, 5, v13\ns_add_u32 s54, s54, 1\nv_xor_b32 v12, s54, v8\nv_lshl_add_u32 v{VW+1}, v12, 5, v13")
a(f"s_lshl_b32 s59, s26, 1\ns_add_u32 s59, s59, s52\ns_mul_i32 s56, s59, {3*HP}\ns_lshl_b32 s59, s59, {FSH+5}")
a("s_sub_u32 s60, s27, 8\ns_lshl_b32 s60, s60, 1\ns_add_u32 s60, s60, s53\ns_mul_i32 s57, s60, 3\ns_add_u32 s56, s56, s57\ns_lshl_b32 s68, s56, 10")
a(f"s_add_u32 s69, s68, {HP*1024}\ns_add_u32 s70, s68, {2*HP*1024}")
a(f"s_lshl_b32 s60, s60, {FSH}\ns_add_u32 s71, s59, s60\ns_add_u32 s71, s71, {FH}")
a(f"s_mov_b32 s30, {NLOG2E}\ns_mov_b32 s31, {NLOG2E}")
m_ready()
NL = int(opt("nl", 22)); NPK = int(opt("npk", 1 if NL else 0))
assert NL <= 22
ops = kloop("ffn", NL)
TS = (168, 180, 144, 156, 192, 204)
for fi in range(3):
    for ti in range(3):
        un = 3 * fi + ti
        d = 48 * fi + 8 * ti; u = d + 24; t = TS[un % 6]; g = pr(VG + 2 * ti)
        if un < NPK:
            for j in range(8): ops.append(f"v_mul_f32 v{t+j}, s30, v{d+j}")
            for j in range(8): ops.append(f"v_exp_f32 v{t+j}, v{t+j}")
            for j in range(8): ops.append(f"v_fma_f32 v{t+j}, v{t+j}, v{VG+2*ti+(j>>2)}, v{VG+2*ti+(j>>2)}")
        else:
            for j in range(0, 8, 2): ops.append(f"v_pk_mul_f32 {pr(t+j)}, {pr(d+j)}, s[30:31]")
            for j in range(8): ops.append(f"v_exp_f32 v{t+j}, v{t+j}")
            for j in range(0, 8, 2): ops.append(f"v_pk_fma_f32 {pr(t+j)}, {pr(t+j)}, {g}, {g}" + bsel(j >= 4, 2))
        for j in range(0, 8, 2): ops.append(f"v_pk_mul_f32 {pr(d+j)}, {pr(d+j)}, {pr(u+j)}")
        for j in range(8): ops.append(f"v_rcp_f32 v{t+j}, v{t+j}")
        for j in range(0, 8, 2): ops.append(f"v_pk_mul_f32 {pr(d+j)}, {pr(d+j)}, {pr(t+j)}")
        for j in range(4): ops.append(f"v_cvt_pk_bf16_f32 v{t+8+j}, v{d+2*j}, v{d+2*j+1}")
        ops += swaps(t + 8)
        if not opt("nost"): ops.append(f"buffer_store_dwordx4 {q4(t+8)}, v{VL}, s[44:47], s{68+ti} offen offset:{1024*fi} sc1")
print("ffn epilogue model cycles", schedule(ops, a, window=NL + 40, holdpk=True), file=sys.stderr)
stamp(4)
if SIG == "e": signal()
a("s_waitcnt vmcnt(0)")
setflag(TG, f"v{VL}", "s71", True)
if SIG == "d": signal()
stamp(5)
a("s_branch M_s2")

a("M_qkv:")
a(f"v_and_b32 v12, 2, v9\nv_or_b32 v12, v12, v8\nv_xor_b32 v12, s28, v12\nv_lshlrev_b32 v12, 5, v12\nv_lshl_add_u32 v12, v11, 7, v12\nv_lshl_add_u32 v12, v10, 3, v12\nv_add_u32 v{VW}, {XIMG}, v12")
a("s_lshl_b32 s60, s27, 2\ns_add_u32 s60, s60, s28")
a(f"s_mul_i32 s56, s26, {6*HP}\ns_add_u32 s56, s56, s60\ns_add_u32 s56, s56, 96\ns_lshl_b32 s36, s56, 10")
for ti in range(1, 6): a(f"s_add_u32 s{36+ti}, s36, {ti*HP*1024}")
a(f"s_lshl_b32 s59, s26, {FSH+5}\ns_lshl_b32 s57, s60, {FSH}\ns_add_u32 s71, s59, s57\ns_add_u32 s71, s71, {FO}")
a(f"s_mul_i32 s72, s60, {11*PSZ}\ns_add_u32 s72, s72, {P_OFF}\ns_mul_i32 s73, s26, {PSZ}\ns_add_u32 s73, s73, s72\ns_add_u32 s57, s72, {4*PSZ}\ns_add_u32 s58, s72, {8*PSZ}")
a("s_cmp_eq_u32 s26, 10\ns_cselect_b32 s75, 0, 0x3f803f80")
ONE = 252
a(f"v_lshlrev_b32 v{VZS}, 4, v15\nv_mul_u32_u24 v12, {PSZ}, v14\nv_add_u32 v{VZG}, v12, v{VZS}\nv_lshl_add_u32 v{VZS}, v14, 6, v{VZS}\nv_mov_b32 v{VMK}, 0xffffff00")
for j in range(4): a(f"v_mov_b32 v{ONE+j}, 0x3f803f80")
a(f"s_mov_b32 s30, {LOG2E}\ns_mov_b32 s31, {LOG2E}\ns_mov_b32 s3, {EPS}")
m_ready()
for i in range(4): a(f"s_bfe_u32 s{32+i}, s22, {0x80000 + 8*i}")
qm = kloop("qkv", 12)
CK = 200; CZ = 216; TP = (192, 208)
def phi8(b, t):
    o = []
    for j in range(0, 8, 2): o.append(f"v_pk_mul_f32 {pr(t+j)}, {pr(b+j)}, s[30:31]")
    for j in range(8): o.append(f"v_exp_f32 v{t+j}, v{t+j} clamp")
    for j in range(8): o.append(f"v_max_f32 v{b+j}, s3, v{b+j}")
    for j in range(0, 8, 2): o.append(f"v_pk_add_f32 {pr(b+j)}, {pr(b+j)}, {pr(t+j)}")
    for j in range(4): o.append(f"v_cvt_pk_bf16_f32 v{b+j}, v{b+2*j}, v{b+2*j+1}")
    return o
ops = []
for p in range(6):
    dk = 48 + 8 * p; dv = 96 + 8 * p
    ops += phi8(dk, TP[p & 1])
    if p == 4: ops += [f"v_mov_b32 v{ONE+j}, s75" for j in range(4)]
    for j in range(4): ops.append(f"v_cvt_pk_bf16_f32 v{dv+j}, v{dv+2*j}, v{dv+2*j+1}")
    ops.append(f"v_mfma_f32_16x16x32_bf16 {q4(CK)}, {q4(dk)}, {q4(dv)}, {q4(CK) if p else 0}")
    ops.append(f"v_mfma_f32_16x16x32_bf16 {q4(CZ)}, {q4(dk)}, {q4(ONE)}, {q4(CZ) if p else 0}")
print("k epilogue model cycles", schedule(ops, a, window=30), file=sys.stderr)
stamp(1, "kq")
a(qm[0]); a(qm[1]); a("s_nop 4")
for j in range(4): a(f"v_and_or_b32 v{CK+j}, v{CK+j}, v{VMK}, s{32+j}")
a(f"buffer_store_dwordx4 {q4(CK)}, v{VL}, s[44:47], s73 offen sc1")
for j in range(4): a(f"v_and_or_b32 v{CZ+j}, v{CZ+j}, v{VMK}, s{32+j}")
stamp(2, "kq")
ZM = 0x30003 if opt("zw") else 0x10001
a(f"s_mov_b32 exec_lo, {ZM}\ns_mov_b32 exec_hi, {ZM}\nbuffer_store_dwordx4 {q4(CZ)}, v{VZS}, s[44:47], s73 offen offset:1024 sc1\ns_mov_b64 exec, -1")
stamp(4)
a(f"v_mov_b32 v{VS+1}, 16")
GK = 48; GZ = 92; GA = 96
EZ = int(opt("ez", 2))
def zload():
    for j in range(4): a(f"v_mov_b32 v{GZ+j}, s{32+j}")
    a(f"s_add_u32 s67, s67, 1\ns_cmp_lt_u32 s67, {SPIN}\ns_cselect_b32 s62, 0xff, 0\ns_mov_b32 exec_lo, 0x7ff07ff\ns_mov_b32 exec_hi, 0x7ff07ff")
    a(f"buffer_load_dwordx4 {q4(GZ)}, v{VZG}, s[44:47], s72 offen offset:1024 sc1\ns_mov_b64 exec, -1")
a("s_mov_b32 s67, 0")
schedule(qm[2:] + sum((phi8(8 * p, TP[p & 1]) for p in range(EZ)), []), a, window=40, holdpk=True)
if EZ < 6:
    zload()
    schedule(sum((phi8(8 * p, TP[p & 1]) for p in range(EZ, 6)), []), a, window=40)
    stamp(5, "kq")
    a("s_branch M_gc")
a("M_gw:")
zload()
a("M_gc:")
def kvloads():
    for p in range(11): a(f"buffer_load_dwordx4 {q4(GK+4*p)}, v{VL}, s[44:47], {('s72', 's57', 's58')[p//4]} offen offset:{(p%4)*PSZ} sc1")
GZO = not opt("nogzo")
if not GZO: kvloads()
a(f"s_waitcnt vmcnt({0 if GZO else 11})")
for j in range(4): a(f"v_xor_b32 v{GZ+j}, s{32+j}, v{GZ+j}")
a(f"v_or3_b32 v{GA}, v{GZ}, v{GZ+1}, v{GZ+2}\nv_or_b32 v{GA}, v{GA}, v{GZ+3}\nv_and_b32 v{GA}, s62, v{GA}\nv_cmp_ne_u32 vcc, 0, v{GA}\ns_nop 0\ns_cbranch_vccnz M_gw")
if GZO: kvloads()
signal()
stamp(5); stamp(6, "kq")
for ctl in ["quad_perm:[1,0,3,2]", "quad_perm:[2,3,0,1]", "row_half_mirror", "row_mirror"]:
    for j in range(4): a(f"v_add_f32_dpp v{GZ+j}, v{GZ+j}, v{GZ+j} {ctl} row_mask:0xf bank_mask:0xf")
ZA = FR; KA = FR + 4
a(f"s_mov_b32 vcc_lo, 0x55555555\ns_mov_b32 vcc_hi, 0x55555555\nv_cvt_pk_bf16_f32 v{GZ}, v{GZ}, v{GZ+1}\nv_cvt_pk_bf16_f32 v{GZ+1}, v{GZ+2}, v{GZ+3}")
a(f"v_cndmask_b32 v{ZA}, 0, v{GZ}, vcc\nv_cndmask_b32 v{ZA+1}, 0, v{GZ+1}, vcc\nv_xor_b32 v{ZA+2}, v{ZA}, v{GZ}\nv_xor_b32 v{ZA+3}, v{ZA+1}, v{GZ+1}")
DN = 100
ops = []
for p in range(6): ops.append(f"v_mfma_f32_16x16x32_bf16 {q4(DN+4*p)}, {q4(ZA)}, {q4(8*p)}, 0")
for p in range(6):
    for h in range(2):
        r = DN + 4 * p + h; ops += [f"v_add_f32 v{r}, s3, v{r}", f"v_mul_f32 v{r}, v{r}, v{VG+2*p+h}", f"v_rcp_f32 v{r}, v{r}"]
a("s_nop 1"); schedule(ops, a)
for p in range(11):
    a(f"s_waitcnt vmcnt({10-p})")
    r = GK + 4 * p
    for j in range(4): a(f"v_xor_b32 v{r+j}, s{32+j}, v{r+j}")
    a(f"v_or3_b32 v{GA}, v{r}, v{r+1}, v{GA}\nv_or3_b32 v{GA}, v{r+2}, v{r+3}, v{GA}")
    if p:
        for j in range(0, 4, 2): a(f"v_pk_add_f32 {pr(GK+j)}, {pr(GK+j)}, {pr(r+j)}")
a(f"v_and_b32 v{GA}, s62, v{GA}\nv_cmp_ne_u32 vcc, 0, v{GA}\nv_cvt_pk_bf16_f32 v{KA}, v{GK}, v{GK+1}\nv_cvt_pk_bf16_f32 v{KA+1}, v{GK+2}, v{GK+3}\ns_cbranch_vccnz M_gw\ns_nop 0")
stamp(7, "kq"); stamp(8, "kq")
ops = []
for p in range(6):
    for h in range(2): ops.append(f"v_mfma_f32_16x16x16_bf16 {q4(48+8*p+4*h)}, {pr(KA)}, {pr(8*p+2*h)}, 0")
for p in range(6):
    n_ = 48 + 8 * p; o = 192 + 4 * p
    if p < int(opt("onp", 1)):
        for j in range(8): ops.append(f"v_mul_f32 v{n_+j}, v{n_+j}, v{DN+4*p+(j>>2)}")
    else:
        for j in range(0, 8, 2): ops.append(f"v_pk_mul_f32 {pr(n_+j)}, {pr(n_+j)}, {pr(DN+4*p)}" + bsel(j >= 4, 1))
    for j in range(4): ops.append(f"v_cvt_pk_bf16_f32 v{o+j}, v{n_+2*j}, v{n_+2*j+1}")
    ops += swaps(o)
    ops.append(f"buffer_store_dwordx4 {q4(o)}, v{VL}, s[44:47], s{36+p} offen sc1")
print("o block model cycles", schedule(ops, a, window=40, holdpk=True), file=sys.stderr)

stamp(9, "kq")
a("M_s2:")
stamp(6)
def hload(j):
    base, jj = ("s76", j) if j < 43 else ("s78", j - 43)
    if jj % 4 == 0 and jj: a(f"s_add_u32 {base}, {base}, 4096")
    a(f"buffer_load_dwordx4 {q4(HB + 4*(j % HD))}, v{VL}, s[44:47], {base} offen offset:{(jj%4)*1024} sc1")
def wreads(j):
    p = pos(j)
    return [f"ds_read_b64_tr_b16 {pr(WF + 8*(j%3) + 4*c + 2*rd)}, v{WA[p//16]+c} offset:{(p%16)*4096 + rd*512}" for c in range(2) for rd in range(2)]
a("s_barrier")
stamp(7)
for j in range(HD - 1): hload(j)
for x in wreads(0) + wreads(1): a(x)
issued = HD - 1
for j in range(59):
    bar = j in (J1, J2, J3, J4)
    h = HB + 4 * (j % HD); w = WF + 8 * (j % 3)
    c0, c1 = ("v[16:31]", "v[32:47]") if j else ("0", "0")
    a(f"s_waitcnt vmcnt({issued - 1 - j}) lgkmcnt({0 if bar or j == 58 else 4})")
    if j == 0:
        a("s_cmp_lt_u32 s27, 8\ns_cbranch_scc0 M_noflag"); setflag(TG, f"v{VL}", "s71", True); a("s_nop 2\nM_noflag:")
    a(f"v_mfma_f32_32x32x16_bf16 v[16:31], {q4(w)}, {q4(h)}, {c0}")
    if j == 0: stamp(1, True)
    if bar:
        if j != J4: stamp({J1: 2, J2: 4, J3: 6}[j], True)
        a("s_barrier")
        if j in (J1, J2): stamp({J1: 3, J2: 5}[j], True)
        if j == J3: stamp(8)
    if j + 2 < 59:
        for x in wreads(j + 2): a(x)
    a(f"v_mfma_f32_32x32x16_bf16 v[32:47], {q4(w+4)}, {q4(h)}, {c1}")
    if issued < 59: hload(issued); issued += 1
stamp(9)
a("s_nop 10")
for c in range(2):
    for q in range(4): a(f"ds_write_b128 v227, {q4(16+16*c+4*q)} offset:{c*128 + q*32}")
a("s_waitcnt lgkmcnt(0)")
a("L_fin:\ns_barrier")
a(f"ds_read_b128 v[16:19], v{VFA} offset:{PART}\nds_read_b128 v[24:27], v{VFA} offset:{PART+64*PIT}\nds_read_b128 v[20:23], v{VFA} offset:{PART+16}\nds_read_b128 v[28:31], v{VFA} offset:{PART+64*PIT+16}")
a("s_waitcnt lgkmcnt(2)\nv_pk_add_f32 v[16:17], v[16:17], v[24:25]\nv_pk_add_f32 v[18:19], v[18:19], v[26:27]\ns_waitcnt lgkmcnt(0)\nv_pk_add_f32 v[20:21], v[20:21], v[28:29]\nv_pk_add_f32 v[22:23], v[22:23], v[30:31]")
for j in range(4): a(f"v_cvt_pk_bf16_f32 v{16+j}, v{16+2*j}, v{17+2*j}")
a(f"buffer_store_dwordx4 v[16:19], v{VFO}, s[48:51], s42 offen " + str(opt("outflag", "nt")).replace("_", " ").replace("none", ""))
stamp(10)
dump_stamps()
a("s_endpgm\nL_codeend:")
if WARM:
    def isize(x):
        x = x.strip()
        if not x or x.endswith(":") or x.startswith((".", ";")): return 0
        if re.match(r"(s_nop|s_waitcnt|s_barrier|s_cbranch|s_branch|s_setprio|s_sleep)", x): return 4
        lit = any(not (-16 <= int(t, 0) <= 64) for t in re.findall(r"(?<![\w\[:.])(-?0x[0-9a-f]+|-?\d+)(?![\w\].:])", x.split(" offset")[0]))
        if re.match(r"(buffer_|ds_|v_mfma|v_pk_|v_cvt_pk|s_buffer|s_load|s_mem|v_lshl_add|v_bfe|v_or3|v_and_or|v_mul_lo|v_fma)", x) or "dpp" in x or "clamp" in x: return 8
        return 8 if lit else 4
    out = []; off = 0; nxt = int(opt("warm0", 2048)); noins = False; marks = []
    for i, x in enumerate(a.l):
        if x.startswith("M_start:") or x.startswith("M_loop_"): noins = True
        if off >= nxt and not noins and isize(x) and not a.l[i-1].strip().startswith(("s_add_u32 m0", "s_mov_b32 exec", "s_mov_b64 exec", "s_movk_i32 exec", "s_brev_b64 exec")):
            marks.append(len(out)); out.append(None); off += 4; nxt = off + WARM
        if x.startswith("WDONE:") or x.startswith("s_cbranch_scc1 M_loop_"): noins = False
        out.append(x); off += isize(x)
    n = len(marks); print("warm stubs", n, "code bytes ~", off, file=sys.stderr)
    assert off < 128 * 192
    for k_, m_ in enumerate(marks): out[m_] = f"WS_{k_}:\ns_cbranch_execz {'WS_%d' % (k_ + 4) if k_ + 4 < n else 'WRET'}"
    a.l = out
rodata(a)
kdesc(a, K, 256, 256)
open(OUT, "w").write(a.text())
```

```python
import sys, re
from asmlib import *
import sched
from sched import schedule
def opt(name, default=None):
    for x in sys.argv[1:]:
        if x == "--" + name: return True
        if x.startswith("--" + name + "="): return x.split("=", 1)[1]
    return default
STAMP = opt("stamp", False)
OUT = [x for x in sys.argv[1:] if not x.startswith("--")][0]
TH = int(opt("th", 7)); TH2 = int(opt("th2", 8))
N6 = int(opt("n6", 12)); N7 = int(opt("n7", 30))
PA = int(opt("pa", 0))
XPOS = int(opt("xpos", 0))
LP = str(opt("lp", "o-ww--"))
C3 = str(opt("c3", "4")); SPC = int(opt("spc", 1)); ROT = str(opt("rot", "a")); SIG = str(opt("sig", "d"))
WARM = int(opt("warm", 1100))
sched.PKGAP = int(opt("pkgap", 32))
SPIN = 1 << 16

SLOT = 49152; XIMG = 24576; W3OFF = 12288
NA = 39; NOV = 59 - NA; G1 = 15; G2 = 27
G_LDS = NA * 4096; CNT_LDS = G_LDS + 768
assert CNT_LDS + 64 <= 163840
HP = int(opt("hp", 129))
P_OFF = 9 << 20; FH = 10 << 20; S_OFF = (10 << 20) + (512 << 10); X_OFF = 11 << 20; ST_OFF = 12 << 20
FSH = int(opt("fsh", 6)); FW = int(opt("fw", 0))
FROW = 32 << FSH; FO = FH + 22 * FROW
PSZ = 1152; PIT = 272; PART = 6 * 4096
LOG2E = 0x3fb8aa3b; NLOG2E = 0xbfb8aa3b; EPS = 0x358637bd
WSB = 16 << 20
K = NAME + "_kernel"
def pslot(i):
    if i >= 22: i -= 20
    elif i >= 19: i -= 19
    return 12 + i if i < 7 else i - 7
def wpos(i, kh): return 38 if i == 21 else 2 * pslot(i) + kh
def wrow(i, kh):
    if i < 21: return "w2", 32 * (i + 21 * kh)
    if i == 21: return "w2", 32 * 42
    return "wo", 32 * (i - 22 + 8 * kh)
NRES = 10; NP0 = 7; S2B = int(opt("s2b", 12))
HD = int(opt("hd", 6)); LA = int(opt("la", 2))
JS = min(19 - LA, 23 - HD)

a = Asm(); MSIDE = False
header(a, ["; fused linear-attention + SwiGLU gated mix; generated by my own script",
           "; @launch grid=(256,1,1) block=(512,1,1) lds=163840"])
class VM:
    def __init__(self): self.n = 0
    def op(self, s): a(s); self.n += 1; return self.n
    def cnt(self, i): return min(self.n - i, 63)
    def wait(self, i, extra=""): a(f"s_waitcnt vmcnt({self.cnt(i)}){extra}")
def stamp(i, det=False):
    if not STAMP: return
    if opt("kq") and MSIDE:
        if det == "kq" or (i in (3, 4, 10) and not det): a(f"s_memtime s[{80+2*i}:{81+2*i}]")
        return
    if det == "kq": return
    if opt("s2") and MSIDE and (i in (1, 2, 3, 4, 5, 6)) != det: return
    if det and not opt("s2"): return
    a(("s_memrealtime" if opt("rt") else "s_memtime") + f" s[{80+2*i}:{81+2*i}]")
def dump_stamps():
    if not STAMP: return
    if opt("enc"):
        wg, i0, i1 = [int(x) for x in str(opt("enc")).split(":")]
        if wg >= 0: a(f"s_cmp_eq_u32 s2, {wg}\ns_cbranch_scc0 EN_d")
        a(f"s_cmp_eq_u32 s28, 0\ns_cbranch_scc0 EN_d\ns_waitcnt lgkmcnt(0)\ns_sub_u32 s30, s{80+2*i1}, s{80+2*i0}\ns_min_u32 s30, s30, 5000\ns_mul_i32 s30, s30, 10")
        a("EN_l:\ns_memrealtime s[32:33]\ns_waitcnt lgkmcnt(0)\ns_sub_u32 s32, s32, s100\ns_cmp_lt_u32 s32, s30\ns_cbranch_scc1 EN_l\nEN_d:")
        return
    a("s_waitcnt lgkmcnt(0)\ns_memrealtime s[30:31]\ns_waitcnt lgkmcnt(0)")
    for i in range(16):
        a(f"v_mov_b32 v{i+32}, " + (f"s{80+2*i}" if i < 11 else {15: "s30", 14: "s27", 13: "s0"}.get(i, "0")))
    a(f"s_lshl_b32 s30, s2, 3\ns_add_u32 s30, s30, s28\ns_lshl_b32 s30, s30, 6\ns_add_u32 s30, s30, {ST_OFF}\nv_mov_b32 v1, 0")
    for q in range(4): a(f"buffer_store_dwordx4 v[{32+4*q}:{35+4*q}], v1, s[44:47], s30 offen offset:{16*q}")
uid = 0
def lab():
    global uid; uid += 1; return uid
def pr(r): return f"v[{r}:{r+1}]"
def q4(r): return f"v[{r}:{r+3}]"
def poll(vt, voff, soff):
    u = lab()
    a(f"s_mov_b32 s67, 0\nPL{u}:\nbuffer_load_dwordx2 {pr(vt)}, {voff}, s[44:47], {soff} offen sc1\ns_waitcnt vmcnt(0)")
    a(f"v_cmp_eq_u64 vcc, s[22:23], {pr(vt)}\ns_add_u32 s67, s67, 1\ns_nop 0\ns_cmp_eq_u64 vcc, -1\ns_cbranch_scc1 PD{u}")
    if opt("bo"): a(f"s_sleep {opt('bo')}")
    a(f"s_cmp_lt_u32 s67, {SPIN}\ns_cbranch_scc1 PL{u}\nPD{u}:")
def setflag(vt, vlane16, soff, wide=False):
    if wide and FW:
        a(f"s_mov_b64 exec, {(1 << FW) - 1}\nbuffer_store_dwordx4 {q4(vt)}, {vlane16}, s[44:47], {soff} offen sc1\ns_mov_b64 exec, -1"); return
    a(f"s_mov_b64 exec, 1\nbuffer_store_dwordx2 {pr(vt)}, {vlane16}, s[44:47], {soff} offen sc1\ns_mov_b64 exec, -1")
def tag_load(): a(f"s_mov_b32 s67, {X_OFF}\ns_load_dwordx2 s[22:23], s[24:25], s67")
def tag_make(): a("s_add_u32 s22, s22, 0x7f4a7c15\ns_addc_u32 s23, s23, 0x9e3779b9")
def mapping():
    a("""s_and_b32 s30, s2, 1
s_lshr_b32 s31, s2, 3
s_bfe_u32 s52, s2, 0x20001
s_lshl_b32 s30, s30, 5
s_add_u32 s30, s30, s31
s_cmp_eq_u32 s52, 3
s_cselect_b32 s54, 52, 43
s_cselect_b32 s55, 5, 6
s_cselect_b32 s56, 55, 54
s_mul_i32 s26, s30, s54
s_lshr_b32 s26, s26, 8
s_mul_i32 s31, s26, s55
s_sub_u32 s27, s30, s31
s_sub_u32 s57, s30, s56
s_cmp_ge_u32 s57, 5
s_cselect_b32 s58, 10, 9
s_cselect_b32 s31, 5, 0
s_sub_u32 s59, s57, s31
s_and_b32 s60, s57, 1
s_add_u32 s60, s60, 9
s_lshr_b32 s61, s57, 1
s_cmp_eq_u32 s52, 3
s_cselect_b32 s58, s60, s58
s_cselect_b32 s59, 5, s59
s_cselect_b32 s61, s61, s52
s_cmp_lt_u32 s30, s56
s_cselect_b32 s26, s26, s58
s_cselect_b32 s27, s27, s59
s_cselect_b32 s52, s52, s61
s_lshl_b32 s52, s52, 1
s_add_u32 s31, s52, 6
s_cmp_lt_u32 s27, 2
s_cselect_b32 s31, 0, s31
s_add_u32 s27, s27, s52
s_add_u32 s27, s27, s31
s_min_u32 s27, s27, 23""")
def toktile(dst, th, t):
    a(f"s_and_b32 {dst}, s2, 7\ns_lshl_b32 {dst}, {dst}, 3\ns_lshr_b32 {t}, s2, 6\ns_lshl_b32 {t}, {t}, 1\ns_add_u32 {dst}, {dst}, {t}\ns_add_u32 {dst}, {dst}, {th}")
VFA = 254; VFO = 255
def fin_setup(t0, t1):
    srd(a, 48, 20, 2048*1024)
    a(f"v_lshrrev_b32 {t0}, 3, v0\ns_lshl_b32 s42, s28, 3\nv_add_u32 {t0}, s42, {t0}\nv_and_b32 {t1}, 7, v0\nv_mul_u32_u24 v{VFA}, {PIT}, {t0}\nv_lshl_add_u32 v{VFA}, {t1}, 5, v{VFA}")
    a(f"v_lshlrev_b32 {t0}, 10, {t0}\nv_lshl_add_u32 v{VFO}, {t1}, 4, {t0}")
    a("s_and_b32 s42, s2, 7\ns_lshl_b32 s42, s42, 2\ns_lshr_b32 s43, s2, 6\ns_add_u32 s42, s42, s43\ns_lshl_b32 s42, s42, 16\ns_bfe_u32 s43, s2, 0x30003\ns_lshl_b32 s43, s43, 7\ns_add_u32 s42, s42, s43")

a(".p2align 12")
kstart(a, K)
a("s_cmp_ge_u32 s2, 256\ns_cbranch_scc1 L_exit")
stamp(0)
a("v_lshrrev_b32 v1, 6, v0\ns_load_dwordx16 s[4:19], s[0:1], 0\nv_readfirstlane_b32 s28, v1\ns_load_dwordx2 s[20:21], s[0:1], 64\ns_load_dwordx2 s[24:25], s[0:1], 80")
if STAMP: a("s_memrealtime s[0:1]")
VL = 251
a(f"v_and_b32 v0, 63, v0\nv_lshlrev_b32 v{VL}, 4, v0\ns_cmp_ge_u32 s28, 4\ns_cbranch_scc1 L_start")
a("s_getpc_b64 s[48:49]\nM_pc:\ns_and_b32 s49, s49, 0xffff\ns_mov_b32 s50, L_codeend-M_pc\ns_mov_b32 s51, 0x00020000")
a("s_lshr_b32 s30, s2, 3\ns_lshl_b32 s30, s30, 2\ns_add_u32 s30, s30, s28\ns_mul_i32 s30, s30, 192")
for i in range(3): a(f"s_buffer_load_dword s3, s[48:51], s30 offset:{64*i}")
a("s_branch M_start")
a("L_start:\ns_setprio 3")
mapping()
a("s_sub_u32 s52, s28, 4\ns_mul_i32 s29, s26, 192")
a("v_lshrrev_b32 v2, 3, v0\nv_and_b32 v3, 7, v0\nv_lshrrev_b32 v4, 4, v0")
a("s_mul_i32 s54, s52, 48\ns_add_u32 s54, s54, s29\ns_lshl_b32 s54, s54, 10\ns_cmp_eq_u32 s27, 23\ns_cselect_b32 s54, 0x40000000, s54")
a("v_xor_b32 v5, v3, v4\nv_lshl_add_u32 v5, v5, 4, s54\nv_lshl_add_u32 v16, v2, 10, v5\nv_xor_b32 v7, 64, v16")
for i in range(1, 6): a(f"v_add_u32 v{16+i}, {i*8192}, v{16 if i%2==0 else 7}")
a("s_mul_i32 s53, s52, 6144")
a({"0": "s_mov_b32 s65, 0",
   "a": "s_and_b32 s65, s26, 1\ns_lshl_b32 s65, s65, 1\ns_and_b32 s31, s2, 1\ns_add_u32 s65, s65, s31\ns_lshl_b32 s65, s65, 1",
   "c": "s_and_b32 s65, s2, 1\ns_lshl_b32 s65, s65, 2"}[ROT])
a("s_lshl_b32 s54, s65, 7")
a("s_mov_b32 s34, 0x200000\ns_mov_b32 s35, 0x00020000\ns_mov_b32 s39, s35\ns_mov_b32 s43, s35\ns_mov_b32 s51, s35\ns_movk_i32 s50, 0x400")
a("s_lshl_b32 s66, s2, 13\ns_lshl_b32 s31, s52, 11\ns_add_u32 s66, s66, s31")
a("s_cmp_lt_u32 s27, 8\ns_cbranch_scc1 L_qkv")
a("s_cmp_eq_u32 s27, 22\ns_cselect_b32 s31, 4, 12\ns_cmp_eq_u32 s27, 23\ns_cselect_b32 s31, 0, s31\nv_bfrev_b32 v11, 2")
for i in range(3):
    a(f"v_add_u32 v8, {64*i}, v0\nv_mul_u32_u24 v9, 43691, v8\nv_lshrrev_b32 v9, 19, v9\nv_mul_u32_u24 v10, 12, v9\nv_sub_u32 v10, v8, v10\nv_cmp_gt_u32 vcc, s31, v10")
    a(f"v_lshrrev_b32 v8, 2, v9\nv_and_b32 v8, 2, v8\nv_xor_b32 v10, v10, v8\nv_mul_u32_u24 v9, 2752, v9\nv_lshl_add_u32 v9, v10, 4, v9\nv_cndmask_b32 v{22+i}, v11, v9, vcc\nv_cndmask_b32 v{25+i}, v11, v9, vcc")
a(f"s_sub_u32 s3, s27, 8\ns_mul_i32 s3, s3, 192\ns_mul_i32 s67, s52, {16*2752}\ns_add_u32 s3, s3, s67\ns_mov_b32 s56, {64*2752}")
a(f"s_mul_i32 s67, s52, 3072\ns_add_u32 s57, s67, {XIMG}")
for i in range(1, 6): a(f"s_add_u32 s{57+i}, s57, {(i%3)*1024 + (W3OFF if i>=3 else 0)}")
a(f"s_mov_b32 s38, {512*2752}\ns_mov_b32 s30, {LOG2E}\ns_mul_i32 s55, s65, s56\ns_add_u32 s55, s55, s3\ns_mov_b32 s42, s38")
a("s_waitcnt lgkmcnt(0)")
a("s_mov_b32 s36, s12\ns_and_b32 s37, s13, 0xffff\ns_mov_b32 s40, s14\ns_and_b32 s41, s15, 0xffff")
a("s_branch L_go")
a("L_qkv:")
a("v_and_b32 v8, 1, v4\nv_lshlrev_b32 v8, 2, v8\nv_xor_b32 v8, v8, v3\nv_mul_u32_u24 v9, 3072, v2\nv_lshl_add_u32 v22, v8, 4, v9\nv_xor_b32 v8, 32, v22")
for i in range(1, 6): a(f"v_add_u32 v{22+i}, {(i//2)*1024 + (i%2)*8*3072}, v{8 if i%2 else 22}")
a(f"s_lshl_b32 s3, s27, 7\ns_mul_i32 s67, s52, {16*3072}\ns_add_u32 s3, s3, s67\ns_mov_b32 s56, {64*3072}")
a(f"s_lshl_b32 s67, s52, 11\ns_add_u32 s57, s67, {XIMG}")
for i in range(1, 6): a(f"s_add_u32 s{57+i}, s57, {(i//2)*8192 + (i%2)*1024}")
a(f"s_mov_b32 s38, {512*3072}\ns_mov_b32 s30, {NLOG2E}\ns_mul_i32 s55, s65, s56\ns_add_u32 s55, s55, s3\ns_mov_b32 s42, s38")
a("s_waitcnt lgkmcnt(0)")
a("s_mov_b32 s36, s6\ns_and_b32 s37, s7, 0xffff\ns_mov_b32 s40, s6\ns_and_b32 s41, s7, 0xffff")
a("L_go:")
a("s_mov_b32 s32, s4\ns_and_b32 s33, s5, 0xffff\ns_mov_b32 s48, s18\ns_and_b32 s49, s19, 0xffff")
stamp(1)
vm = VM()
def dma(q, c):
    sl = (c % 3) * SLOT
    if q < 6: a(f"s_add_u32 m0, s53, {sl + q*1024}\ns_nop 0"); return vm.op(f"buffer_load_dwordx4 v{16+q}, s[32:35], s54 offen lds")
    i = q - 6
    a(f"s_add_u32 m0, s{57+i}, {sl}\ns_nop 0"); return vm.op(f"buffer_load_dwordx4 v{22+i}, s[{36 if i<3 else 40}:{39 if i<3 else 43}], s55 offen lds")
def adv(): a("s_add_u32 s54, s54, 128\ns_add_u32 s55, s55, s56\ns_and_b32 s54, s54, 0x3ff\ns_cselect_b32 s55, s55, s3")
OV = 32; GR = 120
for q in range(20):
    if q == XPOS:
        vm.op(f"buffer_load_dwordx4 {q4(GR+4)}, v{VL}, s[32:35], s66 offen"); vm.op(f"buffer_load_dwordx4 {q4(GR+8)}, v{VL}, s[32:35], s66 offen offset:1024")
        gl = vm.op(f"buffer_load_dwordx4 {q4(GR)}, v{VL}, s[48:51], 0 offen")
    if q == 2:
        tag_load(); a(f"s_lshl_b32 s67, s2, 6\ns_add_u32 s67, s67, {S_OFF}\ns_load_dword s10, s[24:25], s67")
    if q == 12: srd(a, 44, 24, WSB); srd(a, 72, 8, 512*1024); srd(a, 68, 16, 1376*1024); adv()
    if q < 12: last = dma(q, 0)
    else: dma(q - 12, 1)
def gate_dots():
    a("v_mov_b32 v8, 0\nv_mov_b32 v9, 0")
    for d in range(4): a(f"v_dot2c_f32_bf16 v8, v{GR+4+d}, v{GR+d}\nv_dot2c_f32_bf16 v9, v{GR+8+d}, v{GR+d}")
    a(f"s_lshr_b32 s66, s66, 7\ns_add_u32 s66, s66, {S_OFF - 63*16}\ns_nop 0")
    for ctl in ["quad_perm:[1,0,3,2] row_mask:0xf", "quad_perm:[2,3,0,1] row_mask:0xf", "row_half_mirror row_mask:0xf", "row_mirror row_mask:0xf", "row_bcast:15 row_mask:0xa", "row_bcast:31 row_mask:0xc"]:
        a(f"v_add_f32_dpp v8, v8, v8 {ctl} bank_mask:0xf\nv_add_f32_dpp v9, v9, v9 {ctl} bank_mask:0xf\ns_nop 0")
    a("v_mov_b32 v10, s22\nv_mov_b32 v11, s23")
a("s_waitcnt lgkmcnt(0)"); tag_make()
if XPOS < 6 and not opt("glate"): vm.wait(gl); gate_dots()
a("s_setprio " + str(opt("lprio", 0)))
def pf(n, srdn, off):
    for i in range(n): a(f"s_buffer_load_dword s10, s[{srdn}:{srdn+3}], {off} offset:{64*i}")
w2done = 0
KQ = [int(x) for x in str(opt("kq4", "000000"))]
ovl = [(i, kh) for i in list(range(22, 30)) + [19, 20] for kh in range(2)]; nq = 0
def wtext(j):
    mat, row = wrow(*j); s_ = 68 if mat == "w2" else 72
    return f"s_add_u32 s67, s64, {row*1024}", (f"buffer_load_dwordx4 {q4(OV + 4*ovl.index(j))}, v28, s[{s_}:{s_+3}], s67 offen" if j in ovl else f"buffer_load_dwordx4 v28, s[{s_}:{s_+3}], s67 offen lds")
for c in range(6):
    vm.wait(last); a("s_barrier")
    for q in range(8, 12): last = dma(q, c + 1)
    if c == 0:
        if not (XPOS < 6 and not opt("glate")): vm.wait(gl); gate_dots()
        a("s_brev_b64 exec, 1"); vm.op(f"buffer_store_dwordx4 v[8:11], v{VL}, s[44:47], s66 offen sc1"); a("s_mov_b64 exec, -1")
    if c == SPC:
        a("s_cmp_lt_u32 s27, 8\ns_cbranch_scc1 L_spq")
        a(f"s_lshl_b32 s67, s26, 1\ns_lshr_b32 s31, s52, 1\ns_add_u32 s67, s67, s31\ns_lshl_b32 s67, s67, 4\ns_add_u32 s67, s67, s27\ns_lshl_b32 s67, s67, 1\ns_and_b32 s31, s52, 1\ns_add_u32 s67, s67, s31\ns_lshl_b32 s67, s67, {FSH}\ns_add_u32 s67, s67, {FH - (16 << FSH)}\ns_buffer_load_dword s10, s[44:47], s67\ns_buffer_load_dword s10, s[44:47], s67 offset:64")
        a("s_branch L_spd\nL_spq:\ns_lshl_b32 s31, s27, 2\ns_add_u32 s31, s31, s52")
        a(f"s_lshl_b32 s67, s26, 5\ns_add_u32 s67, s67, s31\ns_lshl_b32 s67, s67, {FSH}\ns_add_u32 s67, s67, {FO}\ns_buffer_load_dword s10, s[44:47], s67\ns_buffer_load_dword s10, s[44:47], s67 offset:64")
        a(f"s_mul_i32 s67, s31, 11\ns_add_u32 s67, s67, s26\ns_mul_i32 s67, s67, {PSZ}\ns_add_u32 s67, s67, {P_OFF}")
        for i in range(9): a(f"s_buffer_load_dword s10, s[44:47], s67 offset:{128*i}")
        a("s_buffer_load_dword s10, s[44:47], s67 offset:1088\nL_spd:")
    if c == 2:
        a("s_bfe_u32 s31, s2, 0x30003\ns_and_b32 s77, s52, 1\ns_lshl_b32 s76, s77, 1")
        a("v_and_b32 v13, 1, v4\nv_lshlrev_b32 v13, 2, v13\nv_xor_b32 v13, v13, v3\nv_xor_b32 v13, s76, v13\nv_lshlrev_b32 v13, 4, v13\nv_lshl_add_u32 v28, v2, 10, v13")
        a("s_lshl_b32 s31, s31, 7\ns_lshl_b32 s67, s52, 13\ns_add_u32 s64, s31, s67")
        a(f"s_lshl_b32 s63, s52, 10\nv_add_u32 v29, s63, v{VL}\nv_add_u32 v30, 0x10000, v29\nv_add_u32 v15, 0x20000, v29")
        toktile("s31", "s77", "s67")
        a(f"s_mul_i32 s67, s31, 86\ns_lshr_b32 s67, s67, 8\ns_lshl_b32 s79, s67, {FSH+5}\ns_add_u32 s79, s79, {FH}\ns_lshr_b32 s67, s67, 1\ns_lshl_b32 s18, s67, {FSH+5}\ns_add_u32 s18, s18, {FO}")
    if C3 == str(c):
        a("s_cmp_ge_u32 s52, 2\ns_cbranch_scc0 L_c3\nv_lshlrev_b32 v12, 10, v0\ns_lshr_b32 s67, s2, 3\ns_cmp_eq_u32 s52, 2\ns_cbranch_scc0 L_c3b")
        a(f"s_mul_i32 s67, s67, {43*1024}\ns_movk_i32 exec_hi, 0x7ff\nbuffer_load_dword v14, v12, s[68:71], s67 offen offset:384\ns_branch L_c3c\nL_c3b:")
        a("s_lshl_b32 s67, s67, 14\ns_mov_b64 exec, 0xffff\nbuffer_load_dword v14, v12, s[72:75], s67 offen offset:384\nL_c3c:\ns_mov_b64 exec, -1\nL_c3:")
    if c == 5:
        a(f"s_mul_i32 s66, s52, 24\ns_lshr_b32 s67, s29, 1\ns_add_u32 s66, s66, s67\nv_min_u32 v13, 23, v0\nv_lshlrev_b32 v12, 3, v13\nv_add_u32 v13, s66, v13\nv_min_u32 v13, 0x3ff, v13\nv_lshlrev_b32 v13, 4, v13")
        a(f"s_mul_i32 s67, s52, 192\ns_add_u32 s67, s67, {G_LDS}\nv_add_u32 v12, s67, v12\ns_mov_b32 s66, {S_OFF}")
        last = vm.op("buffer_load_dwordx4 v[8:11], v13, s[44:47], s66 offen sc1")
    if LP[c] == "o": a("s_lshl_b32 s67, s2, 2\ns_add_u32 s67, s67, s52\ns_lshl_b32 s67, s67, 9"); pf(8, 72, "s67")
    if LP[c] == "w":
        a(f"s_mul_i32 s67, s2, 5504\ns_mul_i32 s31, s52, 704\ns_add_u32 s67, s67, s31\ns_add_u32 s67, s67, {2816*w2done}"); pf(11, 68, "s67"); w2done += 1
    adv()
    for q in range(8): dma(q, c + 2)
    if KQ[c]:
        assert c >= 2
        a(f"s_cmp_lt_u32 s27, 8\ns_cbranch_scc0 L_kq{c}")
        for j in ovl[nq:nq + KQ[c]]: a("\n".join(wtext(j)))
        nq += KQ[c]; a(f"L_kq{c}:")
vm.wait(last); a("s_barrier")
for q in range(8, 12): last = dma(q, 7)
pairs = lambda i0, i1: [(i, kh) for i in range(i0, i1) for kh in range(2)]
wq = pairs(0, 7) + [(21, 0)] + pairs(7, NRES) + ovl + pairs(NRES, 19)
wid = {}
def wnext(th=None):
    j = wq.pop(0)
    if opt("now"): wid[j] = vm.n; return
    if nq and j == ovl[0]: a("s_cmp_lt_u32 s27, 8\ns_cbranch_scc1 L_kqd")
    ad, ld = wtext(j)
    if j not in ovl: a(f"s_add_u32 m0, s63, {wpos(*j)*4096}")
    a(ad)
    if th is not None: a(f"s_waitcnt vmcnt({th})")
    if j in ovl[:nq]: a(ld)
    else: wid[j] = vm.op(ld)
    if nq and j == ovl[nq - 1]: a("L_kqd:")
assert not nq or N6 + N7 >= 21 + nq
for n in range(4): wnext()
a("s_mov_b32 s31, 0\nL_gw:\nv_cmp_eq_u64 vcc, s[22:23], v[10:11]\ns_add_u32 s31, s31, 1\ns_nop 0\ns_cmp_eq_u64 vcc, -1\ns_cbranch_scc1 L_gd")
a(f"buffer_load_dwordx4 v[8:11], v13, s[44:47], s66 offen sc1\ns_cmp_lt_u32 s31, {SPIN}\ns_waitcnt vmcnt(0)\ns_cbranch_scc1 L_gw\nL_gd:")
a("v_mul_f32 v8, s30, v8\nv_mul_f32 v9, s30, v9\nv_exp_f32 v8, v8\nv_exp_f32 v9, v9\ns_mov_b32 s67, 0x7f000000\nv_add_f32 v8, 1.0, v8\nv_add_f32 v9, 1.0, v9\nv_min_f32 v8, s67, v8\nv_min_f32 v9, s67, v9")
a("ds_write_b64 v12, v[8:9]")
assert 4 <= N6 <= G1 and N6 + N7 <= G2 + NOV
for n in range(4, N6): wnext()
a(f"v_min_u32 v12, 28, v0\nv_lshlrev_b32 v12, {FSH}, v12\nv_and_b32 v13, 31, v0\nv_lshlrev_b32 v13, {FSH}, v13\nv_mov_b32 v14, {CNT_LDS}")
vm.wait(last, " lgkmcnt(0)")
stamp(2)
a("s_barrier")
for n in range(N7): wnext(TH2)
fin_setup("v8", "v9")
stamp(3)
def ldswait(cmp, sl):
    u = lab()
    a(f"s_mov_b32 s31, 0\nLW{u}:\nds_read_b32 v8, v14\ns_add_u32 s31, s31, 1\ns_waitcnt lgkmcnt(0)\n{cmp}\ns_cmp_lt_u32 s31, {SPIN}\ns_cbranch_scc0 LD{u}\ns_cbranch_vccnz LD{u}\ns_sleep {sl}\ns_branch LW{u}\nLD{u}:")
vm.wait(wid[(NP0 - 1, 1)]); a("s_barrier")
a("s_cmp_lt_u32 s27, 8\ns_cselect_b32 s19, 4, s52")
while len(wq) > PA: wnext(TH)
if opt("nofh"): a("s_mov_b32 s19, 4")
a("s_cmp_lt_u32 s19, 2\ns_cbranch_scc0 L_np\nbuffer_load_dwordx2 v[8:9], v12, s[44:47], s79 offen sc1\nL_np:")
npa = 0 if opt("now") else len(wq)
while wq: wnext(TH)
stamp(4)
if opt("nofh"): a("s_waitcnt vmcnt(0)\ns_sleep 20\ns_branch L_s0")
a("s_cmp_lt_u32 s52, 2\ns_cbranch_scc0 L_s0\ns_cmp_lt_u32 s27, 8\ns_cbranch_scc1 L_sq")
a(f"s_waitcnt vmcnt({npa})\nv_cmp_eq_u64 vcc, s[22:23], v[8:9]\ns_nop 1\ns_cmp_eq_u64 vcc, -1\ns_cbranch_scc1 L_s0\ns_branch L_sp\nL_sq:")
ldswait("v_cmp_ne_u32 vcc, 0, v8", 2)
a("L_sp:")
poll(8, "v12", "s79")
a("L_s0:")
vm.wait(wid[(NRES - 1, 1)])
stamp(5)
a("s_barrier")
a("s_waitcnt vmcnt(0)\ns_barrier")
for n, j in enumerate(ovl):
    p = wpos(*j)
    if not opt("noovw"): a(f"ds_write_b128 v{(29, 30, 15)[p // 16]}, {q4(OV+4*n)} offset:{(p % 16) * 4096}")
stamp(6)
a("s_waitcnt lgkmcnt(0)")
if S2B: a("s_barrier")
a("s_cmp_eq_u32 s52, 0\ns_cbranch_scc0 L_o2")
poll(8, "v13", "s18")
a("L_o2:")
stamp(7)
a("s_barrier")
a(f"s_lshl_b32 s67, s2, 2\ns_add_u32 s67, s67, s52\ns_cmp_eq_u32 s67, 0\ns_cbranch_scc0 L_fin\ns_mov_b32 s67, {X_OFF}\nv_mov_b32 v8, s22\nv_mov_b32 v9, s23")
setflag(8, f"v{VL}", "s67")
a("s_branch L_fin")
a("L_exit:\ns_endpgm")

FR = 144; VX = 216; VW = 218; VGA = 220; VZS = 221; VZG = 222; VMK = 223; VG = 224; ONE = 236; VS = 240
WA = 244; VH = 248; VT = 250; TG = 252
HB = 32; RES = HB + 8 * HD
assert RES == 80
a("M_start:"); MSIDE = True
mapping()
a("s_lshr_b32 s52, s28, 1\ns_and_b32 s53, s28, 1")
a("v_and_b32 v2, 31, v0\nv_lshrrev_b32 v3, 5, v0\nv_bfe_u32 v4, v0, 1, 3\nv_and_b32 v14, 15, v0\nv_lshrrev_b32 v15, 4, v0")
a("s_mul_i32 s54, s52, 96\ns_cmp_lt_u32 s27, 8\ns_cselect_b32 s54, 0, s54\nv_add_u32 v5, s54, v14\nv_lshlrev_b32 v6, 7, v5")
a(f"v_xor_b32 v7, v15, v4\nv_lshl_add_u32 v{VX}, v7, 4, v6\nv_xor_b32 v{VX+1}, 64, v{VX}")
a(f"v_lshlrev_b32 v{VGA}, 2, v5\nv_add_u32 v{VGA}, {G_LDS}, v{VGA}")
a("v_bfe_u32 v8, v0, 4, 1\nv_bfe_u32 v9, v0, 2, 2\nv_and_b32 v10, 3, v0\nv_lshl_add_u32 v11, v15, 3, v9")
a(f"s_mov_b32 s63, 0\ns_mov_b32 s66, 0\ns_mov_b32 s65, {SLOT}")
a(f"v_and_b32 v12, 2, v9\nv_or_b32 v12, v12, v8\nv_lshlrev_b32 v12, 5, v12\nv_lshl_add_u32 v12, v11, 7, v12\nv_lshl_add_u32 v12, v10, 3, v12")
a(f"s_lshl_b32 s77, s52, 12\ns_add_u32 s57, s77, {12*8192}\nv_add_u32 v{WA}, s57, v12")
for c in (1, 2, 3): a(f"v_xor_b32 v{WA+c}, {32*c}, v{WA}")
a(f"v_lshlrev_b32 v12, 4, v14\nv_lshl_add_u32 v{VH}, v15, 9, v12\ns_lshl_b32 s79, s52, 30")
toktile("s60", "s53", "s62")
a(f"s_mul_i32 s60, s60, {HP*1024}\ns_mul_i32 s57, s52, {42*1024}\ns_add_u32 s76, s60, s57\ns_add_u32 s74, s60, {84*1024}\ns_lshl_b32 s57, s52, 14\ns_add_u32 s78, s60, s57\ns_add_u32 s78, s78, {96*1024}")
a(f"s_lshl_b32 s56, s53, 5\nv_add_u32 v12, s56, v14\nv_mul_u32_u24 v12, {PIT}, v12\nv_lshl_add_u32 v12, v15, 4, v12\ns_mul_i32 s56, s52, {64*PIT}\ns_add_u32 s56, s56, {PART}\nv_add_u32 v{VT}, s56, v12")
a(f"v_mov_b32 v{VS}, {CNT_LDS}\nv_mov_b32 v{VS+1}, 0\nds_write_b32 v{VS}, v{VS+1}")
a("s_waitcnt lgkmcnt(0)")
tag_load()
if WARM:
    a("s_mov_b64 exec, 0")
    for w in range(3): a(f"s_cmp_eq_u32 s28, {w}\ns_cbranch_scc1 WS_{w}")
    a("s_branch WS_3\nWRET:\ns_mov_b64 exec, -1\nWDONE:")
srd(a, 44, 24, WSB)
fin_setup("v12", "v13")
for r in range(16, 144, 2): a(f"v_mov_b64 {pr(r)}, 0")
def m_ready():
    for r in range(0, 16, 2): a(f"v_mov_b64 {pr(r)}, 0")
    a(f"v_mov_b32 v{VS+1}, 1\ns_waitcnt lgkmcnt(0)")
    tag_make()
    a(f"v_mov_b32 v{TG}, s22\nv_mov_b32 v{TG+1}, s23")
    stamp(1)
a("s_cmp_lt_u32 s27, 8\ns_cbranch_scc1 M_qkv")

def signal(): a(f"s_mov_b64 exec, 1\nds_add_u32 v{VS}, v{VS+1}\ns_mov_b64 exec, -1")
def kloop(kind, nleft):
    ffn = kind == "ffn"
    no, ni = (6, 6) if ffn else (12, 3)
    def O(o): return FR + 4 * o
    def I(st, i): return FR + 4 * no + 4 * ni * st + 4 * i
    def rx(r, ti, s): return [f"ds_read_b128 {q4(r)}, v{VX+s} offset:{2048*ti}"]
    def rw(r, k_, s):
        if ffn:
            fi, mat = k_ >> 1, k_ & 1; va = VW + (fi & 1); off = mat * W3OFF + s * 6144 + 32 * (fi & 2); st = 768
        else: va = VW; off = k_ * 8192 + s * 4096; st = 512
        return [f"ds_read_b64_tr_b16 {pr(r+2*rd)}, v{va} offset:{off + rd*st}" for rd in range(2)]
    rO = (lambda o, s: rw(O(o), o, s)) if ffn else (lambda o, s: rx(O(o), o, s))
    rI = (lambda st, i, s: rx(I(st, i), i, s)) if ffn else (lambda st, i, s: rw(I(st, i), i, s))
    def mf(o, i, st):
        if ffn: d = 24 * o + 4 * i; A, B = O(o), I(st, i)
        else:
            d = 48 * i + 4 * o; A, B = (I(st, i), O(o)) if i == 0 else (O(o), I(st, i))
        return f"v_mfma_f32_16x16x32_bf16 {q4(d)}, {q4(A)}, {q4(B)}, {q4(d)}"
    SY = int(opt("sy", 8)); NTOP = 4 if ffn else 3
    def step(s):
        ns = s ^ 1; qu = []; n = 0
        late = []; early = []
        if s == 0: late = [f"s_cmp_eq_u32 s63, {2*SLOT}", f"s_cselect_b32 s64, {(-2*SLOT) & 0xffffffff}, s65", "s_add_u32 s63, s63, s64", "s_add_u32 s66, s66, 1", "s_cmp_lt_u32 s66, 8"]
        else: early = [f"v_add_u32 v{r}, s64, v{r}" for r in ([VX, VX + 1, VW] + ([VW + 1] if ffn else []))]
        if s == 0: early, late = late, []
        a(f"s_waitcnt lgkmcnt({NTOP})")
        for o in range(no):
            for i in range(ni):
                a(mf(o, i, s)); n += 1
                if i == ni - 1: qu += rO(o, ns)
                if n < SY:
                    if early: a(early.pop(0))
                elif n == SY:
                    assert not early
                    a("s_waitcnt lgkmcnt(0)")
                    if s == 1: a("s_barrier")
                    qu = qu[:2] + sum((rI(ns, k_, ns) for k_ in range(ni)), []) + qu[2:]
                elif qu: a(qu.pop(0))
        assert len(qu) <= 1, qu
        for x in qu: a(x)
    a("s_setprio " + str(opt("mprio", 2)))
    a("s_barrier")
    stamp(2)
    first = rO(0, 0) + sum((rI(0, i, 0) for i in range(ni)), []) + sum((rO(o, 0) for o in range(1, no)), [])
    for n, x in enumerate(first):
        if n == 12: a("s_waitcnt lgkmcnt(8)")
        a(x)
    a(f"s_branch M_in_{kind}\nM_loop_{kind}:")
    step(1)
    a(f"M_in_{kind}:")
    step(0)
    a(f"s_cbranch_scc1 M_loop_{kind}")
    order = [(o, i) for o in range(no) for i in range(ni)] if ffn else [(o, i) for o in range(no) for i in (1, 2)] + [(o, 0) for o in range(no)]
    ms = [mf(o, i, 1) for o, i in order]
    gr = [f"ds_read2_b32 {pr(VG+2*i)}, v{VGA} offset0:{32*i} offset1:{32*i+16}" for i in range(3 if ffn else 6)]
    a(f"s_waitcnt lgkmcnt({NTOP})")
    for n, x in enumerate(ms[:36 - nleft]):
        a(x)
        if gr: a(gr.pop(0))
        if n == 10:
            a("s_waitcnt lgkmcnt(0)")
    a("M_kend_%s:" % kind)
    stamp(3)
    return ms[36 - nleft:]
def bsel(hi, n): return " op_sel:[0" + ",1" * n + "]" if hi else " op_sel_hi:[1" + ",0" * n + "]"
def swaps(o): return [f"v_permlane16_swap_b32 v{o}, v{o+2}", f"v_permlane16_swap_b32 v{o+1}, v{o+3}"]

wbase = [12 * 8192, True]
def wreg(i): return RES + 16 * (i if i < NRES else i % (LA + 1))
def wreads(i):
    o = []; tgt = 38 * 4096 if i == 21 else pslot(i) * 8192
    if (i != 21) != wbase[1]:
        o += [f"v_{'add' if i != 21 else 'subrev'}_u32 v{WA+c}, s77, v{WA+c}" for c in range(4)]; wbase[1] = i != 21
    if not 0 <= tgt - wbase[0] <= 65536 - 1024:
        nb = 12 * 8192 if tgt >= 12 * 8192 else 65536 if tgt >= 65536 else 0
        o += [f"v_add_u32 v{WA+c}, {(nb - wbase[0]) & 0xffffffff}, v{WA+c}" for c in range(4)]; wbase[0] = nb
    rd = [f"ds_read_b64_tr_b16 {pr(wreg(i) + 4*c + 2*h)}, v{WA+c} offset:{tgt - wbase[0] + 512*h}" for c in range(4) for h in range(2)]
    rd[0] = "\n".join(o + rd[:1])
    return rd
def preread():
    for i in range(NP0):
        for x in wreads(i): a(x)

a(f"v_mul_u32_u24 v13, 192, v11\nv_lshl_add_u32 v13, v10, 3, v13\nv_add_u32 v13, {XIMG}, v13\ns_mul_i32 s54, s53, 3\nv_xor_b32 v12, s54, v8\nv_lshl_add_u32 v{VW}, v12, 5, v13\ns_add_u32 s54, s54, 1\nv_xor_b32 v12, s54, v8\nv_lshl_add_u32 v{VW+1}, v12, 5, v13")
a(f"s_lshl_b32 s59, s26, 1\ns_add_u32 s59, s59, s52\ns_mul_i32 s56, s59, {3*HP}\ns_lshl_b32 s59, s59, {FSH+5}")
a("s_sub_u32 s60, s27, 8\ns_lshl_b32 s60, s60, 1\ns_add_u32 s60, s60, s53\ns_mul_i32 s57, s60, 3\ns_add_u32 s56, s56, s57\ns_lshl_b32 s68, s56, 10")
a(f"s_add_u32 s69, s68, {HP*1024}\ns_add_u32 s70, s68, {2*HP*1024}")
a(f"s_lshl_b32 s60, s60, {FSH}\ns_add_u32 s71, s59, s60\ns_add_u32 s71, s71, {FH}")
a(f"s_mov_b32 s30, {NLOG2E}\ns_mov_b32 s31, {NLOG2E}")
m_ready()
NL = int(opt("nl", 22)); NPK = int(opt("npk", 1 if NL else 0))
assert NL <= 22
ops = kloop("ffn", NL)
TS = (168, 180, 144, 156, 192, 204)
for fi in range(3):
    for ti in range(3):
        un = 3 * fi + ti
        d = 48 * fi + 8 * ti; u = d + 24; t = TS[un % 6]; g = pr(VG + 2 * ti)
        if un < NPK:
            for j in range(8): ops.append(f"v_mul_f32 v{t+j}, s30, v{d+j}")
            for j in range(8): ops.append(f"v_exp_f32 v{t+j}, v{t+j}")
            for j in range(8): ops.append(f"v_fma_f32 v{t+j}, v{t+j}, v{VG+2*ti+(j>>2)}, v{VG+2*ti+(j>>2)}")
        else:
            for j in range(0, 8, 2): ops.append(f"v_pk_mul_f32 {pr(t+j)}, {pr(d+j)}, s[30:31]")
            for j in range(8): ops.append(f"v_exp_f32 v{t+j}, v{t+j}")
            for j in range(0, 8, 2): ops.append(f"v_pk_fma_f32 {pr(t+j)}, {pr(t+j)}, {g}, {g}" + bsel(j >= 4, 2))
        for j in range(0, 8, 2): ops.append(f"v_pk_mul_f32 {pr(d+j)}, {pr(d+j)}, {pr(u+j)}")
        for j in range(8): ops.append(f"v_rcp_f32 v{t+j}, v{t+j}")
        for j in range(0, 8, 2): ops.append(f"v_pk_mul_f32 {pr(d+j)}, {pr(d+j)}, {pr(t+j)}")
        for j in range(4): ops.append(f"v_cvt_pk_bf16_f32 v{t+8+j}, v{d+2*j}, v{d+2*j+1}")
        ops += swaps(t + 8)
        if not opt("nost"): ops.append(f"buffer_store_dwordx4 {q4(t+8)}, v{VL}, s[44:47], s{68+ti} offen offset:{1024*fi} sc1")
print("ffn epilogue model cycles", schedule(ops, a, window=NL + 40, holdpk=True), file=sys.stderr)
stamp(4)
if SIG == "e": a("s_barrier"); preread()
a("s_waitcnt vmcnt(0)")
setflag(TG, f"v{VL}", "s71", True)
stamp(5)
if SIG == "d": a("s_barrier"); preread()
a("s_branch M_s2")

a("M_qkv:")
a(f"v_and_b32 v12, 2, v9\nv_or_b32 v12, v12, v8\nv_xor_b32 v12, s28, v12\nv_lshlrev_b32 v12, 5, v12\nv_lshl_add_u32 v12, v11, 7, v12\nv_lshl_add_u32 v12, v10, 3, v12\nv_add_u32 v{VW}, {XIMG}, v12")
a("s_lshl_b32 s60, s27, 2\ns_add_u32 s60, s60, s28")
a(f"s_mul_i32 s56, s26, {6*HP}\ns_add_u32 s56, s56, s60\ns_add_u32 s56, s56, 96\ns_lshl_b32 s36, s56, 10")
for ti in range(1, 6): a(f"s_add_u32 s{36+ti}, s36, {ti*HP*1024}")
a(f"s_lshl_b32 s59, s26, {FSH+5}\ns_lshl_b32 s57, s60, {FSH}\ns_add_u32 s71, s59, s57\ns_add_u32 s71, s71, {FO}")
a(f"s_mul_i32 s72, s60, {11*PSZ}\ns_add_u32 s72, s72, {P_OFF}\ns_mul_i32 s73, s26, {PSZ}\ns_add_u32 s73, s73, s72\ns_add_u32 s57, s72, {4*PSZ}\ns_add_u32 s58, s72, {8*PSZ}")
a("s_cmp_eq_u32 s26, 10\ns_cselect_b32 s75, 0, 0x3f803f80")
a(f"v_lshlrev_b32 v{VZS}, 4, v15\nv_mul_u32_u24 v12, {PSZ}, v14\nv_add_u32 v{VZG}, v12, v{VZS}\nv_lshl_add_u32 v{VZS}, v14, 6, v{VZS}\nv_mov_b32 v{VMK}, 0xffffff00")
for j in range(4): a(f"v_mov_b32 v{ONE+j}, 0x3f803f80")
a(f"s_mov_b32 s30, {LOG2E}\ns_mov_b32 s31, {LOG2E}\ns_mov_b32 s3, {EPS}")
m_ready()
for i in range(4): a(f"s_bfe_u32 s{32+i}, s22, {0x80000 + 8*i}")
qm = kloop("qkv", 12)
CK = 200; CZ = 216; TP = (192, 208)
def phi8(b, t, dst=None):
    if dst is None: dst = b
    o = []
    for j in range(0, 8, 2): o.append(f"v_pk_mul_f32 {pr(t+j)}, {pr(b+j)}, s[30:31]")
    for j in range(8): o.append(f"v_exp_f32 v{t+j}, v{t+j} clamp")
    for j in range(8): o.append(f"v_max_f32 v{b+j}, s3, v{b+j}")
    for j in range(0, 8, 2): o.append(f"v_pk_add_f32 {pr(b+j)}, {pr(b+j)}, {pr(t+j)}")
    for j in range(4): o.append(f"v_cvt_pk_bf16_f32 v{dst+j}, v{b+2*j}, v{b+2*j+1}")
    return o
ops = []
for p in range(6):
    dk = 48 + 8 * p; dv = 96 + 8 * p
    ops += phi8(dk, TP[p & 1])
    if p == 4: ops += [f"v_mov_b32 v{ONE+j}, s75" for j in range(4)]
    for j in range(4): ops.append(f"v_cvt_pk_bf16_f32 v{dv+j}, v{dv+2*j}, v{dv+2*j+1}")
    ops.append(f"v_mfma_f32_16x16x32_bf16 {q4(CK)}, {q4(dk)}, {q4(dv)}, {q4(CK) if p else 0}")
    ops.append(f"v_mfma_f32_16x16x32_bf16 {q4(CZ)}, {q4(dk)}, {q4(ONE)}, {q4(CZ) if p else 0}")
print("k epilogue model cycles", schedule(ops, a, window=30), file=sys.stderr)
stamp(1, "kq")
a(qm[0]); a(qm[1]); a("s_nop 4")
for j in range(4): a(f"v_and_or_b32 v{CK+j}, v{CK+j}, v{VMK}, s{32+j}")
a(f"buffer_store_dwordx4 {q4(CK)}, v{VL}, s[44:47], s73 offen sc1")
for j in range(4): a(f"v_and_or_b32 v{CZ+j}, v{CZ+j}, v{VMK}, s{32+j}")
stamp(2, "kq")
ZM = 0x30003 if opt("zw") else 0x10001
a(f"s_mov_b32 exec_lo, {ZM}\ns_mov_b32 exec_hi, {ZM}\nbuffer_store_dwordx4 {q4(CZ)}, v{VZS}, s[44:47], s73 offen offset:1024 sc1\ns_mov_b64 exec, -1")
stamp(4)
a("s_barrier")
GK = 24; GZ = 72; GA = 76
EZ = int(opt("ez", 2))
def zload():
    for j in range(4): a(f"v_mov_b32 v{GZ+j}, s{32+j}")
    a(f"s_add_u32 s67, s67, 1\ns_cmp_lt_u32 s67, {SPIN}\ns_cselect_b32 s62, {0 if opt('noz') else 0xff}, 0\ns_mov_b32 exec_lo, 0x7ff07ff\ns_mov_b32 exec_hi, 0x7ff07ff")
    a(f"buffer_load_dwordx4 {q4(GZ)}, v{VZG}, s[44:47], s72 offen offset:1024 sc1\ns_mov_b64 exec, -1")
a("s_mov_b32 s67, 0")
schedule(qm[2:] + sum((phi8(8 * p, TP[p & 1], 4 * p) for p in range(EZ)), []), a, window=40, holdpk=True)
if EZ < 6:
    zload()
    schedule(sum((phi8(8 * p, TP[p & 1], 4 * p) for p in range(EZ, 6)), []), a, window=40)
    stamp(5, "kq")
    if not opt("pr2"): preread()
    a("s_branch M_gc")
a("M_gw:")
if opt("gbo"): a(f"s_sleep {opt('gbo')}")
zload()
a("M_gc:")
def kvloads():
    for p in range(11): a(f"buffer_load_dwordx4 {q4(GK+4*p)}, v{VL}, s[44:47], {('s72', 's57', 's58')[p//4]} offen offset:{(p%4)*PSZ} sc1")
GZO = not opt("nogzo")
if not GZO: kvloads()
a(f"s_waitcnt vmcnt({0 if GZO else 11})")
for j in range(4): a(f"v_xor_b32 v{GZ+j}, s{32+j}, v{GZ+j}")
a(f"v_or3_b32 v{GA}, v{GZ}, v{GZ+1}, v{GZ+2}\nv_or_b32 v{GA}, v{GA}, v{GZ+3}\nv_and_b32 v{GA}, s62, v{GA}\nv_cmp_ne_u32 vcc, 0, v{GA}\ns_nop 0\ns_cbranch_vccnz M_gw")
if GZO: kvloads()
signal()
if opt("pr2"): preread()
stamp(5); stamp(6, "kq")
for ctl in ["quad_perm:[1,0,3,2]", "quad_perm:[2,3,0,1]", "row_half_mirror", "row_mirror"]:
    for j in range(4): a(f"v_add_f32_dpp v{GZ+j}, v{GZ+j}, v{GZ+j} {ctl} row_mask:0xf bank_mask:0xf")
ZA = 216; KA = 78
a(f"s_mov_b32 vcc_lo, 0x55555555\ns_mov_b32 vcc_hi, 0x55555555\nv_cvt_pk_bf16_f32 v{GZ}, v{GZ}, v{GZ+1}\nv_cvt_pk_bf16_f32 v{GZ+1}, v{GZ+2}, v{GZ+3}")
a(f"v_cndmask_b32 v{ZA}, 0, v{GZ}, vcc\nv_cndmask_b32 v{ZA+1}, 0, v{GZ+1}, vcc\nv_xor_b32 v{ZA+2}, v{ZA}, v{GZ}\nv_xor_b32 v{ZA+3}, v{ZA+1}, v{GZ+1}")
DN = 192
ops = []
for p in range(6): ops.append(f"v_mfma_f32_16x16x32_bf16 {q4(DN+4*p)}, {q4(ZA)}, {q4(4*p)}, 0")
for p in range(6):
    for h in range(2):
        r = DN + 4 * p + h; ops += [f"v_add_f32 v{r}, s3, v{r}", f"v_mul_f32 v{r}, v{r}, v{VG+2*p+h}", f"v_rcp_f32 v{r}, v{r}"]
a("s_nop 1"); schedule(ops, a)
for p in range(11):
    a(f"s_waitcnt vmcnt({10-p})")
    r = GK + 4 * p
    for j in range(4): a(f"v_xor_b32 v{r+j}, s{32+j}, v{r+j}")
    a(f"v_or3_b32 v{GA}, v{r}, v{r+1}, v{GA}\nv_or3_b32 v{GA}, v{r+2}, v{r+3}, v{GA}")
    if p:
        for j in range(0, 4, 2): a(f"v_pk_add_f32 {pr(GK+j)}, {pr(GK+j)}, {pr(r+j)}")
a(f"v_and_b32 v{GA}, s62, v{GA}\nv_cmp_ne_u32 vcc, 0, v{GA}\nv_cvt_pk_bf16_f32 v{KA}, v{GK}, v{GK+1}\nv_cvt_pk_bf16_f32 v{KA+1}, v{GK+2}, v{GK+3}\ns_cbranch_vccnz M_gw\ns_nop 0")
stamp(7, "kq"); stamp(8, "kq")
ops = []
for p in range(6):
    for h in range(2): ops.append(f"v_mfma_f32_16x16x16_bf16 {q4(GK+8*p+4*h)}, {pr(KA)}, {pr(4*p+2*h)}, 0")
for p in range(6):
    n_ = GK + 8 * p; o = n_
    if p < int(opt("onp", 1)):
        for j in range(8): ops.append(f"v_mul_f32 v{n_+j}, v{n_+j}, v{DN+4*p+(j>>2)}")
    else:
        for j in range(0, 8, 2): ops.append(f"v_pk_mul_f32 {pr(n_+j)}, {pr(n_+j)}, {pr(DN+4*p)}" + bsel(j >= 4, 1))
    for j in range(4): ops.append(f"v_cvt_pk_bf16_f32 v{o+j}, v{n_+2*j}, v{n_+2*j+1}")
    ops += swaps(o)
    ops.append(f"buffer_store_dwordx4 {q4(o)}, v{VL}, s[44:47], s{36+p} offen sc1")
print("o block model cycles", schedule(ops, a, window=40, holdpk=True), file=sys.stderr)

stamp(9, "kq")
a("M_s2:")
stamp(6)
HLD = str(opt("hld", "sc1")).replace("none", "").replace("_", " ")
def hload(i):
    r = HB + 8 * (i % HD); o = []; va = VH
    if i == 21: base, jj = "s74", 0; va = VH + 1; o.append(f"v_add_u32 v{va}, s79, v{VH}")
    else: base, jj = ("s76", i) if i < 21 else ("s78", i - 22)
    if jj % 2 == 0 and jj: o.append(f"s_add_u32 {base}, {base}, 4096")
    ld = [f"buffer_load_dwordx4 {q4(r+4*t)}, v{va}, s[44:47], {base} offen offset:{(jj%2)*2048 + 256*t} {HLD}" for t in range(2)]
    return ["\n".join(o + ld[:1]), ld[1]]
a("s_barrier")
stamp(7)
for i in range(HD - 1):
    for x in hload(i): a(x)
NPRE = int(opt("npre", NRES))
for i in range(NP0, NPRE):
    for x in wreads(i): a(x)
issued = HD - 1; nread = NPRE
for i in range(30):
    h = HB + 8 * (i % HD); w = wreg(i)
    s1 = nread == NRES and i == NRES - NPRE
    a(f"s_waitcnt vmcnt({2 * (issued - 1 - i)})" + (" lgkmcnt(0)" if s1 or i == 29 else f" lgkmcnt({8*(LA-1)})" if i >= NRES else " lgkmcnt(8)" if i < NRES - NPRE else ""))
    if i == 0:
        a("s_cmp_lt_u32 s27, 8\ns_cbranch_scc0 M_noflag"); setflag(TG, f"v{VL}", "s71", True); a("s_nop 2\nM_noflag:")
        stamp(1, True)
    rd = []
    if nread < NRES: rd = wreads(nread); nread += 1
    elif NRES <= i + LA < 30: rd = wreads(i + LA)
    ld = []
    if issued < 30: ld = hload(issued); issued += 1
    n = 0
    for c in range(4):
        for t in range(2):
            d = 16 * t + 4 * c
            a(f"v_mfma_f32_16x16x32_bf16 {q4(d)}, {q4(w+4*c)}, {q4(h+4*t)}, {q4(d) if i else 0}")
            if n == 0 and (s1 or i == JS or (S2B and i == int(S2B))):
                st_ = (2, 3) if s1 else (6, 8) if i == JS else (4, 5)
                stamp(st_[0], True); a("s_barrier"); stamp(st_[1], st_[1] != 8)
            if LA == 1 or opt("rd2"):
                if n < 4:
                    for x in rd[2*n:2*n+2]: a(x)
                elif n in (4, 6) and ld: a(ld.pop(0))
            else:
                if rd: a(rd.pop(0))
                if n in (1, 5) and ld: a(ld.pop(0))
            n += 1
stamp(9)
a("s_nop 0")
for c in range(4):
    for t in range(2): a(f"ds_write_b128 v{VT}, {q4(16*t + 4*c)} offset:{16*t*PIT + 64*c}")
a("s_waitcnt lgkmcnt(0)")
a("L_fin:\ns_barrier")
a(f"ds_read_b128 v[16:19], v{VFA} offset:{PART}\nds_read_b128 v[24:27], v{VFA} offset:{PART+64*PIT}\nds_read_b128 v[20:23], v{VFA} offset:{PART+16}\nds_read_b128 v[28:31], v{VFA} offset:{PART+64*PIT+16}")
a("s_waitcnt lgkmcnt(2)\nv_pk_add_f32 v[16:17], v[16:17], v[24:25]\nv_pk_add_f32 v[18:19], v[18:19], v[26:27]\ns_waitcnt lgkmcnt(0)\nv_pk_add_f32 v[20:21], v[20:21], v[28:29]\nv_pk_add_f32 v[22:23], v[22:23], v[30:31]")
for j in range(4): a(f"v_cvt_pk_bf16_f32 v{16+j}, v{16+2*j}, v{17+2*j}")
a(f"buffer_store_dwordx4 v[16:19], v{VFO}, s[48:51], s42 offen " + str(opt("outflag", "nt")).replace("_", " ").replace("none", ""))
stamp(10)
dump_stamps()
a("s_endpgm\nL_codeend:")
if WARM:
    def isize(x):
        x = x.strip()
        if not x or x.endswith(":") or x.startswith((".", ";")): return 0
        if re.match(r"(s_nop|s_waitcnt|s_barrier|s_cbranch|s_branch|s_setprio|s_sleep)", x): return 4
        lit = any(not (-16 <= int(t, 0) <= 64) for t in re.findall(r"(?<![\w\[:.])(-?0x[0-9a-f]+|-?\d+)(?![\w\].:])", x.split(" offset")[0]))
        if re.match(r"(buffer_|ds_|v_mfma|v_pk_|v_cvt_pk|s_buffer|s_load|s_mem|v_lshl_add|v_bfe|v_or3|v_and_or|v_mul_lo|v_fma)", x) or "dpp" in x or "clamp" in x: return 8
        return 8 if lit else 4
    out = []; off = 0; nxt = int(opt("warm0", 2048)); noins = False; marks = []
    for i, x in enumerate(a.l):
        if x.startswith("M_start:") or x.startswith("M_loop_"): noins = True
        if off >= nxt and not noins and isize(x) and not a.l[i-1].strip().startswith(("s_add_u32 m0", "s_mov_b32 exec", "s_mov_b64 exec", "s_movk_i32 exec", "s_brev_b64 exec")):
            marks.append(len(out)); out.append(None); off += 4; nxt = off + WARM
        if x.startswith("WDONE:") or x.startswith("s_cbranch_scc1 M_loop_"): noins = False
        out.append(x); off += isize(x)
    n = len(marks); print("warm stubs", n, "code bytes ~", off, file=sys.stderr)
    assert off < 128 * 192
    for k_, m_ in enumerate(marks): out[m_] = f"WS_{k_}:\ns_cbranch_execz {'WS_%d' % (k_ + 4) if k_ + 4 < n else 'WRET'}"
    a.l = out
rodata(a)
kdesc(a, K, 256, 256)
open(OUT, "w").write(a.text())
```

```python
import sys, re
from asmlib import *
import sched
from sched import schedule
def opt(name, default=None):
    for x in sys.argv[1:]:
        if x == "--" + name: return True
        if x.startswith("--" + name + "="): return x.split("=", 1)[1]
    return default
STAMP = opt("stamp", False)
OUT = [x for x in sys.argv[1:] if not x.startswith("--")][0]
TH = int(opt("th", 7)); TH2 = int(opt("th2", 8))
N6 = int(opt("n6", 10)); N7 = int(opt("n7", 29))
PA = int(opt("pa", 0))
XPOS = int(opt("xpos", 0))
LP = str(opt("lp", "o-ww--"))
C3 = str(opt("c3", "4")); SPC = int(opt("spc", 1)); ROT = str(opt("rot", "a")); SIG = str(opt("sig", "d"))
WF = not opt("nowf")
NB = [int(x, 16) for x in str(opt("nb", "8888888"))]
QO = [int(x, 16) for x in str(opt("qo", "061728394a5b"))]
KA = str(opt("ka", "")); KN = int(opt("kn", 4))
WARM = int(opt("warm", 1100))
sched.PKGAP = int(opt("pkgap", 32))
SPIN = 1 << 16

SLOT = 49152; XIMG = 24576; W3OFF = 12288
NA = 39; NOV = 59 - NA; G1 = 15; G2 = 27
G_LDS = NA * 4096; CNT_LDS = G_LDS + 768
assert CNT_LDS + 64 <= 163840
HP = int(opt("hp", 129))
P_OFF = 9 << 20; FH = 10 << 20; S_OFF = (10 << 20) + (512 << 10); X_OFF = 11 << 20; ST_OFF = 12 << 20
FSH = int(opt("fsh", 6)); FW = int(opt("fw", 0))
FROW = 32 << FSH; FO = FH + 22 * FROW
PSZ = 1152; PIT = 272; PART = 6 * 4096
LOG2E = 0x3fb8aa3b; NLOG2E = 0xbfb8aa3b; EPS = 0x358637bd
WSB = 16 << 20
K = NAME + "_kernel"
def pslot(i):
    if i >= 22: i -= 20
    elif i >= 19: i -= 19
    return 12 + i if i < 7 else i - 7
def wpos(i, kh): return 38 if i == 21 else 2 * pslot(i) + kh
def wrow(i, kh):
    if i < 21: return "w2", 32 * (i + 21 * kh)
    if i == 21: return "w2", 32 * 42
    return "wo", 32 * (i - 22 + 8 * kh)
NRES = 10; NP0 = 7; S2B = int(opt("s2b", 12))
HD = int(opt("hd", 6)); LA = int(opt("la", 2))
JS = min(19 - LA, 23 - HD)

a = Asm(); MSIDE = False
header(a, ["; fused linear-attention + SwiGLU gated mix; generated by my own script",
           "; @launch grid=(256,1,1) block=(512,1,1) lds=163840"])
class VM:
    def __init__(self): self.n = 0
    def op(self, s): a(s); self.n += 1; return self.n
    def cnt(self, i): return min(self.n - i, 63)
    def wait(self, i, extra=""): a(f"s_waitcnt vmcnt({self.cnt(i)}){extra}")
def stamp(i, det=False):
    if not STAMP: return
    if opt("lb") and not MSIDE:
        if det == "lb" or i in (0, 1, 10): a(("s_memrealtime" if opt("rt") else "s_memtime") + f" s[{80+2*i}:{81+2*i}]")
        return
    if det == "lb": return
    if opt("kq") and MSIDE:
        if det == "kq" or (i in (3, 4, 10) and not det): a(f"s_memtime s[{80+2*i}:{81+2*i}]")
        return
    if det == "kq": return
    if opt("s2") and MSIDE and (i in (1, 2, 3, 4, 5, 6)) != det: return
    if det and not opt("s2"): return
    a(("s_memrealtime" if opt("rt") else "s_memtime") + f" s[{80+2*i}:{81+2*i}]")
def dump_stamps():
    if not STAMP: return
    if opt("enc"):
        wg, i0, i1 = [int(x) for x in str(opt("enc")).split(":")]
        if wg >= 0: a(f"s_cmp_eq_u32 s2, {wg}\ns_cbranch_scc0 EN_d")
        a(f"s_cmp_eq_u32 s28, 0\ns_cbranch_scc0 EN_d\ns_waitcnt lgkmcnt(0)\ns_sub_u32 s30, s{80+2*i1}, s{80+2*i0}\ns_min_u32 s30, s30, 5000\ns_mul_i32 s30, s30, 10")
        a("EN_l:\ns_memrealtime s[32:33]\ns_waitcnt lgkmcnt(0)\ns_sub_u32 s32, s32, s100\ns_cmp_lt_u32 s32, s30\ns_cbranch_scc1 EN_l\nEN_d:")
        return
    a("s_waitcnt lgkmcnt(0)\ns_memrealtime s[30:31]\ns_waitcnt lgkmcnt(0)")
    for i in range(16):
        a(f"v_mov_b32 v{i+32}, " + (f"s{80+2*i}" if i < 11 else {15: "s30", 14: "s27", 13: "s0"}.get(i, "0")))
    a(f"s_lshl_b32 s30, s2, 3\ns_add_u32 s30, s30, s28\ns_lshl_b32 s30, s30, 6\ns_add_u32 s30, s30, {ST_OFF}\nv_mov_b32 v1, 0\ns_mov_b64 exec, 1")
    for q in range(4): a(f"buffer_store_dwordx4 v[{32+4*q}:{35+4*q}], v1, s[44:47], s30 offen offset:{16*q} sc1")
uid = 0
def lab():
    global uid; uid += 1; return uid
def pr(r): return f"v[{r}:{r+1}]"
def q4(r): return f"v[{r}:{r+3}]"
def poll(vt, voff, soff):
    u = lab()
    a(f"s_mov_b32 s67, 0\nPL{u}:\nbuffer_load_dwordx2 {pr(vt)}, {voff}, s[44:47], {soff} offen sc1\ns_waitcnt vmcnt(0)")
    a(f"v_cmp_eq_u64 vcc, s[22:23], {pr(vt)}\ns_add_u32 s67, s67, 1\ns_nop 0\ns_cmp_eq_u64 vcc, -1\ns_cbranch_scc1 PD{u}")
    if opt("bo"): a(f"s_sleep {opt('bo')}")
    a(f"s_cmp_lt_u32 s67, {SPIN}\ns_cbranch_scc1 PL{u}\nPD{u}:")
def setflag(vt, vlane16, soff, wide=False):
    if wide and FW:
        a(f"s_mov_b64 exec, {(1 << FW) - 1}\nbuffer_store_dwordx4 {q4(vt)}, {vlane16}, s[44:47], {soff} offen sc1\ns_mov_b64 exec, -1"); return
    a(f"s_mov_b64 exec, 1\nbuffer_store_dwordx2 {pr(vt)}, {vlane16}, s[44:47], {soff} offen sc1\ns_mov_b64 exec, -1")
def tag_load(): a(f"s_mov_b32 s67, {X_OFF}\ns_load_dwordx2 s[22:23], s[24:25], s67")
def tag_make(): a("s_add_u32 s22, s22, 0x7f4a7c15\ns_addc_u32 s23, s23, 0x9e3779b9")
def mapping():
    a("""s_and_b32 s30, s2, 1
s_lshr_b32 s31, s2, 3
s_bfe_u32 s52, s2, 0x20001
s_lshl_b32 s30, s30, 5
s_add_u32 s30, s30, s31
s_cmp_eq_u32 s52, 3
s_cselect_b32 s54, 52, 43
s_cselect_b32 s55, 5, 6
s_cselect_b32 s56, 55, 54
s_mul_i32 s26, s30, s54
s_lshr_b32 s26, s26, 8
s_mul_i32 s31, s26, s55
s_sub_u32 s27, s30, s31
s_sub_u32 s57, s30, s56
s_cmp_ge_u32 s57, 5
s_cselect_b32 s58, 10, 9
s_cselect_b32 s31, 5, 0
s_sub_u32 s59, s57, s31
s_and_b32 s60, s57, 1
s_add_u32 s60, s60, 9
s_lshr_b32 s61, s57, 1
s_cmp_eq_u32 s52, 3
s_cselect_b32 s58, s60, s58
s_cselect_b32 s59, 5, s59
s_cselect_b32 s61, s61, s52
s_cmp_lt_u32 s30, s56
s_cselect_b32 s26, s26, s58
s_cselect_b32 s27, s27, s59
s_cselect_b32 s52, s52, s61
s_lshl_b32 s52, s52, 1
s_add_u32 s31, s52, 6
s_cmp_lt_u32 s27, 2
s_cselect_b32 s31, 0, s31
s_add_u32 s27, s27, s52
s_add_u32 s27, s27, s31
s_min_u32 s27, s27, 23""")
def toktile(dst, th, t):
    a(f"s_and_b32 {dst}, s2, 7\ns_lshl_b32 {dst}, {dst}, 3\ns_lshr_b32 {t}, s2, 6\ns_lshl_b32 {t}, {t}, 1\ns_add_u32 {dst}, {dst}, {t}\ns_add_u32 {dst}, {dst}, {th}")
VFA = 254; VFO = 255
def fin_setup(t0, t1):
    srd(a, 48, 20, 2048*1024)
    a(f"v_lshrrev_b32 {t0}, 3, v0\ns_lshl_b32 s42, s28, 3\nv_add_u32 {t0}, s42, {t0}\nv_and_b32 {t1}, 7, v0\nv_mul_u32_u24 v{VFA}, {PIT}, {t0}\nv_lshl_add_u32 v{VFA}, {t1}, 5, v{VFA}")
    a(f"v_lshlrev_b32 {t0}, 10, {t0}\nv_lshl_add_u32 v{VFO}, {t1}, 4, {t0}")
    a("s_and_b32 s42, s2, 7\ns_lshl_b32 s42, s42, 2\ns_lshr_b32 s43, s2, 6\ns_add_u32 s42, s42, s43\ns_lshl_b32 s42, s42, 16\ns_bfe_u32 s43, s2, 0x30003\ns_lshl_b32 s43, s43, 7\ns_add_u32 s42, s42, s43")

a(".p2align 12")
kstart(a, K)
a("s_cmp_ge_u32 s2, 256\ns_cbranch_scc1 L_exit")
stamp(0)
a("v_lshrrev_b32 v1, 6, v0\ns_load_dwordx16 s[4:19], s[0:1], 0\nv_readfirstlane_b32 s28, v1\ns_load_dwordx2 s[20:21], s[0:1], 64\ns_load_dwordx2 s[24:25], s[0:1], 80")
if STAMP: a("s_memrealtime s[0:1]")
VL = 251
a(f"v_and_b32 v0, 63, v0\nv_lshlrev_b32 v{VL}, 4, v0\ns_cmp_ge_u32 s28, 4\ns_cbranch_scc1 L_start")
a("s_getpc_b64 s[48:49]\nM_pc:\ns_and_b32 s49, s49, 0xffff\ns_mov_b32 s50, L_codeend-M_pc\ns_mov_b32 s51, 0x00020000")
a("s_lshr_b32 s30, s2, 3\ns_lshl_b32 s30, s30, 2\ns_add_u32 s30, s30, s28\ns_lshl_b32 s30, s30, 8")
for i in range(4): a(f"s_buffer_load_dword s3, s[48:51], s30 offset:{64*i}")
a("s_branch M_start")
a("L_start:\ns_setprio 3")
mapping()
a("s_sub_u32 s52, s28, 4\ns_mul_i32 s29, s26, 192")
a("v_lshrrev_b32 v2, 3, v0\nv_and_b32 v3, 7, v0\nv_lshrrev_b32 v4, 4, v0")
a("s_mul_i32 s54, s52, 48\ns_add_u32 s54, s54, s29\ns_lshl_b32 s54, s54, 10\ns_cmp_eq_u32 s27, 23\ns_cselect_b32 s54, 0x40000000, s54")
a("v_xor_b32 v5, v3, v4\nv_lshl_add_u32 v5, v5, 4, s54\nv_lshl_add_u32 v16, v2, 10, v5\nv_xor_b32 v7, 64, v16")
for i in range(1, 6): a(f"v_add_u32 v{16+i}, {i*8192}, v{16 if i%2==0 else 7}")
a("s_mul_i32 s53, s52, 6144")
a({"0": "s_mov_b32 s65, 0",
   "a": "s_and_b32 s65, s26, 1\ns_lshl_b32 s65, s65, 1\ns_and_b32 s31, s2, 1\ns_add_u32 s65, s65, s31\ns_lshl_b32 s65, s65, 1",
   "c": "s_and_b32 s65, s2, 1\ns_lshl_b32 s65, s65, 2",
   "d": "s_and_b32 s65, s26, 1\ns_lshl_b32 s65, s65, 2",
   "h": "s_and_b32 s65, s2, 1\ns_lshl_b32 s65, s65, 1\ns_and_b32 s31, s26, 1\ns_add_u32 s65, s65, s31\ns_lshl_b32 s65, s65, 1",
   "i": "s_and_b32 s65, s2, 1\ns_lshl_b32 s65, s65, 2\ns_and_b32 s31, s26, 1\ns_add_u32 s65, s65, s31",
   "j": "s_mul_i32 s65, s26, 11\ns_lshr_b32 s65, s65, 5\ns_mul_i32 s65, s65, 3\ns_sub_u32 s65, s26, s65\ns_mul_i32 s65, s65, 3"}[ROT])
a("s_lshl_b32 s54, s65, 7")
a("s_mov_b32 s34, 0x200000\ns_mov_b32 s35, 0x00020000\ns_mov_b32 s39, s35\ns_mov_b32 s43, s35\ns_mov_b32 s51, s35\ns_movk_i32 s50, 0x400")
a("s_lshl_b32 s66, s2, 13\ns_lshl_b32 s31, s52, 11\ns_add_u32 s66, s66, s31")
a("s_waitcnt lgkmcnt(0)")
a("s_mov_b32 s32, s4\ns_and_b32 s33, s5, 0xffff\ns_mov_b32 s48, s18\ns_and_b32 s49, s19, 0xffff")
stamp(1)
def wsetup():
    a("s_cmp_lt_u32 s27, 8\ns_cbranch_scc1 L_qkv")
    a("s_cmp_eq_u32 s27, 22\ns_cselect_b32 s31, 4, 12\ns_cmp_eq_u32 s27, 23\ns_cselect_b32 s31, 0, s31\nv_bfrev_b32 v11, 2")
    for i in range(3):
        a(f"v_add_u32 v8, {64*i}, v0\nv_mul_u32_u24 v9, 43691, v8\nv_lshrrev_b32 v9, 19, v9\nv_mul_u32_u24 v10, 12, v9\nv_sub_u32 v10, v8, v10\nv_cmp_gt_u32 vcc, s31, v10")
        a(f"v_lshrrev_b32 v8, 2, v9\nv_and_b32 v8, 2, v8\nv_xor_b32 v10, v10, v8\nv_mul_u32_u24 v9, 2752, v9\nv_lshl_add_u32 v9, v10, 4, v9\nv_cndmask_b32 v{22+i}, v11, v9, vcc\nv_cndmask_b32 v{25+i}, v11, v9, vcc")
    a(f"s_sub_u32 s3, s27, 8\ns_mul_i32 s3, s3, 192\ns_mul_i32 s67, s52, {16*2752}\ns_add_u32 s3, s3, s67\ns_mov_b32 s56, {64*2752}")
    a(f"s_mul_i32 s67, s52, 3072\ns_add_u32 s57, s67, {XIMG}")
    for i in range(1, 6): a(f"s_add_u32 s{57+i}, s57, {(i%3)*1024 + (W3OFF if i>=3 else 0)}")
    a(f"s_mov_b32 s38, {512*2752}\ns_mov_b32 s30, {LOG2E}\ns_mul_i32 s55, s65, s56\ns_add_u32 s55, s55, s3\ns_mov_b32 s42, s38")
    a("s_mov_b32 s36, s12\ns_and_b32 s37, s13, 0xffff\ns_mov_b32 s40, s14\ns_and_b32 s41, s15, 0xffff")
    a("s_branch L_go")
    a("L_qkv:")
    a("v_and_b32 v8, 1, v4\nv_lshlrev_b32 v8, 2, v8\nv_xor_b32 v8, v8, v3\nv_mul_u32_u24 v9, 3072, v2\nv_lshl_add_u32 v22, v8, 4, v9\nv_xor_b32 v8, 32, v22")
    for i in range(1, 6): a(f"v_add_u32 v{22+i}, {(i//2)*1024 + (i%2)*8*3072}, v{8 if i%2 else 22}")
    a(f"s_lshl_b32 s3, s27, 7\ns_mul_i32 s67, s52, {16*3072}\ns_add_u32 s3, s3, s67\ns_mov_b32 s56, {64*3072}")
    a(f"s_lshl_b32 s67, s52, 11\ns_add_u32 s57, s67, {XIMG}")
    for i in range(1, 6): a(f"s_add_u32 s{57+i}, s57, {(i//2)*8192 + (i%2)*1024}")
    a(f"s_mov_b32 s38, {512*3072}\ns_mov_b32 s30, {NLOG2E}\ns_mul_i32 s55, s65, s56\ns_add_u32 s55, s55, s3\ns_mov_b32 s42, s38")
    a("s_mov_b32 s36, s6\ns_and_b32 s37, s7, 0xffff\ns_mov_b32 s40, s6\ns_and_b32 s41, s7, 0xffff")
    a("L_go:")
vm = VM()
def dma(q, c):
    sl = (c % 3) * SLOT; q = QO[q] if c else q
    if q < 6: a(f"s_add_u32 m0, s53, {sl + q*1024}\ns_nop 0"); return vm.op(f"buffer_load_dwordx4 v{16+q}, s[32:35], s54 offen lds")
    i = q - 6
    a(f"s_add_u32 m0, s{57+i}, {sl}\ns_nop 0"); return vm.op(f"buffer_load_dwordx4 v{22+i}, s[{36 if i<3 else 40}:{39 if i<3 else 43}], s55 offen lds")
def adv(): a("s_add_u32 s54, s54, 128\ns_add_u32 s55, s55, s56\ns_and_b32 s54, s54, 0x3ff\ns_cselect_b32 s55, s55, s3")
OV = 32; GR = 120
lastof = {}
for q in range(12 + NB[0]):
    if q == XPOS:
        vm.op(f"buffer_load_dwordx4 {q4(GR+4)}, v{VL}, s[32:35], s66 offen"); vm.op(f"buffer_load_dwordx4 {q4(GR+8)}, v{VL}, s[32:35], s66 offen offset:1024")
        gl = vm.op(f"buffer_load_dwordx4 {q4(GR)}, v{VL}, s[48:51], 0 offen")
    if q == 6:
        wsetup()
        tag_load(); a(f"s_lshl_b32 s67, s2, 6\ns_add_u32 s67, s67, {S_OFF}\ns_load_dword s10, s[24:25], s67")
    if q == 12: srd(a, 44, 24, WSB); srd(a, 72, 8, 512*1024); srd(a, 68, 16, 1376*1024); adv()
    if q < 12: last = dma(q, 0)
    else: nxt = dma(q - 12, 1)
def gate_dots():
    a("v_mov_b32 v8, 0\nv_mov_b32 v9, 0")
    for d in range(4): a(f"v_dot2c_f32_bf16 v8, v{GR+4+d}, v{GR+d}\nv_dot2c_f32_bf16 v9, v{GR+8+d}, v{GR+d}")
    a(f"s_lshr_b32 s66, s66, 7\ns_add_u32 s66, s66, {S_OFF - 63*16}\ns_nop 0")
    for ctl in ["quad_perm:[1,0,3,2] row_mask:0xf", "quad_perm:[2,3,0,1] row_mask:0xf", "row_half_mirror row_mask:0xf", "row_mirror row_mask:0xf", "row_bcast:15 row_mask:0xa", "row_bcast:31 row_mask:0xc"]:
        a(f"v_add_f32_dpp v8, v8, v8 {ctl} bank_mask:0xf\nv_add_f32_dpp v9, v9, v9 {ctl} bank_mask:0xf\ns_nop 0")
    a("v_mov_b32 v10, s22\nv_mov_b32 v11, s23")
a("s_waitcnt lgkmcnt(0)"); tag_make()
if XPOS < 6 and not opt("glate"): vm.wait(gl); gate_dots()
a("s_setprio " + str(opt("lprio", 0)))
def pf(n, srdn, off):
    for i in range(n): a(f"s_buffer_load_dword s10, s[{srdn}:{srdn+3}], {off} offset:{64*i}")
w2done = 0
KQ = [int(x) for x in str(opt("kq4", "000000"))]
ovl = [(i, kh) for i in list(range(22, 30)) + [19, 20] for kh in range(2)]; nq = 0
KO = [int(x) for x in str(opt("ko", "000000"))]; kol = ovl[16 - sum(KO):16]; kod = []
assert sum(KO) + sum(KQ) <= 16
def wtext(j):
    mat, row = wrow(*j); s_ = 68 if mat == "w2" else 72
    return f"s_add_u32 s67, s64, {row*1024}", (f"buffer_load_dwordx4 {q4(OV + 4*ovl.index(j))}, v28, s[{s_}:{s_+3}], s67 offen" if j in ovl else f"buffer_load_dwordx4 v28, s[{s_}:{s_+3}], s67 offen lds")
kad = 0
def keep(c):
    global kad
    if str(c) not in KA: return
    a(f"s_lshl_b32 s67, s2, 2\ns_add_u32 s67, s67, s52\ns_mul_i32 s67, s67, 2816\ns_add_u32 s67, s67, {13 << 20}")
    for i in range(KN): a(f"s_buffer_load_dword s10, s[44:47], s67 offset:{128*kad}"); kad += 1
def lbar(c):
    if opt("lb") == "a": stamp(2 + c, "lb")
    a("s_barrier")
    if opt("lb") == "b": stamp(2 + c, "lb")
for c in range(6):
    vm.wait(last); lbar(c)
    last = nxt
    for q in range(NB[c], 12): last = dma(q, c + 1)
    if c == 0:
        if not (XPOS < 6 and not opt("glate")): vm.wait(gl); gate_dots()
        a("s_brev_b64 exec, 1"); vm.op(f"buffer_store_dwordx4 v[8:11], v{VL}, s[44:47], s66 offen sc1"); a("s_mov_b64 exec, -1")
    if c == SPC:
        a("s_cmp_lt_u32 s27, 8\ns_cbranch_scc1 L_spq")
        if WF: a(f"s_lshl_b32 s67, s26, 5\ns_add_u32 s67, s67, s27\ns_lshl_b32 s67, s67, {FSH}\ns_add_u32 s67, s67, {FH - (8 << FSH)}\ns_buffer_load_dword s10, s[44:47], s67\ns_buffer_load_dword s10, s[44:47], s67 offset:64")
        else: a(f"s_lshl_b32 s67, s26, 1\ns_lshr_b32 s31, s52, 1\ns_add_u32 s67, s67, s31\ns_lshl_b32 s67, s67, 4\ns_add_u32 s67, s67, s27\ns_lshl_b32 s67, s67, 1\ns_and_b32 s31, s52, 1\ns_add_u32 s67, s67, s31\ns_lshl_b32 s67, s67, {FSH}\ns_add_u32 s67, s67, {FH - (16 << FSH)}\ns_buffer_load_dword s10, s[44:47], s67\ns_buffer_load_dword s10, s[44:47], s67 offset:64")
        a("s_branch L_spd\nL_spq:\ns_lshl_b32 s31, s27, 2\ns_add_u32 s31, s31, s52")
        a(f"s_lshl_b32 s67, s26, 5\ns_add_u32 s67, s67, s31\ns_lshl_b32 s67, s67, {FSH}\ns_add_u32 s67, s67, {FO}\ns_buffer_load_dword s10, s[44:47], s67\ns_buffer_load_dword s10, s[44:47], s67 offset:64")
        a(f"s_mul_i32 s67, s31, 11\ns_add_u32 s67, s67, s26\ns_mul_i32 s67, s67, {PSZ}\ns_add_u32 s67, s67, {P_OFF}")
        for i in range(9): a(f"s_buffer_load_dword s10, s[44:47], s67 offset:{128*i}")
        a("s_buffer_load_dword s10, s[44:47], s67 offset:1088\nL_spd:")
    if c == 2:
        a("s_bfe_u32 s31, s2, 0x30003\ns_and_b32 s77, s52, 1\ns_lshl_b32 s76, s77, 1")
        a("v_and_b32 v13, 1, v4\nv_lshlrev_b32 v13, 2, v13\nv_xor_b32 v13, v13, v3\nv_xor_b32 v13, s76, v13\nv_lshlrev_b32 v13, 4, v13\nv_lshl_add_u32 v28, v2, 10, v13")
        a("s_lshl_b32 s31, s31, 7\ns_lshl_b32 s67, s52, 13\ns_add_u32 s64, s31, s67")
        a(f"s_lshl_b32 s63, s52, 10\nv_add_u32 v29, s63, v{VL}\nv_add_u32 v30, 0x10000, v29\nv_add_u32 v15, 0x20000, v29")
        toktile("s31", "s77", "s67")
        a(f"s_mul_i32 s67, s31, 86\ns_lshr_b32 s67, s67, 8\ns_lshl_b32 s79, s67, {FSH+5}\ns_add_u32 s79, s79, {FH}\ns_lshr_b32 s67, s67, 1\ns_lshl_b32 s18, s67, {FSH+5}\ns_add_u32 s18, s18, {FO}")
        if WF: a(f"s_sub_u32 s79, s18, {FO - FH}")
    if C3 == str(c):
        a("s_cmp_ge_u32 s52, 2\ns_cbranch_scc0 L_c3\nv_lshlrev_b32 v12, 10, v0\ns_lshr_b32 s67, s2, 3\ns_cmp_eq_u32 s52, 2\ns_cbranch_scc0 L_c3b")
        a(f"s_mul_i32 s67, s67, {43*1024}\ns_movk_i32 exec_hi, 0x7ff\nbuffer_load_dword v14, v12, s[68:71], s67 offen offset:384\ns_branch L_c3c\nL_c3b:")
        a("s_lshl_b32 s67, s67, 14\ns_mov_b64 exec, 0xffff\nbuffer_load_dword v14, v12, s[72:75], s67 offen offset:384\nL_c3c:\ns_mov_b64 exec, -1\nL_c3:")
    if c == 5:
        a(f"s_mul_i32 s66, s52, 24\ns_lshr_b32 s67, s29, 1\ns_add_u32 s66, s66, s67\nv_min_u32 v13, 23, v0\nv_lshlrev_b32 v12, 3, v13\nv_add_u32 v13, s66, v13\nv_min_u32 v13, 0x3ff, v13\nv_lshlrev_b32 v13, 4, v13")
        a(f"s_mul_i32 s67, s52, 192\ns_add_u32 s67, s67, {G_LDS}\nv_add_u32 v12, s67, v12\ns_mov_b32 s66, {S_OFF}")
        last = vm.op("buffer_load_dwordx4 v[8:11], v13, s[44:47], s66 offen sc1")
    keep(c)
    if LP[c] == "o": a("s_lshl_b32 s67, s2, 2\ns_add_u32 s67, s67, s52\ns_lshl_b32 s67, s67, 9"); pf(8, 72, "s67")
    if LP[c] == "w":
        a(f"s_mul_i32 s67, s2, 5504\ns_mul_i32 s31, s52, 704\ns_add_u32 s67, s67, s31\ns_add_u32 s67, s67, {2816*w2done}"); pf(11, 68, "s67"); w2done += 1
    adv()
    for q in range(NB[c + 1]): nxt = dma(q, c + 2)
    for n in range(KO[c]):
        j = kol[len(kod)]; kod.append(j); ad, ld = wtext(j); a(ad); vm.op(ld)
    if KQ[c]:
        assert c >= 2
        a(f"s_cmp_lt_u32 s27, 8\ns_cbranch_scc0 L_kq{c}")
        for j in ovl[nq:nq + KQ[c]]: a("\n".join(wtext(j)))
        nq += KQ[c]; a(f"L_kq{c}:")
vm.wait(last); lbar(6)
last = nxt
for q in range(NB[6], 12): last = dma(q, 7)
pairs = lambda i0, i1: [(i, kh) for i in range(i0, i1) for kh in range(2)]
wq = pairs(0, 7) + [(21, 0)] + pairs(7, NRES) + [j for j in ovl if j not in kod] + pairs(NRES, 19)
wid = {}
def wnext(th=None):
    j = wq.pop(0)
    if opt("now"): wid[j] = vm.n; return
    if nq and j == ovl[0]: a("s_cmp_lt_u32 s27, 8\ns_cbranch_scc1 L_kqd")
    ad, ld = wtext(j)
    if j not in ovl: a(f"s_add_u32 m0, s63, {wpos(*j)*4096}")
    a(ad)
    if th is not None: a(f"s_waitcnt vmcnt({th})")
    if j in ovl[:nq]: a(ld)
    else: wid[j] = vm.op(ld)
    if nq and j == ovl[nq - 1]: a("L_kqd:")
assert not nq or N6 + N7 >= 21 + nq
for n in range(4): wnext()
a("s_mov_b32 s31, 0\nL_gw:\nv_cmp_eq_u64 vcc, s[22:23], v[10:11]\ns_add_u32 s31, s31, 1\ns_nop 0\ns_cmp_eq_u64 vcc, -1\ns_cbranch_scc1 L_gd")
a(f"buffer_load_dwordx4 v[8:11], v13, s[44:47], s66 offen sc1\ns_cmp_lt_u32 s31, {SPIN}\ns_waitcnt vmcnt(0)\ns_cbranch_scc1 L_gw\nL_gd:")
a("v_mul_f32 v8, s30, v8\nv_mul_f32 v9, s30, v9\nv_exp_f32 v8, v8\nv_exp_f32 v9, v9\ns_mov_b32 s67, 0x7f000000\nv_add_f32 v8, 1.0, v8\nv_add_f32 v9, 1.0, v9\nv_min_f32 v8, s67, v8\nv_min_f32 v9, s67, v9")
a("ds_write_b64 v12, v[8:9]")
assert 4 <= N6 <= G1 and N6 + N7 <= G2 + NOV - len(kod)
for n in range(4, N6): wnext()
a(f"v_min_u32 v12, {14 if WF else 28}, v0\nv_lshlrev_b32 v12, {FSH}, v12\nv_and_b32 v13, 31, v0\nv_lshlrev_b32 v13, {FSH}, v13\nv_mov_b32 v14, {CNT_LDS}")
vm.wait(last, " lgkmcnt(0)")
stamp(2)
keep(6)
lbar(7)
for n in range(N7):
    if n == 14: keep(7)
    wnext(TH2)
fin_setup("v8", "v9")
stamp(3)
def ldswait(cmp, sl):
    u = lab()
    a(f"s_mov_b32 s31, 0\nLW{u}:\nds_read_b32 v8, v14\ns_add_u32 s31, s31, 1\ns_waitcnt lgkmcnt(0)\n{cmp}\ns_cmp_lt_u32 s31, {SPIN}\ns_cbranch_scc0 LD{u}\ns_cbranch_vccnz LD{u}\ns_sleep {sl}\ns_branch LW{u}\nLD{u}:")
vm.wait(wid[(NP0 - 1, 1)]); a("s_barrier")
a("s_cmp_lt_u32 s27, 8\ns_cselect_b32 s19, 4, s52")
while len(wq) > PA: wnext(TH)
if opt("nofh"): a("s_mov_b32 s19, 4")
a(f"s_cmp_lt_u32 s19, {1 if WF else 2}\ns_cbranch_scc0 L_np\nbuffer_load_dwordx2 v[8:9], v12, s[44:47], s79 offen sc1\nL_np:")
npa = 0 if opt("now") else len(wq)
while wq: wnext(TH)
stamp(4)
if opt("nofh"): a("s_waitcnt vmcnt(0)\ns_sleep 20\ns_branch L_s0")
a(f"s_cmp_lt_u32 s52, {1 if WF else 2}\ns_cbranch_scc0 L_s0\ns_cmp_lt_u32 s27, 8\ns_cbranch_scc1 L_sq")
a(f"s_waitcnt vmcnt({npa})\nv_cmp_eq_u64 vcc, s[22:23], v[8:9]\ns_nop 1\ns_cmp_eq_u64 vcc, -1\ns_cbranch_scc1 L_s0\ns_branch L_sp\nL_sq:")
ldswait("v_cmp_ne_u32 vcc, 0, v8", 2)
a("L_sp:")
poll(8, "v12", "s79")
a("L_s0:")
vm.wait(wid[(NRES - 1, 1)])
stamp(5)
a("s_barrier")
a("s_waitcnt vmcnt(0)\ns_barrier")
for n, j in enumerate(ovl):
    p = wpos(*j)
    if not opt("noovw"): a(f"ds_write_b128 v{(29, 30, 15)[p // 16]}, {q4(OV+4*n)} offset:{(p % 16) * 4096}")
stamp(6)
a("s_waitcnt lgkmcnt(0)")
if S2B: a("s_barrier")
a("s_cmp_eq_u32 s52, 0\ns_cbranch_scc0 L_o2")
poll(8, "v13", "s18")
a("L_o2:")
stamp(7)
a("s_barrier")
a(f"s_lshl_b32 s67, s2, 2\ns_add_u32 s67, s67, s52\ns_cmp_eq_u32 s67, 0\ns_cbranch_scc0 L_fin\ns_mov_b32 s67, {X_OFF}\nv_mov_b32 v8, s22\nv_mov_b32 v9, s23")
setflag(8, f"v{VL}", "s67")
a("s_branch L_fin")
a("L_exit:\ns_endpgm")

FR = 144; VX = 216; VW = 218; VGA = 220; VZS = 221; VZG = 222; VMK = 223; VG = 224; ONE = 236; VS = 240
WA = 244; VH = 248; VT = 250; TG = 252
HB = 32; RES = HB + 8 * HD
assert RES == 80
a("M_start:"); MSIDE = True
mapping()
a("s_lshr_b32 s52, s28, 1\ns_and_b32 s53, s28, 1")
a("v_and_b32 v2, 31, v0\nv_lshrrev_b32 v3, 5, v0\nv_bfe_u32 v4, v0, 1, 3\nv_and_b32 v14, 15, v0\nv_lshrrev_b32 v15, 4, v0")
a("s_mul_i32 s54, s52, 96\ns_cmp_lt_u32 s27, 8\ns_cselect_b32 s54, 0, s54\nv_add_u32 v5, s54, v14\nv_lshlrev_b32 v6, 7, v5")
a(f"v_xor_b32 v7, v15, v4\nv_lshl_add_u32 v{VX}, v7, 4, v6\nv_xor_b32 v{VX+1}, 64, v{VX}")
a(f"v_lshlrev_b32 v{VGA}, 2, v5\nv_add_u32 v{VGA}, {G_LDS}, v{VGA}")
a("v_bfe_u32 v8, v0, 4, 1\nv_bfe_u32 v9, v0, 2, 2\nv_and_b32 v10, 3, v0\nv_lshl_add_u32 v11, v15, 3, v9")
a(f"s_mov_b32 s63, 0\ns_mov_b32 s66, 0\ns_mov_b32 s65, {SLOT}")
a(f"v_and_b32 v12, 2, v9\nv_or_b32 v12, v12, v8\nv_lshlrev_b32 v12, 5, v12\nv_lshl_add_u32 v12, v11, 7, v12\nv_lshl_add_u32 v12, v10, 3, v12")
a(f"s_lshl_b32 s77, s52, 12\ns_add_u32 s57, s77, {12*8192}\nv_add_u32 v{WA}, s57, v12")
for c in (1, 2, 3): a(f"v_xor_b32 v{WA+c}, {32*c}, v{WA}")
a(f"v_lshlrev_b32 v12, 4, v14\nv_lshl_add_u32 v{VH}, v15, 9, v12\ns_lshl_b32 s79, s52, 30")
toktile("s60", "s53", "s62")
a(f"s_mul_i32 s60, s60, {HP*1024}\ns_mul_i32 s57, s52, {42*1024}\ns_add_u32 s76, s60, s57\ns_add_u32 s74, s60, {84*1024}\ns_lshl_b32 s57, s52, 14\ns_add_u32 s78, s60, s57\ns_add_u32 s78, s78, {96*1024}")
a(f"s_lshl_b32 s56, s53, 5\nv_add_u32 v12, s56, v14\nv_mul_u32_u24 v12, {PIT}, v12\nv_lshl_add_u32 v12, v15, 4, v12\ns_mul_i32 s56, s52, {64*PIT}\ns_add_u32 s56, s56, {PART}\nv_add_u32 v{VT}, s56, v12")
a(f"v_mov_b32 v{VS}, {CNT_LDS}\nv_mov_b32 v{VS+1}, 0\nds_write_b32 v{VS}, v{VS+1}")
a("s_waitcnt lgkmcnt(0)")
tag_load()
if WARM:
    a("s_mov_b64 exec, 0")
    for w in range(3): a(f"s_cmp_eq_u32 s28, {w}\ns_cbranch_scc1 WS_{w}")
    a("s_branch WS_3\nWRET:\ns_mov_b64 exec, -1\nWDONE:")
srd(a, 44, 24, WSB)
fin_setup("v12", "v13")
for r in range(16, 144, 2): a(f"v_mov_b64 {pr(r)}, 0")
def m_ready():
    for r in range(0, 16, 2): a(f"v_mov_b64 {pr(r)}, 0")
    a(f"v_mov_b32 v{VS+1}, 1\ns_waitcnt lgkmcnt(0)")
    tag_make()
    a(f"v_mov_b32 v{TG}, s22\nv_mov_b32 v{TG+1}, s23")
    stamp(1)
a("s_cmp_lt_u32 s27, 8\ns_cbranch_scc1 M_qkv")

def signal(): a(f"s_mov_b64 exec, 1\nds_add_u32 v{VS}, v{VS+1}\ns_mov_b64 exec, -1")
def kloop(kind, nleft):
    ffn = kind == "ffn"
    no, ni = (6, 6) if ffn else (12, 3)
    def O(o): return FR + 4 * o
    def I(st, i): return FR + 4 * no + 4 * ni * st + 4 * i
    def rx(r, ti, s): return [f"ds_read_b128 {q4(r)}, v{VX+s} offset:{2048*ti}"]
    def rw(r, k_, s):
        if ffn:
            fi, mat = k_ >> 1, k_ & 1; va = VW + (fi & 1); off = mat * W3OFF + s * 6144 + 32 * (fi & 2); st = 768
        else: va = VW; off = k_ * 8192 + s * 4096; st = 512
        return [f"ds_read_b64_tr_b16 {pr(r+2*rd)}, v{va} offset:{off + rd*st}" for rd in range(2)]
    rO = (lambda o, s: rw(O(o), o, s)) if ffn else (lambda o, s: rx(O(o), o, s))
    rI = (lambda st, i, s: rx(I(st, i), i, s)) if ffn else (lambda st, i, s: rw(I(st, i), i, s))
    def mf(o, i, st):
        if ffn: d = 24 * o + 4 * i; A, B = O(o), I(st, i)
        else:
            d = 48 * i + 4 * o; A, B = (I(st, i), O(o)) if i == 0 else (O(o), I(st, i))
        return f"v_mfma_f32_16x16x32_bf16 {q4(d)}, {q4(A)}, {q4(B)}, {q4(d)}"
    SY = int(opt("sy", 10)); NTOP = 4 if ffn else 3
    DL = int(opt("dl", 1)); AL = opt("al")
    def step(s):
        ns = s ^ 1; qu = []; n = 0; pend = []
        e64 = "_e64" if AL else ""
        if s == 0:
            early = [f"s_cmp_eq_u32 s63, {2*SLOT}", f"s_cselect_b32 s64, {(-2*SLOT) & 0xffffffff}, s65", "s_add_u32 s63, s63, s64", "s_add_u32 s66, s66, 1", "s_cmp_lt_u32 s66, 8"]
            if AL: early = early[:2] + ["s_add_u32 s63, s63, s64", "s_add_u32 s66, s66, 0x100", "s_cmp_lt_u32 s66, 0x800"]; early = early[:2] + early[3:4] + early[2:3] + early[4:]
        else: early = [f"v_add_u32{e64} v{r}, s64, v{r}" for r in ([VX, VX + 1, VW] + ([VW + 1] if ffn else []))]
        carry = rO(no - 1, s) if DL else []
        a(f"s_waitcnt lgkmcnt({NTOP - len(carry)})")
        for o in range(no):
            for i in range(ni):
                a(mf(o, i, s)); n += 1
                if DL: qu += pend; pend = []
                if i == ni - 1:
                    if DL: pend = rO(o, ns)
                    else: qu += rO(o, ns)
                if n < SY:
                    if carry: a(carry.pop(0))
                    elif early: a(early.pop(0))
                elif n == SY:
                    assert not early
                    a("s_waitcnt lgkmcnt(0)")
                    if s == 1: a("s_barrier")
                    qu = qu[:2] + sum((rI(ns, k_, ns) for k_ in range(ni)), []) + qu[2:]
                elif qu: a(qu.pop(0))
        assert len(qu) <= 1, qu
        for x in qu: a(x)
    a("s_setprio " + str(opt("mprio", 2)))
    a("s_barrier")
    stamp(2)
    first = rO(0, 0) + sum((rI(0, i, 0) for i in range(ni)), []) + sum((rO(o, 0) for o in range(1, no - DL)), [])
    for n, x in enumerate(first):
        if n == 12: a("s_waitcnt lgkmcnt(8)")
        a(x)
    a(f"s_branch M_in_{kind}")
    a(".p2align 6\n" + "s_nop 0\n" * int(opt("lal", 0)))
    a(f"M_loop_{kind}:")
    step(1)
    a(f"M_in_{kind}:")
    step(0)
    a(f"s_cbranch_scc1 M_loop_{kind}")
    order = [(o, i) for o in range(no) for i in range(ni)] if ffn else [(o, i) for o in range(no) for i in (1, 2)] + [(o, 0) for o in range(no)]
    ms = [mf(o, i, 1) for o, i in order]
    gr = [f"ds_read2_b32 {pr(VG+2*i)}, v{VGA} offset0:{32*i} offset1:{32*i+16}" for i in range(3 if ffn else 6)]
    if DL: gr = rO(no - 1, 1) + gr
    a(f"s_waitcnt lgkmcnt({NTOP - (len(rO(0, 0)) if DL else 0)})")
    for n, x in enumerate(ms[:36 - nleft]):
        a(x)
        if gr: a(gr.pop(0))
        if n == 10:
            a("s_waitcnt lgkmcnt(0)")
    a("M_kend_%s:" % kind)
    stamp(3)
    return ms[36 - nleft:]
def bsel(hi, n): return " op_sel:[0" + ",1" * n + "]" if hi else " op_sel_hi:[1" + ",0" * n + "]"
def swaps(o): return [f"v_permlane16_swap_b32 v{o}, v{o+2}", f"v_permlane16_swap_b32 v{o+1}, v{o+3}"]

wbase = [12 * 8192, True]
def wreg(i): return RES + 16 * (i if i < NRES else i % (LA + 1))
def wreads(i):
    o = []; tgt = 38 * 4096 if i == 21 else pslot(i) * 8192
    if (i != 21) != wbase[1]:
        o += [f"v_{'add' if i != 21 else 'subrev'}_u32 v{WA+c}, s77, v{WA+c}" for c in range(4)]; wbase[1] = i != 21
    if not 0 <= tgt - wbase[0] <= 65536 - 1024:
        nb = 12 * 8192 if tgt >= 12 * 8192 else 65536 if tgt >= 65536 else 0
        o += [f"v_add_u32 v{WA+c}, {(nb - wbase[0]) & 0xffffffff}, v{WA+c}" for c in range(4)]; wbase[0] = nb
    rd = [f"ds_read_b64_tr_b16 {pr(wreg(i) + 4*c + 2*h)}, v{WA+c} offset:{tgt - wbase[0] + 512*h}" for c in range(4) for h in range(2)]
    rd[0] = "\n".join(o + rd[:1])
    return rd
def preread():
    for i in range(NP0):
        for x in wreads(i): a(x)

a(f"v_mul_u32_u24 v13, 192, v11\nv_lshl_add_u32 v13, v10, 3, v13\nv_add_u32 v13, {XIMG}, v13\ns_mul_i32 s54, s53, 3\nv_xor_b32 v12, s54, v8\nv_lshl_add_u32 v{VW}, v12, 5, v13\ns_add_u32 s54, s54, 1\nv_xor_b32 v12, s54, v8\nv_lshl_add_u32 v{VW+1}, v12, 5, v13")
a(f"s_lshl_b32 s59, s26, 1\ns_add_u32 s59, s59, s52\ns_mul_i32 s56, s59, {3*HP}\ns_lshl_b32 s59, s59, {FSH+5}")
a("s_sub_u32 s60, s27, 8\ns_lshl_b32 s60, s60, 1\ns_add_u32 s60, s60, s53\ns_mul_i32 s57, s60, 3\ns_add_u32 s56, s56, s57\ns_lshl_b32 s68, s56, 10")
a(f"s_add_u32 s69, s68, {HP*1024}\ns_add_u32 s70, s68, {2*HP*1024}")
a(f"s_lshl_b32 s60, s60, {FSH}\ns_add_u32 s71, s59, s60\ns_add_u32 s71, s71, {FH}")
if WF: a(f"s_lshl_b32 s71, s26, 5\ns_add_u32 s71, s71, s27\ns_lshl_b32 s71, s71, {FSH}\ns_add_u32 s71, s71, {FH - (8 << FSH)}")
a(f"s_mov_b32 s30, {NLOG2E}\ns_mov_b32 s31, {NLOG2E}")
m_ready()
NL = int(opt("nl", 22)); NPK = int(opt("npk", 1 if NL else 0))
assert NL <= 22
ops = kloop("ffn", NL)
TS = (168, 180, 144, 156, 192, 204)
for fi in range(3):
    for ti in range(3):
        un = 3 * fi + ti
        d = 48 * fi + 8 * ti; u = d + 24; t = TS[un % 6]; g = pr(VG + 2 * ti)
        if un < NPK:
            for j in range(8): ops.append(f"v_mul_f32 v{t+j}, s30, v{d+j}")
            for j in range(8): ops.append(f"v_exp_f32 v{t+j}, v{t+j}")
            for j in range(8): ops.append(f"v_fma_f32 v{t+j}, v{t+j}, v{VG+2*ti+(j>>2)}, v{VG+2*ti+(j>>2)}")
        else:
            for j in range(0, 8, 2): ops.append(f"v_pk_mul_f32 {pr(t+j)}, {pr(d+j)}, s[30:31]")
            for j in range(8): ops.append(f"v_exp_f32 v{t+j}, v{t+j}")
            for j in range(0, 8, 2): ops.append(f"v_pk_fma_f32 {pr(t+j)}, {pr(t+j)}, {g}, {g}" + bsel(j >= 4, 2))
        for j in range(0, 8, 2): ops.append(f"v_pk_mul_f32 {pr(d+j)}, {pr(d+j)}, {pr(u+j)}")
        for j in range(8): ops.append(f"v_rcp_f32 v{t+j}, v{t+j}")
        for j in range(0, 8, 2): ops.append(f"v_pk_mul_f32 {pr(d+j)}, {pr(d+j)}, {pr(t+j)}")
        for j in range(4): ops.append(f"v_cvt_pk_bf16_f32 v{t+8+j}, v{d+2*j}, v{d+2*j+1}")
        ops += swaps(t + 8)
        if not opt("nost"): ops.append(f"buffer_store_dwordx4 {q4(t+8)}, v{VL}, s[44:47], s{68+ti} offen offset:{1024*fi} sc1")
print("ffn epilogue model cycles", schedule(ops, a, window=NL + 40, holdpk=True), file=sys.stderr)
stamp(4)
if WF:
    a("s_cmp_eq_u32 s28, 0\ns_waitcnt vmcnt(0)\ns_barrier\ns_cbranch_scc0 M_nf"); setflag(TG, f"v{VL}", "s71", True); a("M_nf:")
    stamp(5); preread()
else:
    a("s_waitcnt vmcnt(0)")
    setflag(TG, f"v{VL}", "s71", True)
    stamp(5)
    a("s_barrier"); preread()
a("s_branch M_s2")

a("M_qkv:")
a(f"v_and_b32 v12, 2, v9\nv_or_b32 v12, v12, v8\nv_xor_b32 v12, s28, v12\nv_lshlrev_b32 v12, 5, v12\nv_lshl_add_u32 v12, v11, 7, v12\nv_lshl_add_u32 v12, v10, 3, v12\nv_add_u32 v{VW}, {XIMG}, v12")
a("s_lshl_b32 s60, s27, 2\ns_add_u32 s60, s60, s28")
a(f"s_mul_i32 s56, s26, {6*HP}\ns_add_u32 s56, s56, s60\ns_add_u32 s56, s56, 96\ns_lshl_b32 s36, s56, 10")
for ti in range(1, 6): a(f"s_add_u32 s{36+ti}, s36, {ti*HP*1024}")
a(f"s_lshl_b32 s59, s26, {FSH+5}\ns_lshl_b32 s57, s60, {FSH}\ns_add_u32 s71, s59, s57\ns_add_u32 s71, s71, {FO}")
a(f"s_mul_i32 s72, s60, {11*PSZ}\ns_add_u32 s72, s72, {P_OFF}\ns_mul_i32 s73, s26, {PSZ}\ns_add_u32 s73, s73, s72\ns_add_u32 s57, s72, {4*PSZ}\ns_add_u32 s58, s72, {8*PSZ}")
a("s_cmp_eq_u32 s26, 10\ns_cselect_b32 s75, 0, 0x3f803f80")
a(f"v_lshlrev_b32 v{VZS}, 4, v15\nv_mul_u32_u24 v12, {PSZ}, v14\nv_add_u32 v{VZG}, v12, v{VZS}\nv_lshl_add_u32 v{VZS}, v14, 6, v{VZS}\nv_mov_b32 v{VMK}, 0xffffff00")
for j in range(4): a(f"v_mov_b32 v{ONE+j}, 0x3f803f80")
a(f"s_mov_b32 s30, {LOG2E}\ns_mov_b32 s31, {LOG2E}\ns_mov_b32 s3, {EPS}")
m_ready()
for i in range(4): a(f"s_bfe_u32 s{32+i}, s22, {0x80000 + 8*i}")
qm = kloop("qkv", 12)
CK = 200; CZ = 216; TP = (192, 208)
def phi8(b, t, dst=None):
    if dst is None: dst = b
    o = []
    for j in range(0, 8, 2): o.append(f"v_pk_mul_f32 {pr(t+j)}, {pr(b+j)}, s[30:31]")
    for j in range(8): o.append(f"v_exp_f32 v{t+j}, v{t+j} clamp")
    for j in range(8): o.append(f"v_max_f32 v{b+j}, s3, v{b+j}")
    for j in range(0, 8, 2): o.append(f"v_pk_add_f32 {pr(b+j)}, {pr(b+j)}, {pr(t+j)}")
    for j in range(4): o.append(f"v_cvt_pk_bf16_f32 v{dst+j}, v{b+2*j}, v{b+2*j+1}")
    return o
ops = []
for p in range(6):
    dk = 48 + 8 * p; dv = 96 + 8 * p
    ops += phi8(dk, TP[p & 1])
    if p == 4: ops += [f"v_mov_b32 v{ONE+j}, s75" for j in range(4)]
    for j in range(4): ops.append(f"v_cvt_pk_bf16_f32 v{dv+j}, v{dv+2*j}, v{dv+2*j+1}")
    ops.append(f"v_mfma_f32_16x16x32_bf16 {q4(CK)}, {q4(dk)}, {q4(dv)}, {q4(CK) if p else 0}")
    ops.append(f"v_mfma_f32_16x16x32_bf16 {q4(CZ)}, {q4(dk)}, {q4(ONE)}, {q4(CZ) if p else 0}")
print("k epilogue model cycles", schedule(ops, a, window=30), file=sys.stderr)
stamp(1, "kq")
a(qm[0]); a(qm[1]); a("s_nop 4")
for j in range(4): a(f"v_and_or_b32 v{CK+j}, v{CK+j}, v{VMK}, s{32+j}")
a(f"buffer_store_dwordx4 {q4(CK)}, v{VL}, s[44:47], s73 offen sc1")
for j in range(4): a(f"v_and_or_b32 v{CZ+j}, v{CZ+j}, v{VMK}, s{32+j}")
stamp(2, "kq")
ZM = 0x30003 if opt("zw") else 0x10001
a(f"s_mov_b32 exec_lo, {ZM}\ns_mov_b32 exec_hi, {ZM}\nbuffer_store_dwordx4 {q4(CZ)}, v{VZS}, s[44:47], s73 offen offset:1024 sc1\ns_mov_b64 exec, -1")
stamp(4)
a("s_barrier")
GK = 24; GZ = 72; GA = 76
EZ = int(opt("ez", 3))
def zload():
    for j in range(4): a(f"v_mov_b32 v{GZ+j}, s{32+j}")
    a(f"s_add_u32 s67, s67, 1\ns_cmp_lt_u32 s67, {SPIN}\ns_cselect_b32 s62, {0 if opt('noz') else 0xff}, 0\ns_mov_b32 exec_lo, 0x7ff07ff\ns_mov_b32 exec_hi, 0x7ff07ff")
    a(f"buffer_load_dwordx4 {q4(GZ)}, v{VZG}, s[44:47], s72 offen offset:1024 sc1\ns_mov_b64 exec, -1")
a("s_mov_b32 s67, 0")
schedule(qm[2:] + sum((phi8(8 * p, TP[p & 1], 4 * p) for p in range(EZ)), []), a, window=40, holdpk=True)
def kvloads():
    for p in range(11): a(f"buffer_load_dwordx4 {q4(GK+4*p)}, v{VL}, s[44:47], {('s72', 's57', 's58')[p//4]} offen offset:{(p%4)*PSZ} sc1")
def zcheck(br):
    a("s_waitcnt vmcnt(0)")
    for j in range(4): a(f"v_xor_b32 v{GZ+j}, s{32+j}, v{GZ+j}")
    a(f"v_or3_b32 v{GA}, v{GZ}, v{GZ+1}, v{GZ+2}\nv_or_b32 v{GA}, v{GA}, v{GZ+3}\nv_and_b32 v{GA}, s62, v{GA}\nv_cmp_ne_u32 vcc, 0, v{GA}\ns_nop 0\n{br}")
zload()
schedule(sum((phi8(8 * p, TP[p & 1], 4 * p) for p in range(EZ, 6)), []), a, window=40)
stamp(5, "kq")
zcheck("s_cbranch_vccnz M_g1")
kvloads(); signal(); preread()
a("s_branch M_g3\nM_g1:")
zload(); preread()
a("s_branch M_g2\nM_gw:")
zload()
a("M_g2:")
zcheck("s_cbranch_vccnz M_gw")
kvloads(); signal()
a("M_g3:")
stamp(5); stamp(6, "kq")
for ctl in ["quad_perm:[1,0,3,2]", "quad_perm:[2,3,0,1]", "row_half_mirror", "row_mirror"]:
    for j in range(4): a(f"v_add_f32_dpp v{GZ+j}, v{GZ+j}, v{GZ+j} {ctl} row_mask:0xf bank_mask:0xf")
ZA = 216; KA = 78
a(f"s_mov_b32 vcc_lo, 0x55555555\ns_mov_b32 vcc_hi, 0x55555555\nv_cvt_pk_bf16_f32 v{GZ}, v{GZ}, v{GZ+1}\nv_cvt_pk_bf16_f32 v{GZ+1}, v{GZ+2}, v{GZ+3}")
a(f"v_cndmask_b32 v{ZA}, 0, v{GZ}, vcc\nv_cndmask_b32 v{ZA+1}, 0, v{GZ+1}, vcc\nv_xor_b32 v{ZA+2}, v{ZA}, v{GZ}\nv_xor_b32 v{ZA+3}, v{ZA+1}, v{GZ+1}")
DN = 192
ops = []
for p in range(6): ops.append(f"v_mfma_f32_16x16x32_bf16 {q4(DN+4*p)}, {q4(ZA)}, {q4(4*p)}, 0")
for p in range(6):
    for h in range(2):
        r = DN + 4 * p + h; ops += [f"v_add_f32 v{r}, s3, v{r}", f"v_mul_f32 v{r}, v{r}, v{VG+2*p+h}", f"v_rcp_f32 v{r}, v{r}"]
a("s_nop 1"); schedule(ops, a)
for p in range(11):
    a(f"s_waitcnt vmcnt({10-p})")
    r = GK + 4 * p
    for j in range(4): a(f"v_xor_b32 v{r+j}, s{32+j}, v{r+j}")
    a(f"v_or3_b32 v{GA}, v{r}, v{r+1}, v{GA}\nv_or3_b32 v{GA}, v{r+2}, v{r+3}, v{GA}")
    if p:
        for j in range(0, 4, 2): a(f"v_pk_add_f32 {pr(GK+j)}, {pr(GK+j)}, {pr(r+j)}")
a(f"v_and_b32 v{GA}, s62, v{GA}\nv_cmp_ne_u32 vcc, 0, v{GA}\nv_cvt_pk_bf16_f32 v{KA}, v{GK}, v{GK+1}\nv_cvt_pk_bf16_f32 v{KA+1}, v{GK+2}, v{GK+3}\ns_cbranch_vccnz M_gw\ns_nop 0")
stamp(7, "kq"); stamp(8, "kq")
ops = []
for p in range(6):
    for h in range(2): ops.append(f"v_mfma_f32_16x16x16_bf16 {q4(GK+8*p+4*h)}, {pr(KA)}, {pr(4*p+2*h)}, 0")
for p in range(6):
    n_ = GK + 8 * p; o = n_
    if p < int(opt("onp", 1)):
        for j in range(8): ops.append(f"v_mul_f32 v{n_+j}, v{n_+j}, v{DN+4*p+(j>>2)}")
    else:
        for j in range(0, 8, 2): ops.append(f"v_pk_mul_f32 {pr(n_+j)}, {pr(n_+j)}, {pr(DN+4*p)}" + bsel(j >= 4, 1))
    for j in range(4): ops.append(f"v_cvt_pk_bf16_f32 v{o+j}, v{n_+2*j}, v{n_+2*j+1}")
    ops += swaps(o)
    ops.append(f"buffer_store_dwordx4 {q4(o)}, v{VL}, s[44:47], s{36+p} offen sc1")
print("o block model cycles", schedule(ops, a, window=40, holdpk=True), file=sys.stderr)

stamp(9, "kq")
a("M_s2:")
stamp(6)
HLD = str(opt("hld", "sc1")).replace("none", "").replace("_", " ")
def hload(i):
    r = HB + 8 * (i % HD); o = []; va = VH
    if i == 21: base, jj = "s74", 0; va = VH + 1; o.append(f"v_add_u32 v{va}, s79, v{VH}")
    else: base, jj = ("s76", i) if i < 21 else ("s78", i - 22)
    if jj % 2 == 0 and jj: o.append(f"s_add_u32 {base}, {base}, 4096")
    ld = [f"buffer_load_dwordx4 {q4(r+4*t)}, v{va}, s[44:47], {base} offen offset:{(jj%2)*2048 + 256*t} {HLD}" for t in range(2)]
    return ["\n".join(o + ld[:1]), ld[1]]
a("s_barrier")
stamp(7)
for i in range(HD - 1):
    for x in hload(i): a(x)
NPRE = int(opt("npre", NRES))
for i in range(NP0, NPRE):
    for x in wreads(i): a(x)
issued = HD - 1; nread = NPRE
for i in range(30):
    h = HB + 8 * (i % HD); w = wreg(i)
    s1 = nread == NRES and i == NRES - NPRE
    a(f"s_waitcnt vmcnt({2 * (issued - 1 - i)})" + (" lgkmcnt(0)" if s1 or i == 29 else f" lgkmcnt({8*(LA-1)})" if i >= NRES else " lgkmcnt(8)" if i < NRES - NPRE else ""))
    if i == 0:
        a("s_cmp_lt_u32 s27, 8\ns_cbranch_scc0 M_noflag"); setflag(TG, f"v{VL}", "s71", True); a("s_nop 2\nM_noflag:")
        stamp(1, True)
    rd = []
    if nread < NRES: rd = wreads(nread); nread += 1
    elif NRES <= i + LA < 30: rd = wreads(i + LA)
    ld = []
    if issued < 30: ld = hload(issued); issued += 1
    n = 0
    for c in range(4):
        for t in range(2):
            d = 16 * t + 4 * c
            a(f"v_mfma_f32_16x16x32_bf16 {q4(d)}, {q4(w+4*c)}, {q4(h+4*t)}, {q4(d) if i else 0}")
            if n == 0 and (s1 or i == JS or (S2B and i == int(S2B))):
                st_ = (2, 3) if s1 else (6, 8) if i == JS else (4, 5)
                stamp(st_[0], True); a("s_barrier"); stamp(st_[1], st_[1] != 8)
            if LA == 1 or opt("rd2"):
                if n < 4:
                    for x in rd[2*n:2*n+2]: a(x)
                elif n in (4, 6) and ld: a(ld.pop(0))
            else:
                if rd: a(rd.pop(0))
                if n in (1, 5) and ld: a(ld.pop(0))
            n += 1
stamp(9)
a("s_nop 0")
for c in range(4):
    for t in range(2): a(f"ds_write_b128 v{VT}, {q4(16*t + 4*c)} offset:{16*t*PIT + 64*c}")
a("s_waitcnt lgkmcnt(0)")
a("L_fin:\ns_barrier")
a(f"ds_read_b128 v[16:19], v{VFA} offset:{PART}\nds_read_b128 v[24:27], v{VFA} offset:{PART+64*PIT}\nds_read_b128 v[20:23], v{VFA} offset:{PART+16}\nds_read_b128 v[28:31], v{VFA} offset:{PART+64*PIT+16}")
a("s_waitcnt lgkmcnt(2)\nv_pk_add_f32 v[16:17], v[16:17], v[24:25]\nv_pk_add_f32 v[18:19], v[18:19], v[26:27]\ns_waitcnt lgkmcnt(0)\nv_pk_add_f32 v[20:21], v[20:21], v[28:29]\nv_pk_add_f32 v[22:23], v[22:23], v[30:31]")
for j in range(4): a(f"v_cvt_pk_bf16_f32 v{16+j}, v{16+2*j}, v{17+2*j}")
a(f"buffer_store_dwordx4 v[16:19], v{VFO}, s[48:51], s42 offen " + str(opt("outflag", "sc1")).replace("_", " ").replace("none", ""))
stamp(10)
dump_stamps()
a("s_endpgm\nL_codeend:")
if WARM:
    def isize(x):
        x = x.strip()
        if not x or x.endswith(":") or x.startswith((".", ";")): return 0
        if re.match(r"(s_nop|s_waitcnt|s_barrier|s_cbranch|s_branch|s_setprio|s_sleep)", x): return 4
        lit = any(not (-16 <= int(t, 0) <= 64) for t in re.findall(r"(?<![\w\[:.])(-?0x[0-9a-f]+|-?\d+)(?![\w\].:])", x.split(" offset")[0]))
        if re.match(r"(buffer_|ds_|v_mfma|v_pk_|v_cvt_pk|s_buffer|s_load|s_mem|v_lshl_add|v_bfe|v_or3|v_and_or|v_mul_lo|v_fma)", x) or "dpp" in x or "clamp" in x: return 8
        return 8 if lit else 4
    out = []; off = 0; nxt = int(opt("warm0", 2048)); noins = False; marks = []
    for i, x in enumerate(a.l):
        if x.startswith("M_start:") or x.startswith("M_loop_"): noins = True
        if off >= nxt and not noins and isize(x) and not a.l[i-1].strip().startswith(("s_add_u32 m0", "s_mov_b32 exec", "s_mov_b64 exec", "s_movk_i32 exec", "s_brev_b64 exec")):
            marks.append(len(out)); out.append(None); off += 4; nxt = off + WARM
        if x.startswith("WDONE:") or x.startswith("s_cbranch_scc1 M_loop_"): noins = False
        if x.startswith(".p2align 6"): off = (off + 63) & ~63
        out.append(x); off += isize(x)
    n = len(marks); print("warm stubs", n, "code bytes ~", off, file=sys.stderr)
    assert off < 128 * 256
    for k_, m_ in enumerate(marks): out[m_] = f"WS_{k_}:\ns_cbranch_execz {'WS_%d' % (k_ + 4) if k_ + 4 < n else 'WRET'}"
    a.l = out
rodata(a)
kdesc(a, K, 256, 256)
open(OUT, "w").write(a.text())
```

```python
import sys, re
from asmlib import *
import sched
from sched import schedule
def opt(name, default=None):
    for x in sys.argv[1:]:
        if x == "--" + name: return True
        if x.startswith("--" + name + "="): return x.split("=", 1)[1]
    return default
STAMP = opt("stamp", False)
OUT = [x for x in sys.argv[1:] if not x.startswith("--")][0]
TH = int(opt("th", 7)); TH2 = int(opt("th2", 8))
N6 = int(opt("n6", 10)); N7 = int(opt("n7", 26))
PA = int(opt("pa", 0))
XPOS = int(opt("xpos", 0))
LP = str(opt("lp", "o-ww--"))
C3 = str(opt("c3", "4")); SPC = int(opt("spc", 1)); ROT = str(opt("rot", "c")); SIG = str(opt("sig", "d"))
WF = not opt("nowf")
NB = [int(x, 16) for x in str(opt("nb", "8888888"))]
QO = [int(x, 16) for x in str(opt("qo", "061728394a5b"))]
KA = str(opt("ka", "")); KN = int(opt("kn", 4))
OVF = not opt("noovf")
WARM = int(opt("warm", 2048))
sched.PKGAP = int(opt("pkgap", 32))
SPIN = 1 << 16

SLOT = 49152; XIMG = 24576; W3OFF = 12288
NA = 39; NOV = 59 - NA; G1 = 15; G2 = 27
G_LDS = NA * 4096; CNT_LDS = G_LDS + 768
assert CNT_LDS + 64 <= 163840
HP = int(opt("hp", 129))
P_OFF = 9 << 20; FH = 10 << 20; S_OFF = (10 << 20) + (512 << 10); X_OFF = 11 << 20; ST_OFF = 12 << 20
FSH = int(opt("fsh", 6)); FW = int(opt("fw", 0))
FROW = 32 << FSH; FO = FH + 22 * FROW
PSZ = 1152; PIT = 272; PART = 6 * 4096
LOG2E = 0x3fb8aa3b; NLOG2E = 0xbfb8aa3b; EPS = 0x358637bd
WSB = 16 << 20
K = NAME + "_kernel"
def pslot(i):
    if i >= 22: i -= 20
    elif i >= 19: i -= 19
    return 12 + i if i < 7 else i - 7
def wpos(i, kh): return 38 if i == 21 else 2 * pslot(i) + kh
def wrow(i, kh):
    if i < 21: return "w2", 32 * (i + 21 * kh)
    if i == 21: return "w2", 32 * 42
    return "wo", 32 * (i - 22 + 8 * kh)
NRES = 10; NP0 = 7; S2B = int(opt("s2b", 12))
HD = int(opt("hd", 6)); LA = int(opt("la", 2))
JS = min(19 - LA, 23 - HD)

a = Asm(); MSIDE = False
header(a, ["; fused linear-attention + SwiGLU gated mix; generated by my own script",
           "; @launch grid=(256,1,1) block=(512,1,1) lds=163840"])
class VM:
    def __init__(self): self.n = 0
    def op(self, s): a(s); self.n += 1; return self.n
    def cnt(self, i): return min(self.n - i, 63)
    def wait(self, i, extra=""): a(f"s_waitcnt vmcnt({self.cnt(i)}){extra}")
def stamp(i, det=False):
    if not STAMP: return
    if opt("lb") and not MSIDE:
        if det == "lb" or i in (0, 1, 10): a(("s_memrealtime" if opt("rt") else "s_memtime") + f" s[{80+2*i}:{81+2*i}]")
        return
    if det == "lb": return
    if opt("mp") and MSIDE:
        if det == "mp" or (i == 10 and not det): a(f"s_memtime s[{80+2*i}:{81+2*i}]")
        return
    if det == "mp": return
    if opt("kq") and MSIDE:
        if det == "kq" or (i in (3, 4, 10) and not det): a(f"s_memtime s[{80+2*i}:{81+2*i}]")
        return
    if det == "kq": return
    if opt("s2") and MSIDE and (i in (1, 2, 3, 4, 5, 6)) != det: return
    if det and not opt("s2"): return
    a(("s_memrealtime" if opt("rt") else "s_memtime") + f" s[{80+2*i}:{81+2*i}]")
def dump_stamps():
    if not STAMP: return
    if opt("enc"):
        wg, i0, i1 = [int(x) for x in str(opt("enc")).split(":")]
        if wg >= 0: a(f"s_cmp_eq_u32 s2, {wg}\ns_cbranch_scc0 EN_d")
        a(f"s_cmp_eq_u32 s28, 0\ns_cbranch_scc0 EN_d\ns_waitcnt lgkmcnt(0)\ns_sub_u32 s30, s{80+2*i1}, s{80+2*i0}\ns_min_u32 s30, s30, 5000\ns_mul_i32 s30, s30, 10")
        a("EN_l:\ns_memrealtime s[32:33]\ns_waitcnt lgkmcnt(0)\ns_sub_u32 s32, s32, s100\ns_cmp_lt_u32 s32, s30\ns_cbranch_scc1 EN_l\nEN_d:")
        return
    a("s_waitcnt lgkmcnt(0)\ns_memrealtime s[30:31]\ns_waitcnt lgkmcnt(0)")
    for i in range(16):
        a(f"v_mov_b32 v{i+32}, " + (f"s{80+2*i}" if i < 11 else {15: "s30", 14: "s27", 13: "s0"}.get(i, "0")))
    a(f"s_lshl_b32 s30, s2, 3\ns_add_u32 s30, s30, s28\ns_lshl_b32 s30, s30, 6\ns_add_u32 s30, s30, {ST_OFF}\nv_mov_b32 v1, 0\ns_mov_b64 exec, 1")
    for q in range(4): a(f"buffer_store_dwordx4 v[{32+4*q}:{35+4*q}], v1, s[44:47], s30 offen offset:{16*q} sc1")
uid = 0
def lab():
    global uid; uid += 1; return uid
def pr(r): return f"v[{r}:{r+1}]"
def q4(r): return f"v[{r}:{r+3}]"
def poll(vt, voff, soff):
    u = lab()
    a(f"s_mov_b32 s67, 0\nPL{u}:\nbuffer_load_dwordx2 {pr(vt)}, {voff}, s[44:47], {soff} offen sc1\ns_waitcnt vmcnt(0)")
    a(f"v_cmp_eq_u64 vcc, s[22:23], {pr(vt)}\ns_add_u32 s67, s67, 1\ns_nop 0\ns_cmp_eq_u64 vcc, -1\ns_cbranch_scc1 PD{u}")
    if opt("bo"): a(f"s_sleep {opt('bo')}")
    a(f"s_cmp_lt_u32 s67, {SPIN}\ns_cbranch_scc1 PL{u}\nPD{u}:")
def setflag(vt, vlane16, soff, wide=False):
    if wide and FW:
        a(f"s_mov_b64 exec, {(1 << FW) - 1}\nbuffer_store_dwordx4 {q4(vt)}, {vlane16}, s[44:47], {soff} offen sc1\ns_mov_b64 exec, -1"); return
    a(f"s_mov_b64 exec, 1\nbuffer_store_dwordx2 {pr(vt)}, {vlane16}, s[44:47], {soff} offen sc1\ns_mov_b64 exec, -1")
def tag_load(): a(f"s_mov_b32 s67, {X_OFF}\ns_load_dwordx2 s[22:23], s[24:25], s67")
def tag_make(): a("s_add_u32 s22, s22, 0x7f4a7c15\ns_addc_u32 s23, s23, 0x9e3779b9")
def mapping():
    a("""s_and_b32 s30, s2, 1
s_lshr_b32 s31, s2, 3
s_bfe_u32 s52, s2, 0x20001
s_lshl_b32 s30, s30, 5
s_add_u32 s30, s30, s31
s_cmp_eq_u32 s52, 3
s_cselect_b32 s54, 52, 43
s_cselect_b32 s55, 5, 6
s_cselect_b32 s56, 55, 54
s_mul_i32 s26, s30, s54
s_lshr_b32 s26, s26, 8
s_mul_i32 s31, s26, s55
s_sub_u32 s27, s30, s31
s_sub_u32 s57, s30, s56
s_cmp_ge_u32 s57, 5
s_cselect_b32 s58, 10, 9
s_cselect_b32 s31, 5, 0
s_sub_u32 s59, s57, s31
s_and_b32 s60, s57, 1
s_add_u32 s60, s60, 9
s_lshr_b32 s61, s57, 1
s_cmp_eq_u32 s52, 3
s_cselect_b32 s58, s60, s58
s_cselect_b32 s59, 5, s59
s_cselect_b32 s61, s61, s52
s_cmp_lt_u32 s30, s56
s_cselect_b32 s26, s26, s58
s_cselect_b32 s27, s27, s59
s_cselect_b32 s52, s52, s61
s_lshl_b32 s52, s52, 1
s_add_u32 s31, s52, 6
s_cmp_lt_u32 s27, 2
s_cselect_b32 s31, 0, s31
s_add_u32 s27, s27, s52
s_add_u32 s27, s27, s31
s_min_u32 s27, s27, 23""")
def toktile(dst, th, t):
    a(f"s_and_b32 {dst}, s2, 7\ns_lshl_b32 {dst}, {dst}, 3\ns_lshr_b32 {t}, s2, 6\ns_lshl_b32 {t}, {t}, 1\ns_add_u32 {dst}, {dst}, {t}\ns_add_u32 {dst}, {dst}, {th}")
VFA = 254; VFO = 255
def fin_setup(t0, t1):
    srd(a, 48, 20, 2048*1024)
    a(f"v_lshrrev_b32 {t0}, 3, v0\ns_lshl_b32 s42, s28, 3\nv_add_u32 {t0}, s42, {t0}\nv_and_b32 {t1}, 7, v0\nv_mul_u32_u24 v{VFA}, {PIT}, {t0}\nv_lshl_add_u32 v{VFA}, {t1}, 5, v{VFA}")
    a(f"v_lshlrev_b32 {t0}, 10, {t0}\nv_lshl_add_u32 v{VFO}, {t1}, 4, {t0}")
    a("s_and_b32 s42, s2, 7\ns_lshl_b32 s42, s42, 2\ns_lshr_b32 s43, s2, 6\ns_add_u32 s42, s42, s43\ns_lshl_b32 s42, s42, 16\ns_bfe_u32 s43, s2, 0x30003\ns_lshl_b32 s43, s43, 7\ns_add_u32 s42, s42, s43")

a(".p2align 12")
kstart(a, K)
a("s_cmp_ge_u32 s2, 256\ns_cbranch_scc1 L_exit")
stamp(0)
a("v_lshrrev_b32 v1, 6, v0\ns_load_dwordx16 s[4:19], s[0:1], 0\nv_readfirstlane_b32 s28, v1\ns_load_dwordx2 s[20:21], s[0:1], 64\ns_load_dwordx2 s[24:25], s[0:1], 80")
if STAMP: a("s_memrealtime s[0:1]")
VL = 251
a(f"v_and_b32 v0, 63, v0\nv_lshlrev_b32 v{VL}, 4, v0\ns_cmp_ge_u32 s28, 4\ns_cbranch_scc1 L_start")
a("s_getpc_b64 s[48:49]\nM_pc:\ns_and_b32 s49, s49, 0xffff\ns_mov_b32 s50, L_codeend-M_pc\ns_mov_b32 s51, 0x00020000")
a("s_lshr_b32 s30, s2, 3\ns_lshl_b32 s30, s30, 2\ns_add_u32 s30, s30, s28\ns_lshl_b32 s30, s30, 8")
for i in range(4): a(f"s_buffer_load_dword s3, s[48:51], s30 offset:{64*i}")
a("s_branch M_start")
a("L_start:\ns_setprio 3")
mapping()
a("s_sub_u32 s52, s28, 4\ns_mul_i32 s29, s26, 192")
a("v_lshrrev_b32 v2, 3, v0\nv_and_b32 v3, 7, v0\nv_lshrrev_b32 v4, 4, v0")
a("s_mul_i32 s54, s52, 48\ns_add_u32 s54, s54, s29\ns_lshl_b32 s54, s54, 10\ns_cmp_eq_u32 s27, 23\ns_cselect_b32 s54, 0x40000000, s54")
a("v_xor_b32 v5, v3, v4\nv_lshl_add_u32 v5, v5, 4, s54\nv_lshl_add_u32 v16, v2, 10, v5\nv_xor_b32 v7, 64, v16")
for i in range(1, 6): a(f"v_add_u32 v{16+i}, {i*8192}, v{16 if i%2==0 else 7}")
a("s_mul_i32 s53, s52, 6144")
a({"0": "s_mov_b32 s65, 0",
   "a": "s_and_b32 s65, s26, 1\ns_lshl_b32 s65, s65, 1\ns_and_b32 s31, s2, 1\ns_add_u32 s65, s65, s31\ns_lshl_b32 s65, s65, 1",
   "c": "s_and_b32 s65, s2, 1\ns_lshl_b32 s65, s65, 2",
   "r": "s_and_b32 s65, s2, 6",
   "s": "s_and_b32 s65, s2, 2\ns_lshl_b32 s65, s65, 1",
   "d": "s_and_b32 s65, s26, 1\ns_lshl_b32 s65, s65, 2",
   "h": "s_and_b32 s65, s2, 1\ns_lshl_b32 s65, s65, 1\ns_and_b32 s31, s26, 1\ns_add_u32 s65, s65, s31\ns_lshl_b32 s65, s65, 1",
   "i": "s_and_b32 s65, s2, 1\ns_lshl_b32 s65, s65, 2\ns_and_b32 s31, s26, 1\ns_add_u32 s65, s65, s31",
   "j": "s_mul_i32 s65, s26, 11\ns_lshr_b32 s65, s65, 5\ns_mul_i32 s65, s65, 3\ns_sub_u32 s65, s26, s65\ns_mul_i32 s65, s65, 3"}[ROT])
XM = int(opt("xm", 1)); XN = int(opt("xn", 4))
if XM:
    if opt("xm4"): a("s_and_b32 s75, s26, 3")
    else: a(f"s_and_b32 s75, s26, 1\ns_mul_i32 s75, s75, {XM}")
    a("s_mov_b32 s74, s65\ns_add_u32 s65, s65, s75")
a("s_lshl_b32 s54, s65, 7")
a("s_mov_b32 s34, 0x200000\ns_mov_b32 s35, 0x00020000\ns_mov_b32 s39, s35\ns_mov_b32 s43, s35\ns_mov_b32 s51, s35\ns_movk_i32 s50, 0x400")
a("s_lshl_b32 s66, s2, 13\ns_lshl_b32 s31, s52, 11\ns_add_u32 s66, s66, s31")
a("s_waitcnt lgkmcnt(0)")
a("s_mov_b32 s32, s4\ns_and_b32 s33, s5, 0xffff\ns_mov_b32 s48, s18\ns_and_b32 s49, s19, 0xffff")
stamp(1)
def wsetup():
    a("s_cmp_lt_u32 s27, 8\ns_cbranch_scc1 L_qkv")
    a("s_cmp_eq_u32 s27, 22\ns_cselect_b32 s31, 4, 12\ns_cmp_eq_u32 s27, 23\ns_cselect_b32 s31, 0, s31\nv_bfrev_b32 v11, 2")
    for i in range(3):
        a(f"v_add_u32 v8, {64*i}, v0\nv_mul_u32_u24 v9, 43691, v8\nv_lshrrev_b32 v9, 19, v9\nv_mul_u32_u24 v10, 12, v9\nv_sub_u32 v10, v8, v10\nv_cmp_gt_u32 vcc, s31, v10")
        a(f"v_lshrrev_b32 v8, 2, v9\nv_and_b32 v8, 2, v8\nv_xor_b32 v10, v10, v8\nv_mul_u32_u24 v9, 2752, v9\nv_lshl_add_u32 v9, v10, 4, v9\nv_cndmask_b32 v{22+i}, v11, v9, vcc\nv_cndmask_b32 v{25+i}, v11, v9, vcc")
    a(f"s_sub_u32 s3, s27, 8\ns_mul_i32 s3, s3, 192\ns_mul_i32 s67, s52, {16*2752}\ns_add_u32 s3, s3, s67\ns_mov_b32 s56, {64*2752}")
    a(f"s_mul_i32 s67, s52, 3072\ns_add_u32 s57, s67, {XIMG}")
    for i in range(1, 6): a(f"s_add_u32 s{57+i}, s57, {(i%3)*1024 + (W3OFF if i>=3 else 0)}")
    a(f"s_mov_b32 s38, {512*2752}\ns_mov_b32 s30, {LOG2E}\ns_mul_i32 s55, s65, s56\ns_add_u32 s55, s55, s3\ns_mov_b32 s42, s38")
    a("s_mov_b32 s36, s12\ns_and_b32 s37, s13, 0xffff\ns_mov_b32 s40, s14\ns_and_b32 s41, s15, 0xffff")
    a("s_branch L_go")
    a("L_qkv:")
    a("v_and_b32 v8, 1, v4\nv_lshlrev_b32 v8, 2, v8\nv_xor_b32 v8, v8, v3\nv_mul_u32_u24 v9, 3072, v2\nv_lshl_add_u32 v22, v8, 4, v9\nv_xor_b32 v8, 32, v22")
    for i in range(1, 6): a(f"v_add_u32 v{22+i}, {(i//2)*1024 + (i%2)*8*3072}, v{8 if i%2 else 22}")
    a(f"s_lshl_b32 s3, s27, 7\ns_mul_i32 s67, s52, {16*3072}\ns_add_u32 s3, s3, s67\ns_mov_b32 s56, {64*3072}")
    a(f"s_lshl_b32 s67, s52, 11\ns_add_u32 s57, s67, {XIMG}")
    for i in range(1, 6): a(f"s_add_u32 s{57+i}, s57, {(i//2)*8192 + (i%2)*1024}")
    a(f"s_mov_b32 s38, {512*3072}\ns_mov_b32 s30, {NLOG2E}\ns_mul_i32 s55, s65, s56\ns_add_u32 s55, s55, s3\ns_mov_b32 s42, s38")
    a("s_mov_b32 s36, s6\ns_and_b32 s37, s7, 0xffff\ns_mov_b32 s40, s6\ns_and_b32 s41, s7, 0xffff")
    a("L_go:")
vm = VM()
def dma(q, c):
    sl = (c % 3) * SLOT; q = QO[q] if c else q
    if q < 6: a(f"s_add_u32 m0, s53, {sl + q*1024}\ns_nop 0"); return vm.op(f"buffer_load_dwordx4 v{16+q}, s[32:35], s54 offen lds")
    i = q - 6
    a(f"s_add_u32 m0, s{57+i}, {sl}\ns_nop 0"); return vm.op(f"buffer_load_dwordx4 v{22+i}, s[{36 if i<3 else 40}:{39 if i<3 else 43}], s55 offen lds")
def adv(c):
    if XM and c <= XN:
        a((f"s_xor_b32 s54, s19, {c}" if c < XN else f"s_mov_b32 s54, {c}") + "\ns_add_u32 s54, s54, s11\ns_and_b32 s54, s54, 7\ns_mul_i32 s55, s54, s56\ns_add_u32 s55, s55, s3\ns_lshl_b32 s54, s54, 7")
    else: a("s_add_u32 s54, s54, 128\ns_add_u32 s55, s55, s56\ns_and_b32 s54, s54, 0x3ff\ns_cselect_b32 s55, s55, s3")
OV = 32; GR = 120
lastof = {}
for q in range(12 + NB[0]):
    if q == XPOS:
        vm.op(f"buffer_load_dwordx4 {q4(GR+4)}, v{VL}, s[32:35], s66 offen"); vm.op(f"buffer_load_dwordx4 {q4(GR+8)}, v{VL}, s[32:35], s66 offen offset:1024")
        gl = vm.op(f"buffer_load_dwordx4 {q4(GR)}, v{VL}, s[48:51], 0 offen")
    if q == 6:
        wsetup()
        tag_load(); a(f"s_lshl_b32 s67, s2, 6\ns_add_u32 s67, s67, {S_OFF}\ns_load_dword s10, s[24:25], s67")
    if q == 13 and opt("burst"):
        a(f"v_lshlrev_b32 v12, 7, v0\ns_lshl_b32 s67, s2, 2\ns_add_u32 s67, s67, s52\ns_lshl_b32 s67, s67, 12\ns_mov_b32 exec_hi, 0\ns_add_u32 s67, s67, {12 << 20}\nbuffer_load_dword v14, v12, s[44:47], s67 offen\ns_mov_b64 exec, -1")
    if q == 12:
        if XM: a("s_mov_b32 s11, s74\ns_mov_b32 s19, s75")
        srd(a, 44, 24, WSB); srd(a, 72, 8, 512*1024); srd(a, 68, 16, 1376*1024); adv(1)
    if q < 12: last = dma(q, 0)
    else: nxt = dma(q - 12, 1)
def gate_dots():
    a("v_mov_b32 v8, 0\nv_mov_b32 v9, 0")
    for d in range(4): a(f"v_dot2c_f32_bf16 v8, v{GR+4+d}, v{GR+d}\nv_dot2c_f32_bf16 v9, v{GR+8+d}, v{GR+d}")
    a(f"s_lshr_b32 s66, s66, 7\ns_add_u32 s66, s66, {S_OFF - 63*16}\ns_nop 0")
    for ctl in ["quad_perm:[1,0,3,2] row_mask:0xf", "quad_perm:[2,3,0,1] row_mask:0xf", "row_half_mirror row_mask:0xf", "row_mirror row_mask:0xf", "row_bcast:15 row_mask:0xa", "row_bcast:31 row_mask:0xc"]:
        a(f"v_add_f32_dpp v8, v8, v8 {ctl} bank_mask:0xf\nv_add_f32_dpp v9, v9, v9 {ctl} bank_mask:0xf\ns_nop 0")
    a("v_mov_b32 v10, s22\nv_mov_b32 v11, s23")
a("s_waitcnt lgkmcnt(0)"); tag_make()
if XPOS < 6 and not opt("glate"): vm.wait(gl); gate_dots()
a("s_setprio " + str(opt("lprio", 0)))
def pf(n, srdn, off):
    for i in range(n): a(f"s_buffer_load_dword s10, s[{srdn}:{srdn+3}], {off} offset:{64*i}")
w2done = 0
KQ = [int(x) for x in str(opt("kq4", "000000"))]
ovl = [(i, kh) for i in list(range(22, 30)) + [19, 20] for kh in range(2)]; nq = 0
KO = [int(x) for x in str(opt("ko", "000000"))]; kol = ovl[16 - sum(KO):16]; kod = []
assert sum(KO) + sum(KQ) <= 16
def wtext(j):
    mat, row = wrow(*j); s_ = 68 if mat == "w2" else 72
    return f"s_add_u32 s67, s64, {row*1024}", (f"buffer_load_dwordx4 {q4(OV + 4*ovl.index(j))}, v28, s[{s_}:{s_+3}], s67 offen" if j in ovl else f"buffer_load_dwordx4 v28, s[{s_}:{s_+3}], s67 offen lds")
kad = 0
def keep(c):
    global kad
    if str(c) not in KA: return
    a(f"s_lshl_b32 s67, s2, 2\ns_add_u32 s67, s67, s52\ns_mul_i32 s67, s67, 2816\ns_add_u32 s67, s67, {13 << 20}")
    for i in range(KN): a(f"s_buffer_load_dword s10, s[44:47], s67 offset:{128*kad}"); kad += 1
def lbar(c):
    if opt("lb") == "a": stamp(2 + c, "lb")
    if opt("lb") == "c" and c >= 4: stamp(2 * c - 6, "lb")
    a("s_barrier")
    if opt("lb") == "c" and c >= 4: stamp(2 * c - 5, "lb")
    if opt("lb") == "b": stamp(2 + c, "lb")
for c in range(6):
    vm.wait(last); lbar(c)
    last = nxt
    for q in range(NB[c], 12): last = dma(q, c + 1)
    if c == 0:
        if not (XPOS < 6 and not opt("glate")): vm.wait(gl); gate_dots()
        a("s_brev_b64 exec, 1"); vm.op(f"buffer_store_dwordx4 v[8:11], v{VL}, s[44:47], s66 offen sc1"); a("s_mov_b64 exec, -1")
    if c == SPC:
        a("s_cmp_lt_u32 s27, 8\ns_cbranch_scc1 L_spq")
        if WF: a(f"s_lshl_b32 s67, s26, 5\ns_add_u32 s67, s67, s27\ns_lshl_b32 s67, s67, {FSH}\ns_add_u32 s67, s67, {FH - (8 << FSH)}\ns_buffer_load_dword s10, s[44:47], s67\ns_buffer_load_dword s10, s[44:47], s67 offset:64")
        else: a(f"s_lshl_b32 s67, s26, 1\ns_lshr_b32 s31, s52, 1\ns_add_u32 s67, s67, s31\ns_lshl_b32 s67, s67, 4\ns_add_u32 s67, s67, s27\ns_lshl_b32 s67, s67, 1\ns_and_b32 s31, s52, 1\ns_add_u32 s67, s67, s31\ns_lshl_b32 s67, s67, {FSH}\ns_add_u32 s67, s67, {FH - (16 << FSH)}\ns_buffer_load_dword s10, s[44:47], s67\ns_buffer_load_dword s10, s[44:47], s67 offset:64")
        a("s_branch L_spd\nL_spq:\ns_lshl_b32 s31, s27, 2\ns_add_u32 s31, s31, s52")
        a(f"s_lshl_b32 s67, s26, 5\ns_add_u32 s67, s67, s31\ns_lshl_b32 s67, s67, {FSH}\ns_add_u32 s67, s67, {FO}\ns_buffer_load_dword s10, s[44:47], s67\ns_buffer_load_dword s10, s[44:47], s67 offset:64")
        a(f"s_mul_i32 s67, s31, 11\ns_add_u32 s67, s67, s26\ns_mul_i32 s67, s67, {PSZ}\ns_add_u32 s67, s67, {P_OFF}")
        for i in range(9): a(f"s_buffer_load_dword s10, s[44:47], s67 offset:{128*i}")
        a("s_buffer_load_dword s10, s[44:47], s67 offset:1088\nL_spd:")
    if c == 2:
        a("s_bfe_u32 s31, s2, 0x30003\ns_and_b32 s77, s52, 1\ns_lshl_b32 s76, s77, 1")
        a("v_and_b32 v13, 1, v4\nv_lshlrev_b32 v13, 2, v13\nv_xor_b32 v13, v13, v3\nv_xor_b32 v13, s76, v13\nv_lshlrev_b32 v13, 4, v13\nv_lshl_add_u32 v28, v2, 10, v13")
        a("s_lshl_b32 s31, s31, 7\ns_lshl_b32 s67, s52, 13\ns_add_u32 s64, s31, s67")
        a(f"s_lshl_b32 s63, s52, 10\nv_add_u32 v29, s63, v{VL}\nv_add_u32 v30, 0x10000, v29\nv_add_u32 v15, 0x20000, v29")
        toktile("s31", "s77", "s67")
        a(f"s_mul_i32 s67, s31, 86\ns_lshr_b32 s67, s67, 8\ns_lshl_b32 s79, s67, {FSH+5}\ns_add_u32 s79, s79, {FH}\ns_lshr_b32 s67, s67, 1\ns_lshl_b32 s18, s67, {FSH+5}\ns_add_u32 s18, s18, {FO}")
        if WF: a(f"s_sub_u32 s79, s18, {FO - FH}")
    if C3 == str(c):
        a("s_cmp_ge_u32 s52, 2\ns_cbranch_scc0 L_c3\nv_lshlrev_b32 v12, 10, v0\ns_lshr_b32 s67, s2, 3\ns_cmp_eq_u32 s52, 2\ns_cbranch_scc0 L_c3b")
        a(f"s_mul_i32 s67, s67, {43*1024}\ns_movk_i32 exec_hi, 0x7ff\nbuffer_load_dword v14, v12, s[68:71], s67 offen offset:384\ns_branch L_c3c\nL_c3b:")
        a("s_lshl_b32 s67, s67, 14\ns_mov_b64 exec, 0xffff\nbuffer_load_dword v14, v12, s[72:75], s67 offen offset:384\nL_c3c:\ns_mov_b64 exec, -1\nL_c3:")
    if c == 5:
        a(f"s_mul_i32 s66, s52, 24\ns_lshr_b32 s67, s29, 1\ns_add_u32 s66, s66, s67\nv_min_u32 v13, 23, v0\nv_lshlrev_b32 v12, 3, v13\nv_add_u32 v13, s66, v13\nv_min_u32 v13, 0x3ff, v13\nv_lshlrev_b32 v13, 4, v13")
        a(f"s_mul_i32 s67, s52, 192\ns_add_u32 s67, s67, {G_LDS}\nv_add_u32 v12, s67, v12\ns_mov_b32 s66, {S_OFF}")
        last = vm.op("buffer_load_dwordx4 v[8:11], v13, s[44:47], s66 offen sc1")
    keep(c)
    if LP[c] == "o": a("s_lshl_b32 s67, s2, 2\ns_add_u32 s67, s67, s52\ns_lshl_b32 s67, s67, 9"); pf(8, 72, "s67")
    if LP[c] == "w":
        a(f"s_mul_i32 s67, s2, 5504\ns_mul_i32 s31, s52, 704\ns_add_u32 s67, s67, s31\ns_add_u32 s67, s67, {2816*w2done}"); pf(11, 68, "s67"); w2done += 1
    adv(c + 2)
    for q in range(NB[c + 1]): nxt = dma(q, c + 2)
    for n in range(KO[c]):
        j = kol[len(kod)]; kod.append(j); ad, ld = wtext(j); a(ad); vm.op(ld)
    if KQ[c]:
        assert c >= 2
        a(f"s_cmp_lt_u32 s27, 8\ns_cbranch_scc0 L_kq{c}")
        for j in ovl[nq:nq + KQ[c]]: a("\n".join(wtext(j)))
        nq += KQ[c]; a(f"L_kq{c}:")
vm.wait(last); lbar(6)
last = nxt
for q in range(NB[6], 12): last = dma(q, 7)
pairs = lambda i0, i1: [(i, kh) for i in range(i0, i1) for kh in range(2)]
wq = pairs(0, 7) + [(21, 0)] + pairs(7, NRES) + [j for j in ovl if j not in kod] + pairs(NRES, 19)
if OVF: wq = [j for j in wq if j in ovl] + [j for j in wq if j not in ovl]
wid = {}
def wnext(th=None):
    j = wq.pop(0)
    if opt("now"): wid[j] = vm.n; return
    if nq and j == ovl[0]: a("s_cmp_lt_u32 s27, 8\ns_cbranch_scc1 L_kqd")
    ad, ld = wtext(j)
    if j not in ovl: a(f"s_add_u32 m0, s63, {wpos(*j)*4096}")
    a(ad)
    if th is not None: a(f"s_waitcnt vmcnt({th})")
    if j in ovl[:nq]: a(ld)
    else: wid[j] = vm.op(ld)
    if nq and j == ovl[nq - 1]: a("L_kqd:")
assert not nq or N6 + N7 >= 21 + nq
for n in range(min(4, N6)): wnext()
a("s_mov_b32 s31, 0\nL_gw:\nv_cmp_eq_u64 vcc, s[22:23], v[10:11]\ns_add_u32 s31, s31, 1\ns_nop 0\ns_cmp_eq_u64 vcc, -1\ns_cbranch_scc1 L_gd")
a(f"buffer_load_dwordx4 v[8:11], v13, s[44:47], s66 offen sc1\ns_cmp_lt_u32 s31, {SPIN}\ns_waitcnt vmcnt(0)\ns_cbranch_scc1 L_gw\nL_gd:")
a("v_mul_f32 v8, s30, v8\nv_mul_f32 v9, s30, v9\nv_exp_f32 v8, v8\nv_exp_f32 v9, v9\ns_mov_b32 s67, 0x7f000000\nv_add_f32 v8, 1.0, v8\nv_add_f32 v9, 1.0, v9\nv_min_f32 v8, s67, v8\nv_min_f32 v9, s67, v9")
a("ds_write_b64 v12, v[8:9]")
assert N6 <= G1 + (NOV if OVF else 0) and N6 + N7 <= G2 + NOV - len(kod)
for n in range(4, N6): wnext()
a(f"v_min_u32 v12, {14 if WF else 28}, v0\nv_lshlrev_b32 v12, {FSH}, v12\nv_and_b32 v13, 31, v0\nv_lshlrev_b32 v13, {FSH}, v13\nv_mov_b32 v14, {CNT_LDS}")
vm.wait(last, " lgkmcnt(0)")
stamp(2)
keep(6)
lbar(7)
for n in range(N7):
    if n == 14: keep(7)
    wnext(TH2)
fin_setup("v8", "v9")
stamp(3)
def ldswait(cmp, sl):
    u = lab()
    a(f"s_mov_b32 s31, 0\nLW{u}:\nds_read_b32 v8, v14\ns_add_u32 s31, s31, 1\ns_waitcnt lgkmcnt(0)\n{cmp}\ns_cmp_lt_u32 s31, {SPIN}\ns_cbranch_scc0 LD{u}\ns_cbranch_vccnz LD{u}\ns_sleep {sl}\ns_branch LW{u}\nLD{u}:")
NQX = min(int(opt("nqx", 7)), len(wq) - 12)
def wcond(items, br, th, name):
    a(f"s_cmp_lt_u32 s27, 8\n{br} {name}")
    for j in items:
        ad, ld = wtext(j); assert j not in ovl
        a(f"s_add_u32 m0, s63, {wpos(*j)*4096}\n{ad}\ns_waitcnt vmcnt({th})\n{ld}")
    a(name + ":")
qx = wq[:NQX]; wq = wq[NQX:]
if qx:
    wcond(qx, "s_cbranch_scc0", TH2, "L_qx0"); a.l.pop()
    a(f"s_waitcnt vmcnt({vm.cnt(wid[(NP0 - 1, 1)]) + NQX})\ns_branch L_qx1\nL_qx0:")
vm.wait(wid[(NP0 - 1, 1)])
a("L_qx1:\ns_barrier")
if qx: wcond(qx, "s_cbranch_scc1", TH, "L_qx2")
for j in qx: wid[j] = vm.n
a("s_cmp_lt_u32 s27, 8\ns_cselect_b32 s19, 4, s52")
while len(wq) > PA: wnext(TH)
if opt("nofh"): a("s_mov_b32 s19, 4")
a(f"s_cmp_lt_u32 s19, {1 if WF else 2}\ns_cbranch_scc0 L_np\nbuffer_load_dwordx2 v[8:9], v12, s[44:47], s79 offen sc1\nL_np:")
npa = 0 if opt("now") else len(wq)
while wq: wnext(TH)
stamp(4)
if opt("nofh"): a("s_waitcnt vmcnt(0)\ns_sleep 20\ns_branch L_s0")
a(f"s_cmp_lt_u32 s52, {1 if WF else 2}\ns_cbranch_scc0 L_s0\ns_cmp_lt_u32 s27, 8\ns_cbranch_scc1 L_sq")
a(f"s_waitcnt vmcnt({npa})\nv_cmp_eq_u64 vcc, s[22:23], v[8:9]\ns_nop 1\ns_cmp_eq_u64 vcc, -1\ns_cbranch_scc1 L_s0\ns_branch L_sp\nL_sq:")
ldswait("v_cmp_ne_u32 vcc, 0, v8", 2)
a("L_sp:")
poll(8, "v12", "s79")
a("L_s0:")
vm.wait(wid[(NRES - 1, 1)])
stamp(5)
a("s_barrier")
a("s_waitcnt vmcnt(0)\ns_barrier")
for n, j in enumerate(ovl):
    p = wpos(*j)
    if not opt("noovw"): a(f"ds_write_b128 v{(29, 30, 15)[p // 16]}, {q4(OV+4*n)} offset:{(p % 16) * 4096}")
stamp(6)
a("s_waitcnt lgkmcnt(0)")
if S2B: a("s_barrier")
a("s_cmp_eq_u32 s52, 0\ns_cbranch_scc0 L_o2")
poll(8, "v13", "s18")
a("L_o2:")
stamp(7)
a("s_barrier")
a(f"s_lshl_b32 s67, s2, 2\ns_add_u32 s67, s67, s52\ns_cmp_eq_u32 s67, 0\ns_cbranch_scc0 L_fin\ns_mov_b32 s67, {X_OFF}\nv_mov_b32 v8, s22\nv_mov_b32 v9, s23")
setflag(8, f"v{VL}", "s67")
a("s_branch L_fin")
a("L_exit:\ns_endpgm")

FR = 144; VX = 216; VW = 218; VGA = 220; VZS = 221; VZG = 222; VMK = 223; VG = 224; ONE = 236; VS = 240
WA = 244; VH = 248; VT = 250; TG = 252
HB = 32; RES = HB + 8 * HD
assert RES == 80
if opt("mpad"): a(f".fill {int(opt('mpad')) // 4}, 4, 0xbf800000")
a("M_start:"); MSIDE = True; stamp(1, "mp")
mapping()
a("s_lshr_b32 s52, s28, 1\ns_and_b32 s53, s28, 1")
a("v_and_b32 v2, 31, v0\nv_lshrrev_b32 v3, 5, v0\nv_bfe_u32 v4, v0, 1, 3\nv_and_b32 v14, 15, v0\nv_lshrrev_b32 v15, 4, v0")
a("s_mul_i32 s54, s52, 96\ns_cmp_lt_u32 s27, 8\ns_cselect_b32 s54, 0, s54\nv_add_u32 v5, s54, v14\nv_lshlrev_b32 v6, 7, v5")
a(f"v_xor_b32 v7, v15, v4\nv_lshl_add_u32 v{VX}, v7, 4, v6\nv_xor_b32 v{VX+1}, 64, v{VX}")
a(f"v_lshlrev_b32 v{VGA}, 2, v5\nv_add_u32 v{VGA}, {G_LDS}, v{VGA}")
a("v_bfe_u32 v8, v0, 4, 1\nv_bfe_u32 v9, v0, 2, 2\nv_and_b32 v10, 3, v0\nv_lshl_add_u32 v11, v15, 3, v9")
a(f"s_mov_b32 s63, 0\ns_mov_b32 s66, 0\ns_mov_b32 s65, {SLOT}")
a(f"v_and_b32 v12, 2, v9\nv_or_b32 v12, v12, v8\nv_lshlrev_b32 v12, 5, v12\nv_lshl_add_u32 v12, v11, 7, v12\nv_lshl_add_u32 v12, v10, 3, v12")
a(f"s_lshl_b32 s77, s52, 12\ns_add_u32 s57, s77, {12*8192}\nv_add_u32 v{WA}, s57, v12")
for c in (1, 2, 3): a(f"v_xor_b32 v{WA+c}, {32*c}, v{WA}")
a(f"v_lshlrev_b32 v12, 4, v14\nv_lshl_add_u32 v{VH}, v15, 9, v12\ns_lshl_b32 s79, s52, 30")
toktile("s60", "s53", "s62")
a(f"s_mul_i32 s60, s60, {HP*1024}\ns_mul_i32 s57, s52, {42*1024}\ns_add_u32 s76, s60, s57\ns_add_u32 s74, s60, {84*1024}\ns_lshl_b32 s57, s52, 14\ns_add_u32 s78, s60, s57\ns_add_u32 s78, s78, {96*1024}")
a(f"s_lshl_b32 s56, s53, 5\nv_add_u32 v12, s56, v14\nv_mul_u32_u24 v12, {PIT}, v12\nv_lshl_add_u32 v12, v15, 4, v12\ns_mul_i32 s56, s52, {64*PIT}\ns_add_u32 s56, s56, {PART}\nv_add_u32 v{VT}, s56, v12")
a(f"v_mov_b32 v{VS}, {CNT_LDS}\nv_mov_b32 v{VS+1}, 0\nds_write_b32 v{VS}, v{VS+1}")
stamp(2, "mp")
a("s_waitcnt lgkmcnt(0)")
stamp(3, "mp")
tag_load()
if WARM:
    a("s_mov_b64 exec, 0")
    for w in range(3): a(f"s_cmp_eq_u32 s28, {w}\ns_cbranch_scc1 WS_{w}")
    a("s_branch WS_3\nWRET:\ns_mov_b64 exec, -1\nWDONE:")
stamp(4, "mp")
srd(a, 44, 24, WSB)
fin_setup("v12", "v13")
PEEL = not opt("nopeel")
if not PEEL:
    for r in range(16, 144, 2): a(f"v_mov_b64 {pr(r)}, 0")
def m_ready():
    if not PEEL:
        for r in range(0, 16, 2): a(f"v_mov_b64 {pr(r)}, 0")
    stamp(5, "mp")
    a(f"v_mov_b32 v{VS+1}, 1\ns_waitcnt lgkmcnt(0)")
    stamp(6, "mp")
    tag_make()
    a(f"v_mov_b32 v{TG}, s22\nv_mov_b32 v{TG+1}, s23")
    stamp(1)
a("s_cmp_lt_u32 s27, 8\ns_cbranch_scc1 M_qkv")

def signal(): a(f"s_mov_b64 exec, 1\nds_add_u32 v{VS}, v{VS+1}\ns_mov_b64 exec, -1")
def kloop(kind, nleft):
    ffn = kind == "ffn"
    no, ni = (6, 6) if ffn else (12, 3)
    def O(o): return FR + 4 * o
    def I(st, i): return FR + 4 * no + 4 * ni * st + 4 * i
    def rx(r, ti, s): return [f"ds_read_b128 {q4(r)}, v{VX+s} offset:{2048*ti}"]
    def rw(r, k_, s):
        if ffn:
            fi, mat = k_ >> 1, k_ & 1; va = VW + (fi & 1); off = mat * W3OFF + s * 6144 + 32 * (fi & 2); st = 768
        else: va = VW; off = k_ * 8192 + s * 4096; st = 512
        return [f"ds_read_b64_tr_b16 {pr(r+2*rd)}, v{va} offset:{off + rd*st}" for rd in range(2)]
    rO = (lambda o, s: rw(O(o), o, s)) if ffn else (lambda o, s: rx(O(o), o, s))
    rI = (lambda st, i, s: rx(I(st, i), i, s)) if ffn else (lambda st, i, s: rw(I(st, i), i, s))
    def mf(o, i, st, zero=False):
        if ffn: d = 24 * o + 4 * i; A, B = O(o), I(st, i)
        else:
            d = 48 * i + 4 * o; A, B = (I(st, i), O(o)) if i == 0 else (O(o), I(st, i))
        return f"v_mfma_f32_16x16x32_bf16 {q4(d)}, {q4(A)}, {q4(B)}, {0 if zero else q4(d)}"
    SY = int(opt("sy", 10)); NTOP = 4 if ffn else 3
    DL = int(opt("dl", 1)); AL = opt("al")
    def step(s, head=False):
        ns = s ^ 1; qu = []; n = 0; pend = []
        e64 = "_e64" if AL else ""
        if s == 0:
            early = [f"s_cmp_eq_u32 s63, {2*SLOT}", f"s_cselect_b32 s64, {(-2*SLOT) & 0xffffffff}, s65", "s_add_u32 s63, s63, s64", "s_add_u32 s66, s66, 1", "s_cmp_lt_u32 s66, 8"]
            if AL: early = early[:2] + ["s_add_u32 s63, s63, s64", "s_add_u32 s66, s66, 0x100", "s_cmp_lt_u32 s66, 0x800"]; early = early[:2] + early[3:4] + early[2:3] + early[4:]
        else: early = [f"v_add_u32{e64} v{r}, s64, v{r}" for r in ([VX, VX + 1, VW] + ([VW + 1] if ffn else []))]
        carry = rO(no - 1, s) if DL else []
        if head:
            nf = 3 if ffn else 6; log = []
            def rd(tag, xs):
                for x in xs: a(x); log.append(tag)
            rd(("o", 0), rO(0, 0))
            for k_ in range(ni): rd(("i", k_), rI(0, k_, 0))
            for k_ in range(1, nf): rd(("o", k_), rO(k_, 0))
            carry = sum((rO(k_, 0) for k_ in range(nf, no)), []); done = 0
        else: a(f"s_waitcnt lgkmcnt({NTOP - len(carry)})")
        for o in range(no):
            for i_ in range(ni):
                i = ni - 1 - i_ if (o & 1 and opt("snake")) else i_
                if head and n < SY:
                    need = max(k_ + 1 for k_, t_ in enumerate(log) if t_ in (("o", o), ("i", i)))
                    if need > done: a(f"s_waitcnt lgkmcnt({len(log) - need})"); done = need
                a(mf(o, i, s, head)); n += 1
                if DL: qu += pend; pend = []
                if i_ == ni - 1:
                    if DL: pend = rO(o, ns)
                    else: qu += rO(o, ns)
                if n < SY:
                    if head:
                        if carry: a(carry.pop(0)); log.append(None)
                        if early and n >= 3: a(early.pop(0))
                    elif carry: a(carry.pop(0))
                    elif early: a(early.pop(0))
                elif n == SY:
                    assert not early
                    a("s_waitcnt lgkmcnt(0)")
                    if s == 1: a("s_barrier")
                    qu = qu[:2] + sum((rI(ns, k_, ns) for k_ in range(ni)), []) + qu[2:]
                elif qu: a(qu.pop(0))
        assert len(qu) <= 1, qu
        for x in qu: a(x)
    a("s_setprio " + str(opt("mprio", 2)))
    if PEEL: a(f"s_branch M_b0_{kind}\n.p2align 6\n.fill ((64 - ((M_loop_{kind} - M_b0_{kind}) & 63)) & 63) / 4, 4, 0xbf800000\nM_b0_{kind}:")
    a("s_barrier")
    stamp(2); stamp(7, "mp")
    if PEEL:
        a(f"M_head_{kind}:")
        step(0, True)
    else:
        first = rO(0, 0) + sum((rI(0, i, 0) for i in range(ni)), []) + sum((rO(o, 0) for o in range(1, no - DL)), [])
        for n, x in enumerate(first):
            if n == 12: a("s_waitcnt lgkmcnt(8)")
            a(x)
        a(f"s_branch M_in_{kind}\n.p2align 6")
    a(f"M_loop_{kind}:")
    step(1)
    a(f"M_in_{kind}:")
    step(0)
    a(f"s_cbranch_scc1 M_loop_{kind}")
    order = [(o, i) for o in range(no) for i in range(ni)] if ffn else [(o, i) for o in range(no) for i in (1, 2)] + [(o, 0) for o in range(no)]
    ms = [mf(o, i, 1) for o, i in order]
    gr = [f"ds_read2_b32 {pr(VG+2*i)}, v{VGA} offset0:{32*i} offset1:{32*i+16}" for i in range(3 if ffn else 6)]
    if DL: gr = rO(no - 1, 1) + gr
    a(f"s_waitcnt lgkmcnt({NTOP - (len(rO(0, 0)) if DL else 0)})")
    for n, x in enumerate(ms[:36 - nleft]):
        a(x)
        if gr: a(gr.pop(0))
        if n == 10:
            a("s_waitcnt lgkmcnt(0)")
    a("M_kend_%s:" % kind)
    stamp(3)
    return ms[36 - nleft:]
def bsel(hi, n): return " op_sel:[0" + ",1" * n + "]" if hi else " op_sel_hi:[1" + ",0" * n + "]"
def swaps(o): return [f"v_permlane16_swap_b32 v{o}, v{o+2}", f"v_permlane16_swap_b32 v{o+1}, v{o+3}"]

wbase = [12 * 8192, True]
def wreg(i): return RES + 16 * (i if i < NRES else i % (LA + 1))
def wreads(i):
    o = []; tgt = 38 * 4096 if i == 21 else pslot(i) * 8192
    if (i != 21) != wbase[1]:
        o += [f"v_{'add' if i != 21 else 'subrev'}_u32 v{WA+c}, s77, v{WA+c}" for c in range(4)]; wbase[1] = i != 21
    if not 0 <= tgt - wbase[0] <= 65536 - 1024:
        nb = 12 * 8192 if tgt >= 12 * 8192 else 65536 if tgt >= 65536 else 0
        o += [f"v_add_u32 v{WA+c}, {(nb - wbase[0]) & 0xffffffff}, v{WA+c}" for c in range(4)]; wbase[0] = nb
    rd = [f"ds_read_b64_tr_b16 {pr(wreg(i) + 4*c + 2*h)}, v{WA+c} offset:{tgt - wbase[0] + 512*h}" for c in range(4) for h in range(2)]
    rd[0] = "\n".join(o + rd[:1])
    return rd
def preread():
    for i in range(NP0):
        for x in wreads(i): a(x)

a(f"v_mul_u32_u24 v13, 192, v11\nv_lshl_add_u32 v13, v10, 3, v13\nv_add_u32 v13, {XIMG}, v13\ns_mul_i32 s54, s53, 3\nv_xor_b32 v12, s54, v8\nv_lshl_add_u32 v{VW}, v12, 5, v13\ns_add_u32 s54, s54, 1\nv_xor_b32 v12, s54, v8\nv_lshl_add_u32 v{VW+1}, v12, 5, v13")
a(f"s_lshl_b32 s59, s26, 1\ns_add_u32 s59, s59, s52\ns_mul_i32 s56, s59, {3*HP}\ns_lshl_b32 s59, s59, {FSH+5}")
a("s_sub_u32 s60, s27, 8\ns_lshl_b32 s60, s60, 1\ns_add_u32 s60, s60, s53\ns_mul_i32 s57, s60, 3\ns_add_u32 s56, s56, s57\ns_lshl_b32 s68, s56, 10")
a(f"s_add_u32 s69, s68, {HP*1024}\ns_add_u32 s70, s68, {2*HP*1024}")
a(f"s_lshl_b32 s60, s60, {FSH}\ns_add_u32 s71, s59, s60\ns_add_u32 s71, s71, {FH}")
if WF: a(f"s_lshl_b32 s71, s26, 5\ns_add_u32 s71, s71, s27\ns_lshl_b32 s71, s71, {FSH}\ns_add_u32 s71, s71, {FH - (8 << FSH)}")
a(f"s_mov_b32 s30, {NLOG2E}\ns_mov_b32 s31, {NLOG2E}")
m_ready()
NL = int(opt("nl", 22)); NPK = int(opt("npk", 1 if NL else 0))
assert NL <= 22
ops = kloop("ffn", NL)
TS = (168, 180, 144, 156, 192, 204)
for fi in range(3):
    for ti in range(3):
        un = 3 * fi + ti
        d = 48 * fi + 8 * ti; u = d + 24; t = TS[un % 6]; g = pr(VG + 2 * ti)
        if un < NPK:
            for j in range(8): ops.append(f"v_mul_f32 v{t+j}, s30, v{d+j}")
            for j in range(8): ops.append(f"v_exp_f32 v{t+j}, v{t+j}")
            for j in range(8): ops.append(f"v_fma_f32 v{t+j}, v{t+j}, v{VG+2*ti+(j>>2)}, v{VG+2*ti+(j>>2)}")
        else:
            for j in range(0, 8, 2): ops.append(f"v_pk_mul_f32 {pr(t+j)}, {pr(d+j)}, s[30:31]")
            for j in range(8): ops.append(f"v_exp_f32 v{t+j}, v{t+j}")
            for j in range(0, 8, 2): ops.append(f"v_pk_fma_f32 {pr(t+j)}, {pr(t+j)}, {g}, {g}" + bsel(j >= 4, 2))
        for j in range(0, 8, 2): ops.append(f"v_pk_mul_f32 {pr(d+j)}, {pr(d+j)}, {pr(u+j)}")
        for j in range(8): ops.append(f"v_rcp_f32 v{t+j}, v{t+j}")
        for j in range(0, 8, 2): ops.append(f"v_pk_mul_f32 {pr(d+j)}, {pr(d+j)}, {pr(t+j)}")
        for j in range(4): ops.append(f"v_cvt_pk_bf16_f32 v{t+8+j}, v{d+2*j}, v{d+2*j+1}")
        ops += swaps(t + 8)
        if not opt("nost"): ops.append(f"buffer_store_dwordx4 {q4(t+8)}, v{VL}, s[44:47], s{68+ti} offen offset:{1024*fi} sc1")
print("ffn epilogue model cycles", schedule(ops, a, window=NL + 40, holdpk=True), file=sys.stderr)
stamp(4)
if WF:
    a("s_cmp_eq_u32 s28, 0\ns_waitcnt vmcnt(0)\ns_barrier\ns_cbranch_scc0 M_nf"); setflag(TG, f"v{VL}", "s71", True); a("M_nf:")
    stamp(5); preread()
else:
    a("s_waitcnt vmcnt(0)")
    setflag(TG, f"v{VL}", "s71", True)
    stamp(5)
    a("s_barrier"); preread()
a("s_branch M_s2")

a("M_qkv:")
a(f"v_and_b32 v12, 2, v9\nv_or_b32 v12, v12, v8\nv_xor_b32 v12, s28, v12\nv_lshlrev_b32 v12, 5, v12\nv_lshl_add_u32 v12, v11, 7, v12\nv_lshl_add_u32 v12, v10, 3, v12\nv_add_u32 v{VW}, {XIMG}, v12")
a("s_lshl_b32 s60, s27, 2\ns_add_u32 s60, s60, s28")
a(f"s_mul_i32 s56, s26, {6*HP}\ns_add_u32 s56, s56, s60\ns_add_u32 s56, s56, 96\ns_lshl_b32 s36, s56, 10")
for ti in range(1, 6): a(f"s_add_u32 s{36+ti}, s36, {ti*HP*1024}")
a(f"s_lshl_b32 s59, s26, {FSH+5}\ns_lshl_b32 s57, s60, {FSH}\ns_add_u32 s71, s59, s57\ns_add_u32 s71, s71, {FO}")
a(f"s_mul_i32 s72, s60, {11*PSZ}\ns_add_u32 s72, s72, {P_OFF}\ns_mul_i32 s73, s26, {PSZ}\ns_add_u32 s73, s73, s72\ns_add_u32 s57, s72, {4*PSZ}\ns_add_u32 s58, s72, {8*PSZ}")
a("s_cmp_eq_u32 s26, 10\ns_cselect_b32 s75, 0, 0x3f803f80")
a(f"v_lshlrev_b32 v{VZS}, 4, v15\nv_mul_u32_u24 v12, {PSZ}, v14\nv_add_u32 v{VZG}, v12, v{VZS}\nv_lshl_add_u32 v{VZS}, v14, 6, v{VZS}\nv_mov_b32 v{VMK}, 0xffffff00")
for j in range(4): a(f"v_mov_b32 v{ONE+j}, 0x3f803f80")
a(f"s_mov_b32 s30, {LOG2E}\ns_mov_b32 s31, {LOG2E}\ns_mov_b32 s3, {EPS}")
m_ready()
for i in range(4): a(f"s_bfe_u32 s{32+i}, s22, {0x80000 + 8*i}")
qm = kloop("qkv", 12)
CK = 200; CZ = 216; TP = (192, 208)
def phi8(b, t, dst=None):
    if dst is None: dst = b
    o = []
    for j in range(0, 8, 2): o.append(f"v_pk_mul_f32 {pr(t+j)}, {pr(b+j)}, s[30:31]")
    for j in range(8): o.append(f"v_exp_f32 v{t+j}, v{t+j} clamp")
    for j in range(8): o.append(f"v_max_f32 v{b+j}, s3, v{b+j}")
    for j in range(0, 8, 2): o.append(f"v_pk_add_f32 {pr(b+j)}, {pr(b+j)}, {pr(t+j)}")
    for j in range(4): o.append(f"v_cvt_pk_bf16_f32 v{dst+j}, v{b+2*j}, v{b+2*j+1}")
    return o
ops = []
for p in range(6):
    dk = 48 + 8 * p; dv = 96 + 8 * p
    ops += phi8(dk, TP[p & 1])
    if p == 4: ops += [f"v_mov_b32 v{ONE+j}, s75" for j in range(4)]
    for j in range(4): ops.append(f"v_cvt_pk_bf16_f32 v{dv+j}, v{dv+2*j}, v{dv+2*j+1}")
    ops.append(f"v_mfma_f32_16x16x32_bf16 {q4(CK)}, {q4(dk)}, {q4(dv)}, {q4(CK) if p else 0}")
    ops.append(f"v_mfma_f32_16x16x32_bf16 {q4(CZ)}, {q4(dk)}, {q4(ONE)}, {q4(CZ) if p else 0}")
print("k epilogue model cycles", schedule(ops, a, window=30), file=sys.stderr)
stamp(1, "kq")
a(qm[0]); a(qm[1]); a("s_nop 4")
for j in range(4): a(f"v_and_or_b32 v{CK+j}, v{CK+j}, v{VMK}, s{32+j}")
a(f"buffer_store_dwordx4 {q4(CK)}, v{VL}, s[44:47], s73 offen sc1")
for j in range(4): a(f"v_and_or_b32 v{CZ+j}, v{CZ+j}, v{VMK}, s{32+j}")
stamp(2, "kq")
ZM = 0x30003 if opt("zw") else 0x10001
a(f"s_mov_b32 exec_lo, {ZM}\ns_mov_b32 exec_hi, {ZM}\nbuffer_store_dwordx4 {q4(CZ)}, v{VZS}, s[44:47], s73 offen offset:1024 sc1\ns_mov_b64 exec, -1")
stamp(4)
PBQ = int(opt("pbq", 0))
if PBQ == 0: a("s_barrier")
GK = 24; GZ = 72; GA = 76
EZ = int(opt("ez", 4))
def zload():
    for j in range(4): a(f"v_mov_b32 v{GZ+j}, s{32+j}")
    a(f"s_add_u32 s67, s67, 1\ns_cmp_lt_u32 s67, {SPIN}\ns_cselect_b32 s62, {0 if opt('noz') else 0xff}, 0\ns_mov_b32 exec_lo, 0x7ff07ff\ns_mov_b32 exec_hi, 0x7ff07ff")
    a(f"buffer_load_dwordx4 {q4(GZ)}, v{VZG}, s[44:47], s72 offen offset:1024 sc1\ns_mov_b64 exec, -1")
a("s_mov_b32 s67, 0")
assert PBQ <= EZ
if PBQ:
    schedule(qm[2:] + sum((phi8(8 * p, TP[p & 1], 4 * p) for p in range(PBQ)), []), a, window=40, holdpk=True)
    a("s_barrier")
    schedule(sum((phi8(8 * p, TP[p & 1], 4 * p) for p in range(PBQ, EZ)), []), a, window=40)
else: schedule(qm[2:] + sum((phi8(8 * p, TP[p & 1], 4 * p) for p in range(EZ)), []), a, window=40, holdpk=True)
def kvloads():
    for p in range(11): a(f"buffer_load_dwordx4 {q4(GK+4*p)}, v{VL}, s[44:47], {('s72', 's57', 's58')[p//4]} offen offset:{(p%4)*PSZ} sc1")
def zcheck(br):
    a("s_waitcnt vmcnt(0)")
    for j in range(4): a(f"v_xor_b32 v{GZ+j}, s{32+j}, v{GZ+j}")
    a(f"v_or3_b32 v{GA}, v{GZ}, v{GZ+1}, v{GZ+2}\nv_or_b32 v{GA}, v{GA}, v{GZ+3}\nv_and_b32 v{GA}, s62, v{GA}\nv_cmp_ne_u32 vcc, 0, v{GA}\ns_nop 0\n{br}")
zload()
schedule(sum((phi8(8 * p, TP[p & 1], 4 * p) for p in range(EZ, 6)), []), a, window=40)
stamp(5, "kq")
zcheck("s_cbranch_vccnz M_g1")
kvloads(); signal(); preread()
a("s_branch M_g3\nM_g1:")
zload(); preread()
a("s_branch M_g2\nM_gw:")
zload()
a("M_g2:")
zcheck("s_cbranch_vccnz M_gw")
kvloads(); signal()
a("M_g3:")
stamp(5); stamp(6, "kq")
for ctl in ["quad_perm:[1,0,3,2]", "quad_perm:[2,3,0,1]", "row_half_mirror", "row_mirror"]:
    for j in range(4): a(f"v_add_f32_dpp v{GZ+j}, v{GZ+j}, v{GZ+j} {ctl} row_mask:0xf bank_mask:0xf")
ZA = 216; KA = 78
a(f"s_mov_b32 vcc_lo, 0x55555555\ns_mov_b32 vcc_hi, 0x55555555\nv_cvt_pk_bf16_f32 v{GZ}, v{GZ}, v{GZ+1}\nv_cvt_pk_bf16_f32 v{GZ+1}, v{GZ+2}, v{GZ+3}")
a(f"v_cndmask_b32 v{ZA}, 0, v{GZ}, vcc\nv_cndmask_b32 v{ZA+1}, 0, v{GZ+1}, vcc\nv_xor_b32 v{ZA+2}, v{ZA}, v{GZ}\nv_xor_b32 v{ZA+3}, v{ZA+1}, v{GZ+1}")
DN = 192
ops = []
for p in range(6): ops.append(f"v_mfma_f32_16x16x32_bf16 {q4(DN+4*p)}, {q4(ZA)}, {q4(4*p)}, 0")
for p in range(6):
    for h in range(2):
        r = DN + 4 * p + h; ops += [f"v_add_f32 v{r}, s3, v{r}", f"v_mul_f32 v{r}, v{r}, v{VG+2*p+h}", f"v_rcp_f32 v{r}, v{r}"]
a("s_nop 1"); schedule(ops, a)
for p in range(11):
    a(f"s_waitcnt vmcnt({10-p})")
    r = GK + 4 * p
    for j in range(4): a(f"v_xor_b32 v{r+j}, s{32+j}, v{r+j}")
    a(f"v_or3_b32 v{GA}, v{r}, v{r+1}, v{GA}\nv_or3_b32 v{GA}, v{r+2}, v{r+3}, v{GA}")
    if p:
        for j in range(0, 4, 2): a(f"v_pk_add_f32 {pr(GK+j)}, {pr(GK+j)}, {pr(r+j)}")
a(f"v_and_b32 v{GA}, s62, v{GA}\nv_cmp_ne_u32 vcc, 0, v{GA}\nv_cvt_pk_bf16_f32 v{KA}, v{GK}, v{GK+1}\nv_cvt_pk_bf16_f32 v{KA+1}, v{GK+2}, v{GK+3}\ns_cbranch_vccnz M_gw\ns_nop 0")
stamp(7, "kq"); stamp(8, "kq")
ops = []
for p in range(6):
    for h in range(2): ops.append(f"v_mfma_f32_16x16x16_bf16 {q4(GK+8*p+4*h)}, {pr(KA)}, {pr(4*p+2*h)}, 0")
for p in range(6):
    n_ = GK + 8 * p; o = n_
    if p < int(opt("onp", 1)):
        for j in range(8): ops.append(f"v_mul_f32 v{n_+j}, v{n_+j}, v{DN+4*p+(j>>2)}")
    else:
        for j in range(0, 8, 2): ops.append(f"v_pk_mul_f32 {pr(n_+j)}, {pr(n_+j)}, {pr(DN+4*p)}" + bsel(j >= 4, 1))
    for j in range(4): ops.append(f"v_cvt_pk_bf16_f32 v{o+j}, v{n_+2*j}, v{n_+2*j+1}")
    ops += swaps(o)
    ops.append(f"buffer_store_dwordx4 {q4(o)}, v{VL}, s[44:47], s{36+p} offen sc1")
print("o block model cycles", schedule(ops, a, window=40, holdpk=True), file=sys.stderr)

stamp(9, "kq")
a("M_s2:")
stamp(6)
HLD = str(opt("hld", "sc1")).replace("none", "").replace("_", " ")
def hload(i):
    r = HB + 8 * (i % HD); o = []; va = VH
    if i == 21: base, jj = "s74", 0; va = VH + 1; o.append(f"v_add_u32 v{va}, s79, v{VH}")
    else: base, jj = ("s76", i) if i < 21 else ("s78", i - 22)
    if jj % 2 == 0 and jj: o.append(f"s_add_u32 {base}, {base}, 4096")
    ld = [f"buffer_load_dwordx4 {q4(r+4*t)}, v{va}, s[44:47], {base} offen offset:{(jj%2)*2048 + 256*t} {HLD}" for t in range(2)]
    return ["\n".join(o + ld[:1]), ld[1]]
a("s_barrier")
stamp(7)
for i in range(HD - 1):
    for x in hload(i): a(x)
NPRE = int(opt("npre", NRES))
for i in range(NP0, NPRE):
    for x in wreads(i): a(x)
issued = HD - 1; nread = NPRE
for i in range(30):
    h = HB + 8 * (i % HD); w = wreg(i)
    s1 = nread == NRES and i == NRES - NPRE
    a(f"s_waitcnt vmcnt({2 * (issued - 1 - i)})" + (" lgkmcnt(0)" if s1 or i == 29 else f" lgkmcnt({8*(LA-1)})" if i >= NRES else " lgkmcnt(8)" if i < NRES - NPRE else ""))
    if i == 0:
        a("s_cmp_lt_u32 s27, 8\ns_cbranch_scc0 M_noflag"); setflag(TG, f"v{VL}", "s71", True); a("s_nop 2\nM_noflag:")
        stamp(1, True)
    rd = []
    if nread < NRES: rd = wreads(nread); nread += 1
    elif NRES <= i + LA < 30: rd = wreads(i + LA)
    ld = []
    if issued < 30: ld = hload(issued); issued += 1
    n = 0
    for c in range(4):
        for t in range(2):
            d = 16 * t + 4 * c
            a(f"v_mfma_f32_16x16x32_bf16 {q4(d)}, {q4(w+4*c)}, {q4(h+4*t)}, {q4(d) if i else 0}")
            if n == 0 and (s1 or i == JS or (S2B and i == int(S2B))):
                st_ = (2, 3) if s1 else (6, 8) if i == JS else (4, 5)
                stamp(st_[0], True); a("s_barrier"); stamp(st_[1], st_[1] != 8)
            if LA == 1 or opt("rd2"):
                if n < 4:
                    for x in rd[2*n:2*n+2]: a(x)
                elif n in (4, 6) and ld: a(ld.pop(0))
            else:
                if rd: a(rd.pop(0))
                if n in (1, 5) and ld: a(ld.pop(0))
            n += 1
stamp(9)
a("s_nop 0")
for c in range(4):
    for t in range(2): a(f"ds_write_b128 v{VT}, {q4(16*t + 4*c)} offset:{16*t*PIT + 64*c}")
a("s_waitcnt lgkmcnt(0)")
a("L_fin:\ns_barrier")
a(f"ds_read_b128 v[16:19], v{VFA} offset:{PART}\nds_read_b128 v[24:27], v{VFA} offset:{PART+64*PIT}\nds_read_b128 v[20:23], v{VFA} offset:{PART+16}\nds_read_b128 v[28:31], v{VFA} offset:{PART+64*PIT+16}")
a("s_waitcnt lgkmcnt(2)\nv_pk_add_f32 v[16:17], v[16:17], v[24:25]\nv_pk_add_f32 v[18:19], v[18:19], v[26:27]\ns_waitcnt lgkmcnt(0)\nv_pk_add_f32 v[20:21], v[20:21], v[28:29]\nv_pk_add_f32 v[22:23], v[22:23], v[30:31]")
for j in range(4): a(f"v_cvt_pk_bf16_f32 v{16+j}, v{16+2*j}, v{17+2*j}")
a(f"buffer_store_dwordx4 v[16:19], v{VFO}, s[48:51], s42 offen " + str(opt("outflag", "sc1")).replace("_", " ").replace("none", ""))
stamp(10)
dump_stamps()
a("s_endpgm\nL_codeend:")
if WARM:
    import subprocess, tempfile, os
    def addrs(lines):
        t = []
        for i, x in enumerate(lines):
            if x is None: t.append(f"ZZ{i}:\ns_nop 0")
            elif re.match(r"(s_|v_|ds_|buffer_)", x): t.append(f"ZZ{i}:\n" + re.sub(r"WS_\d", "WRET", x))
            else: t.append(x)
        with tempfile.TemporaryDirectory() as d:
            open(d + "/t.s", "w").write("\n".join(t) + "\n")
            subprocess.check_call(["clang", "-x", "assembler", "-target", "amdgcn-amd-amdhsa", "-mcpu=gfx950", "-c", d + "/t.s", "-o", d + "/t.o"])
            sym = subprocess.check_output(["llvm-objdump", "-t", d + "/t.o"], text=True)
        return {int(m.group(2)): int(m.group(1), 16) for m in re.finditer(r"^([0-9a-f]+) .* ZZ(\d+)$", sym, re.M)}
    ENTRY = 0x300
    out = list(a.l); marks = []; nxt = 0x1000
    while True:
        ad = addrs(out); noins = False; pick = None
        for i, x in enumerate(out):
            if x is None: continue
            if x.startswith(("M_start:", "M_loop_", "M_b0_")): noins = True
            if i in ad and ad[i] + ENTRY >= nxt and not noins and not (out[i-1] or "").startswith(("s_add_u32 m0", "s_mov_b32 exec", "s_mov_b64 exec", "s_movk_i32 exec", "s_brev_b64 exec")):
                pick = i; break
            if x.startswith("WDONE:") or x.startswith("s_cbranch_scc1 M_loop_"): noins = False
        if pick is None: break
        at = ad[pick] + ENTRY
        if nxt % 0x1000 == 0 and at - nxt > 60: print("warning: page boundary %x not covered (stub at %x)" % (nxt, at), file=sys.stderr)
        out.insert(pick, None); marks.append(pick)
        page_end = (at | 0xfff) + 1
        left = page_end - at; k_ = -(-left // WARM)
        nxt = page_end if k_ <= 1 else at + left // k_
    n = len(marks); size = max(ad.values()); print("warm stubs", n, "code bytes", size, file=sys.stderr)
    assert size < 128 * 256
    for k_, m_ in enumerate(marks): out[m_] = f"WS_{k_}:\ns_cbranch_execz {'WS_%d' % (k_ + 4) if k_ + 4 < n else 'WRET'}"
    a.l = out
rodata(a)
kdesc(a, K, 256, 256)
open(OUT, "w").write(a.text())
```

```python
import sys, re
from asmlib import *
import sched
from sched import schedule
def opt(name, default=None):
    for x in sys.argv[1:]:
        if x == "--" + name: return True
        if x.startswith("--" + name + "="): return x.split("=", 1)[1]
    return default
STAMP = opt("stamp", False)
OUT = [x for x in sys.argv[1:] if not x.startswith("--")][0]
TH = int(opt("th", 7)); TH2 = int(opt("th2", 8))
N6 = int(opt("n6", 10)); N7 = int(opt("n7", 26))
PA = int(opt("pa", 0))
XPOS = int(opt("xpos", 0))
LP = str(opt("lp", "o-ww--"))
C3 = str(opt("c3", "4")); SPC = int(opt("spc", 1)); ROT = str(opt("rot", "c")); SIG = str(opt("sig", "d"))
WF = not opt("nowf")
NB = [int(x, 16) for x in str(opt("nb", "8888888"))]
QO = [int(x, 16) for x in str(opt("qo", "061728394a5b"))]
KA = str(opt("ka", "")); KN = int(opt("kn", 4))
OVF = not opt("noovf")
LV2 = opt("lv2")
WARM = int(opt("warm", 2048))
sched.PKGAP = int(opt("pkgap", 32))
SPIN = 1 << 16

SLOT = 49152; XIMG = 24576; W3OFF = 12288
NA = 39; NOV = 59 - NA; G1 = 15; G2 = 27
G_LDS = NA * 4096; CNT_LDS = G_LDS + 768
assert CNT_LDS + 64 <= 163840
HP = int(opt("hp", 129))
P_OFF = 9 << 20; FH = 10 << 20; S_OFF = (10 << 20) + (512 << 10); X_OFF = 11 << 20; ST_OFF = 12 << 20
FSH = int(opt("fsh", 6)); FW = int(opt("fw", 0))
FROW = 32 << FSH; FO = FH + 22 * FROW
PSZ = 1152; PIT = 256; PART = 6 * 4096
LOG2E = 0x3fb8aa3b; NLOG2E = 0xbfb8aa3b; EPS = 0x358637bd
WSB = 16 << 20
K = NAME + "_kernel"
def pslot(i):
    if i >= 22: i -= 20
    elif i >= 19: i -= 19
    return 12 + i if i < 7 else i - 7
def wpos(i, kh): return 38 if i == 21 else 2 * pslot(i) + kh
def wrow(i, kh):
    if LV2 and i < 14: return "w2", 48 * (i + 14 * kh)
    if LV2 and i < 21: return "w2b", 96 * (i - 14 + 7 * kh) + 32
    if i < 21: return "w2", 32 * (i + 21 * kh)
    if i == 21: return "w2", 32 * 42
    return "wo", 32 * (i - 22 + 8 * kh)
NRES = 10; NP0 = 7; S2B = int(opt("s2b", 12))
HD = int(opt("hd", 6)); LA = int(opt("la", 2))
JS = min(19 - LA, 23 - HD)

a = Asm(); MSIDE = False
header(a, ["; fused linear-attention + SwiGLU gated mix; generated by my own script",
           "; @launch grid=(256,1,1) block=(512,1,1) lds=163840"])
class VM:
    def __init__(self): self.n = 0
    def op(self, s): a(s); self.n += 1; return self.n
    def cnt(self, i): return min(self.n - i, 63)
    def wait(self, i, extra=""): a(f"s_waitcnt vmcnt({self.cnt(i)}){extra}")
def stamp(i, det=False):
    if not STAMP: return
    if opt("lb") and not MSIDE:
        if det == "lb" or i in (0, 1, 10): a(("s_memrealtime" if opt("rt") else "s_memtime") + f" s[{80+2*i}:{81+2*i}]")
        return
    if det == "lb": return
    if opt("mp") and MSIDE:
        if det == "mp" or (i == 10 and not det): a(f"s_memtime s[{80+2*i}:{81+2*i}]")
        return
    if det == "mp": return
    if opt("kq") and MSIDE:
        if det == "kq" or (i in (3, 4, 10) and not det): a(f"s_memtime s[{80+2*i}:{81+2*i}]")
        return
    if det == "kq": return
    if opt("s2") and MSIDE and (i in (1, 2, 3, 4, 5, 6)) != det: return
    if det and not opt("s2"): return
    a(("s_memrealtime" if opt("rt") else "s_memtime") + f" s[{80+2*i}:{81+2*i}]")
def dump_stamps():
    if not STAMP: return
    if opt("enc"):
        wg, i0, i1 = [int(x) for x in str(opt("enc")).split(":")]
        if wg >= 0: a(f"s_cmp_eq_u32 s2, {wg}\ns_cbranch_scc0 EN_d")
        a(f"s_cmp_eq_u32 s28, 0\ns_cbranch_scc0 EN_d\ns_waitcnt lgkmcnt(0)\ns_sub_u32 s30, s{80+2*i1}, s{80+2*i0}\ns_min_u32 s30, s30, 5000\ns_mul_i32 s30, s30, 10")
        a("EN_l:\ns_memrealtime s[32:33]\ns_waitcnt lgkmcnt(0)\ns_sub_u32 s32, s32, s100\ns_cmp_lt_u32 s32, s30\ns_cbranch_scc1 EN_l\nEN_d:")
        return
    a("s_waitcnt lgkmcnt(0)\ns_memrealtime s[30:31]\ns_waitcnt lgkmcnt(0)")
    for i in range(16):
        a(f"v_mov_b32 v{i+32}, " + (f"s{80+2*i}" if i < 11 else {15: "s30", 14: "s27", 13: "s0"}.get(i, "0")))
    a(f"s_lshl_b32 s30, s2, 3\ns_add_u32 s30, s30, s28\ns_lshl_b32 s30, s30, 6\ns_add_u32 s30, s30, {ST_OFF}\nv_mov_b32 v1, 0\ns_mov_b64 exec, 1")
    for q in range(4): a(f"buffer_store_dwordx4 v[{32+4*q}:{35+4*q}], v1, s[44:47], s30 offen offset:{16*q} sc1")
uid = 0
def lab():
    global uid; uid += 1; return uid
def pr(r): return f"v[{r}:{r+1}]"
def q4(r): return f"v[{r}:{r+3}]"
def poll(vt, voff, soff):
    u = lab()
    a(f"s_mov_b32 s67, 0\nPL{u}:\nbuffer_load_dwordx2 {pr(vt)}, {voff}, s[44:47], {soff} offen sc1\ns_waitcnt vmcnt(0)")
    a(f"v_cmp_eq_u64 vcc, s[22:23], {pr(vt)}\ns_add_u32 s67, s67, 1\ns_nop 0\ns_cmp_eq_u64 vcc, -1\ns_cbranch_scc1 PD{u}")
    if opt("bo"): a(f"s_sleep {opt('bo')}")
    a(f"s_cmp_lt_u32 s67, {SPIN}\ns_cbranch_scc1 PL{u}\nPD{u}:")
def setflag(vt, vlane16, soff, wide=False):
    if wide and FW:
        a(f"s_mov_b64 exec, {(1 << FW) - 1}\nbuffer_store_dwordx4 {q4(vt)}, {vlane16}, s[44:47], {soff} offen sc1\ns_mov_b64 exec, -1"); return
    a(f"s_mov_b64 exec, 1\nbuffer_store_dwordx2 {pr(vt)}, {vlane16}, s[44:47], {soff} offen sc1\ns_mov_b64 exec, -1")
def tag_load(): a(f"s_mov_b32 s67, {X_OFF}\ns_load_dwordx2 s[22:23], s[24:25], s67")
def tag_make(): a("s_add_u32 s22, s22, 0x7f4a7c15\ns_addc_u32 s23, s23, 0x9e3779b9")
def mapping():
    a("""s_and_b32 s30, s2, 1
s_lshr_b32 s31, s2, 3
s_bfe_u32 s52, s2, 0x20001
s_lshl_b32 s30, s30, 5
s_add_u32 s30, s30, s31
s_cmp_eq_u32 s52, 3
s_cselect_b32 s54, 52, 43
s_cselect_b32 s55, 5, 6
s_cselect_b32 s56, 55, 54
s_mul_i32 s26, s30, s54
s_lshr_b32 s26, s26, 8
s_mul_i32 s31, s26, s55
s_sub_u32 s27, s30, s31
s_sub_u32 s57, s30, s56
s_cmp_ge_u32 s57, 5
s_cselect_b32 s58, 10, 9
s_cselect_b32 s31, 5, 0
s_sub_u32 s59, s57, s31
s_and_b32 s60, s57, 1
s_add_u32 s60, s60, 9
s_lshr_b32 s61, s57, 1
s_cmp_eq_u32 s52, 3
s_cselect_b32 s58, s60, s58
s_cselect_b32 s59, 5, s59
s_cselect_b32 s61, s61, s52
s_cmp_lt_u32 s30, s56
s_cselect_b32 s26, s26, s58
s_cselect_b32 s27, s27, s59
s_cselect_b32 s52, s52, s61
s_lshl_b32 s52, s52, 1
s_add_u32 s31, s52, 6
s_cmp_lt_u32 s27, 2
s_cselect_b32 s31, 0, s31
s_add_u32 s27, s27, s52
s_add_u32 s27, s27, s31
s_min_u32 s27, s27, 23""")
def toktile(dst, th, t):
    a(f"s_and_b32 {dst}, s2, 7\ns_lshl_b32 {dst}, {dst}, 3\ns_lshr_b32 {t}, s2, 6\ns_lshl_b32 {t}, {t}, 1\ns_add_u32 {dst}, {dst}, {t}\ns_add_u32 {dst}, {dst}, {th}")
VFA = 254; VFO = 255
def fin_setup(t0, t1):
    srd(a, 48, 20, 2048*1024)
    a(f"v_lshrrev_b32 {t0}, 3, v0\ns_lshl_b32 s42, s28, 3\nv_add_u32 {t0}, s42, {t0}\nv_and_b32 {t1}, 7, v0\nv_and_b32 v{VFA}, 7, {t0}\nv_xor_b32 v{VFA}, v{VFA}, {t1}\nv_bfe_u32 v{VFO}, {t0}, 1, 1\nv_lshl_or_b32 v{VFA}, v{VFO}, 3, v{VFA}\nv_lshlrev_b32 v{VFA}, 4, v{VFA}\nv_lshl_add_u32 v{VFA}, {t0}, 8, v{VFA}")
    a(f"v_lshlrev_b32 {t0}, 10, {t0}\nv_lshl_add_u32 v{VFO}, {t1}, 4, {t0}")
    a("s_and_b32 s42, s2, 7\ns_lshl_b32 s42, s42, 2\ns_lshr_b32 s43, s2, 6\ns_add_u32 s42, s42, s43\ns_lshl_b32 s42, s42, 16\ns_bfe_u32 s43, s2, 0x30003\ns_lshl_b32 s43, s43, 7\ns_add_u32 s42, s42, s43")

a(".p2align 12")
kstart(a, K)
a("s_cmp_ge_u32 s2, 256\ns_cbranch_scc1 L_exit")
stamp(0)
a("v_lshrrev_b32 v1, 6, v0\ns_load_dwordx16 s[4:19], s[0:1], 0\nv_readfirstlane_b32 s28, v1\ns_load_dwordx2 s[20:21], s[0:1], 64\ns_load_dwordx2 s[24:25], s[0:1], 80")
if STAMP: a("s_memrealtime s[0:1]")
VL = 251
a(f"v_and_b32 v0, 63, v0\nv_lshlrev_b32 v{VL}, 4, v0\ns_cmp_ge_u32 s28, 4\ns_cbranch_scc1 L_start")
a("s_getpc_b64 s[48:49]\nM_pc:\ns_and_b32 s49, s49, 0xffff\ns_mov_b32 s50, L_codeend-M_pc\ns_mov_b32 s51, 0x00020000")
a("s_lshr_b32 s30, s2, 3\ns_lshl_b32 s30, s30, 2\ns_add_u32 s30, s30, s28\ns_lshl_b32 s30, s30, 8\ns_min_u32 s30, s30, L_codeend-M_pc-256")
for i in range(4): a(f"s_buffer_load_dword s3, s[48:51], s30 offset:{64*i}")
a("s_branch M_start")
a("L_start:\ns_setprio 3")
mapping()
a("s_sub_u32 s52, s28, 4\ns_mul_i32 s29, s26, 192")
a("v_lshrrev_b32 v2, 3, v0\nv_and_b32 v3, 7, v0\nv_lshrrev_b32 v4, 4, v0")
a("s_mul_i32 s54, s52, 48\ns_add_u32 s54, s54, s29\ns_lshl_b32 s54, s54, 10\ns_cmp_eq_u32 s27, 23\ns_cselect_b32 s54, 0x40000000, s54")
a("v_xor_b32 v5, v3, v4\nv_lshl_add_u32 v5, v5, 4, s54\nv_lshl_add_u32 v16, v2, 10, v5\nv_xor_b32 v7, 64, v16")
for i in range(1, 6): a(f"v_add_u32 v{16+i}, {i*8192}, v{16 if i%2==0 else 7}")
a("s_mul_i32 s53, s52, 6144")
a({"0": "s_mov_b32 s65, 0",
   "a": "s_and_b32 s65, s26, 1\ns_lshl_b32 s65, s65, 1\ns_and_b32 s31, s2, 1\ns_add_u32 s65, s65, s31\ns_lshl_b32 s65, s65, 1",
   "c": "s_and_b32 s65, s2, 1\ns_lshl_b32 s65, s65, 2",
   "r": "s_and_b32 s65, s2, 6",
   "s": "s_and_b32 s65, s2, 2\ns_lshl_b32 s65, s65, 1",
   "d": "s_and_b32 s65, s26, 1\ns_lshl_b32 s65, s65, 2",
   "h": "s_and_b32 s65, s2, 1\ns_lshl_b32 s65, s65, 1\ns_and_b32 s31, s26, 1\ns_add_u32 s65, s65, s31\ns_lshl_b32 s65, s65, 1",
   "i": "s_and_b32 s65, s2, 1\ns_lshl_b32 s65, s65, 2\ns_and_b32 s31, s26, 1\ns_add_u32 s65, s65, s31",
   "j": "s_mul_i32 s65, s26, 11\ns_lshr_b32 s65, s65, 5\ns_mul_i32 s65, s65, 3\ns_sub_u32 s65, s26, s65\ns_mul_i32 s65, s65, 3"}[ROT])
XM = int(opt("xm", 1)); XN = int(opt("xn", 4))
if XM:
    if opt("xm4"): a("s_and_b32 s75, s26, 3")
    else: a(f"s_and_b32 s75, s26, 1\ns_mul_i32 s75, s75, {XM}")
    a("s_mov_b32 s74, s65\ns_add_u32 s65, s65, s75")
a("s_lshl_b32 s54, s65, 7")
a("s_mov_b32 s34, 0x200000\ns_mov_b32 s35, 0x00020000\ns_mov_b32 s39, s35\ns_mov_b32 s43, s35\ns_mov_b32 s51, s35\ns_movk_i32 s50, 0x400")
a("s_lshl_b32 s66, s2, 13\ns_lshl_b32 s31, s52, 11\ns_add_u32 s66, s66, s31")
a("s_waitcnt lgkmcnt(0)")
a("s_mov_b32 s32, s4\ns_and_b32 s33, s5, 0xffff\ns_mov_b32 s48, s18\ns_and_b32 s49, s19, 0xffff")
if opt("tl"):
    a("s_lshl_b32 s67, s2, 12\ns_load_dword s10, s[6:7], s67\ns_load_dword s10, s[12:13], s67\ns_load_dword s10, s[14:15], s67")
stamp(1)
def wsetup():
    a("s_cmp_lt_u32 s27, 8\ns_cbranch_scc1 L_qkv")
    a("s_cmp_eq_u32 s27, 22\ns_cselect_b32 s31, 4, 12\ns_cmp_eq_u32 s27, 23\ns_cselect_b32 s31, 0, s31\nv_bfrev_b32 v11, 2")
    for i in range(3):
        a(f"v_add_u32 v8, {64*i}, v0\nv_mul_u32_u24 v9, 43691, v8\nv_lshrrev_b32 v9, 19, v9\nv_mul_u32_u24 v10, 12, v9\nv_sub_u32 v10, v8, v10\nv_cmp_gt_u32 vcc, s31, v10")
        a(f"v_lshrrev_b32 v8, 2, v9\nv_and_b32 v8, 2, v8\nv_xor_b32 v10, v10, v8\nv_mul_u32_u24 v9, 2752, v9\nv_lshl_add_u32 v9, v10, 4, v9\nv_cndmask_b32 v{22+i}, v11, v9, vcc\nv_cndmask_b32 v{25+i}, v11, v9, vcc")
    a(f"s_sub_u32 s3, s27, 8\ns_mul_i32 s3, s3, 192\ns_mul_i32 s67, s52, {16*2752}\ns_add_u32 s3, s3, s67\ns_mov_b32 s56, {64*2752}")
    a(f"s_mul_i32 s67, s52, 3072\ns_add_u32 s57, s67, {XIMG}")
    for i in range(1, 6): a(f"s_add_u32 s{57+i}, s57, {(i%3)*1024 + (W3OFF if i>=3 else 0)}")
    a(f"s_mov_b32 s38, {512*2752}\ns_mov_b32 s30, {LOG2E}\ns_mul_i32 s55, s65, s56\ns_add_u32 s55, s55, s3\ns_mov_b32 s42, s38")
    a("s_mov_b32 s36, s12\ns_and_b32 s37, s13, 0xffff\ns_mov_b32 s40, s14\ns_and_b32 s41, s15, 0xffff")
    a("s_branch L_go")
    a("L_qkv:")
    a("v_and_b32 v8, 1, v4\nv_lshlrev_b32 v8, 2, v8\nv_xor_b32 v8, v8, v3\nv_mul_u32_u24 v9, 3072, v2\nv_lshl_add_u32 v22, v8, 4, v9\nv_xor_b32 v8, 32, v22")
    for i in range(1, 6): a(f"v_add_u32 v{22+i}, {(i//2)*1024 + (i%2)*8*3072}, v{8 if i%2 else 22}")
    a(f"s_lshl_b32 s3, s27, 7\ns_mul_i32 s67, s52, {16*3072}\ns_add_u32 s3, s3, s67\ns_mov_b32 s56, {64*3072}")
    a(f"s_lshl_b32 s67, s52, 11\ns_add_u32 s57, s67, {XIMG}")
    for i in range(1, 6): a(f"s_add_u32 s{57+i}, s57, {(i//2)*8192 + (i%2)*1024}")
    a(f"s_mov_b32 s38, {512*3072}\ns_mov_b32 s30, {NLOG2E}\ns_mul_i32 s55, s65, s56\ns_add_u32 s55, s55, s3\ns_mov_b32 s42, s38")
    a("s_mov_b32 s36, s6\ns_and_b32 s37, s7, 0xffff\ns_mov_b32 s40, s6\ns_and_b32 s41, s7, 0xffff")
    a("L_go:")
vm = VM()
def dma(q, c):
    sl = (c % 3) * SLOT; q = QO[q] if c or opt("wf0") else q
    if q < 6: a(f"s_add_u32 m0, s53, {sl + q*1024}\ns_nop 0"); return vm.op(f"buffer_load_dwordx4 v{16+q}, s[32:35], s54 offen lds")
    i = q - 6
    a(f"s_add_u32 m0, s{57+i}, {sl}\ns_nop 0"); return vm.op(f"buffer_load_dwordx4 v{22+i}, s[{36 if i<3 else 40}:{39 if i<3 else 43}], s55 offen lds")
def adv(c):
    if XM and c <= XN:
        a((f"s_xor_b32 s54, s19, {c}" if c < XN else f"s_mov_b32 s54, {c}") + "\ns_add_u32 s54, s54, s11\ns_and_b32 s54, s54, 7\ns_mul_i32 s55, s54, s56\ns_add_u32 s55, s55, s3\ns_lshl_b32 s54, s54, 7")
    else: a("s_add_u32 s54, s54, 128\ns_add_u32 s55, s55, s56\ns_and_b32 s54, s54, 0x3ff\ns_cselect_b32 s55, s55, s3")
OV = 32; GR = 120
lastof = {}
for q in range(12 + NB[0]):
    if q == XPOS:
        vm.op(f"buffer_load_dwordx4 {q4(GR+4)}, v{VL}, s[32:35], s66 offen"); vm.op(f"buffer_load_dwordx4 {q4(GR+8)}, v{VL}, s[32:35], s66 offen offset:1024")
        gl = vm.op(f"buffer_load_dwordx4 {q4(GR)}, v{VL}, s[48:51], 0 offen")
    if q == (1 if opt("wf0") else 6): wsetup()
    if q == 6:
        tag_load(); a(f"s_lshl_b32 s67, s2, 6\ns_add_u32 s67, s67, {S_OFF}\ns_load_dword s10, s[24:25], s67")
    if q == 13 and opt("burst"):
        a(f"v_lshlrev_b32 v12, 7, v0\ns_lshl_b32 s67, s2, 2\ns_add_u32 s67, s67, s52\ns_lshl_b32 s67, s67, 12\ns_mov_b32 exec_hi, 0\ns_add_u32 s67, s67, {12 << 20}\nbuffer_load_dword v14, v12, s[44:47], s67 offen\ns_mov_b64 exec, -1")
    if q == 12:
        if XM: a("s_mov_b32 s11, s74\ns_mov_b32 s19, s75")
        srd(a, 44, 24, WSB); srd(a, 72, 8, 512*1024); srd(a, 68, 16, 1376*1024); adv(1)
    if q < 12: last = dma(q, 0)
    else: nxt = dma(q - 12, 1)
def gate_dots():
    a("v_mov_b32 v8, 0\nv_mov_b32 v9, 0")
    for d in range(4): a(f"v_dot2c_f32_bf16 v8, v{GR+4+d}, v{GR+d}\nv_dot2c_f32_bf16 v9, v{GR+8+d}, v{GR+d}")
    a(f"s_lshr_b32 s66, s66, 7\ns_add_u32 s66, s66, {S_OFF - 63*16}\ns_nop 0")
    for ctl in ["quad_perm:[1,0,3,2] row_mask:0xf", "quad_perm:[2,3,0,1] row_mask:0xf", "row_half_mirror row_mask:0xf", "row_mirror row_mask:0xf", "row_bcast:15 row_mask:0xa", "row_bcast:31 row_mask:0xc"]:
        a(f"v_add_f32_dpp v8, v8, v8 {ctl} bank_mask:0xf\nv_add_f32_dpp v9, v9, v9 {ctl} bank_mask:0xf\ns_nop 0")
    a("v_mov_b32 v10, s22\nv_mov_b32 v11, s23")
a("s_waitcnt lgkmcnt(0)"); tag_make()
if XPOS < 6 and not opt("glate"): vm.wait(gl); gate_dots()
a("s_setprio " + str(opt("lprio", 0)))
def pf(n, srdn, off):
    for i in range(n): a(f"s_buffer_load_dword s10, s[{srdn}:{srdn+3}], {off} offset:{64*i}")
w2done = 0
KQ = [int(x) for x in str(opt("kq4", "000000"))]
ovl = [(i, kh) for i in list(range(22, 30)) + [19, 20] for kh in range(2)]; nq = 0
KO = [int(x) for x in str(opt("ko", "000000"))]; kol = ovl[16 - sum(KO):16]; kod = []
assert sum(KO) + sum(KQ) <= 16
def wtext(j):
    mat, row = wrow(*j); s_ = 72 if mat == "wo" else 68
    return f"s_add_u32 s67, {'s78' if mat == 'w2b' else 's64'}, {row*1024}", (f"buffer_load_dwordx4 {q4(OV + 4*ovl.index(j))}, v28, s[{s_}:{s_+3}], s67 offen" if j in ovl else f"buffer_load_dwordx4 v28, s[{s_}:{s_+3}], s67 offen lds")
kad = 0
def keep(c):
    global kad
    if str(c) not in KA: return
    a(f"s_lshl_b32 s67, s2, 2\ns_add_u32 s67, s67, s52\ns_mul_i32 s67, s67, 2816\ns_add_u32 s67, s67, {13 << 20}")
    for i in range(KN): a(f"s_buffer_load_dword s10, s[44:47], s67 offset:{128*kad}"); kad += 1
def lbar(c):
    if opt("lb") == "a": stamp(2 + c, "lb")
    if opt("lb") == "c" and c >= 4: stamp(2 * c - 6, "lb")
    a("s_barrier")
    if opt("lb") == "c" and c >= 4: stamp(2 * c - 5, "lb")
    if opt("lb") == "b": stamp(2 + c, "lb")
for c in range(6):
    vm.wait(last); lbar(c)
    last = nxt
    for q in range(NB[c], 12): last = dma(q, c + 1)
    if c == 0:
        if not (XPOS < 6 and not opt("glate")): vm.wait(gl); gate_dots()
        a("s_brev_b64 exec, 1"); vm.op(f"buffer_store_dwordx4 v[8:11], v{VL}, s[44:47], s66 offen sc1"); a("s_mov_b64 exec, -1")
    if c == SPC:
        a("s_cmp_lt_u32 s27, 8\ns_cbranch_scc1 L_spq")
        if WF: a(f"s_lshl_b32 s67, s26, 5\ns_add_u32 s67, s67, s27\ns_lshl_b32 s67, s67, {FSH}\ns_add_u32 s67, s67, {FH - (8 << FSH)}\ns_buffer_load_dword s10, s[44:47], s67\ns_buffer_load_dword s10, s[44:47], s67 offset:{11*FROW if LV2 else 64}")
        else: a(f"s_lshl_b32 s67, s26, 1\ns_lshr_b32 s31, s52, 1\ns_add_u32 s67, s67, s31\ns_lshl_b32 s67, s67, 4\ns_add_u32 s67, s67, s27\ns_lshl_b32 s67, s67, 1\ns_and_b32 s31, s52, 1\ns_add_u32 s67, s67, s31\ns_lshl_b32 s67, s67, {FSH}\ns_add_u32 s67, s67, {FH - (16 << FSH)}\ns_buffer_load_dword s10, s[44:47], s67\ns_buffer_load_dword s10, s[44:47], s67 offset:64")
        a("s_branch L_spd\nL_spq:\ns_lshl_b32 s31, s27, 2\ns_add_u32 s31, s31, s52")
        a(f"s_lshl_b32 s67, s26, 5\ns_add_u32 s67, s67, s31\ns_lshl_b32 s67, s67, {FSH}\ns_add_u32 s67, s67, {FO}\ns_buffer_load_dword s10, s[44:47], s67\ns_buffer_load_dword s10, s[44:47], s67 offset:64")
        a(f"s_mul_i32 s67, s31, 11\ns_add_u32 s67, s67, s26\ns_mul_i32 s67, s67, {PSZ}\ns_add_u32 s67, s67, {P_OFF}")
        for i in range(9): a(f"s_buffer_load_dword s10, s[44:47], s67 offset:{128*i}")
        a("s_buffer_load_dword s10, s[44:47], s67 offset:1088\nL_spd:")
    if c == 2:
        a("s_bfe_u32 s31, s2, 0x30003\ns_and_b32 s77, s52, 1\ns_lshl_b32 s76, s77, 1")
        a("v_and_b32 v13, 1, v4\nv_lshlrev_b32 v13, 2, v13\nv_xor_b32 v13, v13, v3\nv_xor_b32 v13, s76, v13\nv_lshlrev_b32 v13, 4, v13\nv_lshl_add_u32 v28, v2, 10, v13")
        a("s_lshl_b32 s31, s31, 7\ns_lshl_b32 s67, s52, 13\ns_add_u32 s64, s31, s67\ns_lshr_b32 s67, s52, 1\ns_lshl_b32 s67, s67, 15\ns_add_u32 s78, s64, s67")
        a(f"s_lshl_b32 s63, s52, 10\nv_add_u32 v29, s63, v{VL}\nv_add_u32 v30, 0x10000, v29\nv_add_u32 v15, 0x20000, v29")
        toktile("s31", "s77", "s67")
        a(f"s_mul_i32 s67, s31, 86\ns_lshr_b32 s67, s67, 8\ns_lshl_b32 s79, s67, {FSH+5}\ns_add_u32 s79, s79, {FH}\ns_lshr_b32 s67, s67, 1\ns_lshl_b32 s18, s67, {FSH+5}\ns_add_u32 s18, s18, {FO}")
        if WF: a(f"s_sub_u32 s79, s18, {FO - FH}")
    if C3 == str(c):
        a("s_cmp_ge_u32 s52, 2\ns_cbranch_scc0 L_c3\nv_lshlrev_b32 v12, 10, v0\ns_lshr_b32 s67, s2, 3\ns_cmp_eq_u32 s52, 2\ns_cbranch_scc0 L_c3b")
        a(f"s_mul_i32 s67, s67, {43*1024}\ns_movk_i32 exec_hi, 0x7ff\nbuffer_load_dword v14, v12, s[68:71], s67 offen offset:384\ns_branch L_c3c\nL_c3b:")
        a("s_lshl_b32 s67, s67, 14\ns_mov_b64 exec, 0xffff\nbuffer_load_dword v14, v12, s[72:75], s67 offen offset:384\nL_c3c:\ns_mov_b64 exec, -1\nL_c3:")
    if c == 5:
        a(f"s_mul_i32 s66, s52, 24\ns_lshr_b32 s67, s29, 1\ns_add_u32 s66, s66, s67\nv_min_u32 v13, 23, v0\nv_lshlrev_b32 v12, 3, v13\nv_add_u32 v13, s66, v13\nv_min_u32 v13, 0x3ff, v13\nv_lshlrev_b32 v13, 4, v13")
        a(f"s_mul_i32 s67, s52, 192\ns_add_u32 s67, s67, {G_LDS}\nv_add_u32 v12, s67, v12\ns_mov_b32 s66, {S_OFF}")
        last = vm.op("buffer_load_dwordx4 v[8:11], v13, s[44:47], s66 offen sc1")
    keep(c)
    if LP[c] == "o": a("s_lshl_b32 s67, s2, 2\ns_add_u32 s67, s67, s52\ns_lshl_b32 s67, s67, 9"); pf(8, 72, "s67")
    if LP[c] == "w":
        a(f"s_mul_i32 s67, s2, 5504\ns_mul_i32 s31, s52, 704\ns_add_u32 s67, s67, s31\ns_add_u32 s67, s67, {2816*w2done}\ns_min_u32 s67, s67, {1376*1024 - 704}"); pf(11, 68, "s67"); w2done += 1
    adv(c + 2)
    for q in range(NB[c + 1]): nxt = dma(q, c + 2)
    for n in range(KO[c]):
        j = kol[len(kod)]; kod.append(j); ad, ld = wtext(j); a(ad); vm.op(ld)
    if KQ[c]:
        assert c >= 2
        a(f"s_cmp_lt_u32 s27, 8\ns_cbranch_scc0 L_kq{c}")
        for j in ovl[nq:nq + KQ[c]]: a("\n".join(wtext(j)))
        nq += KQ[c]; a(f"L_kq{c}:")
vm.wait(last); lbar(6)
last = nxt
for q in range(NB[6], 12): last = dma(q, 7)
pairs = lambda i0, i1: [(i, kh) for i in range(i0, i1) for kh in range(2)]
wq = pairs(0, 7) + [(21, 0)] + pairs(7, NRES) + [j for j in ovl if j not in kod] + pairs(NRES, 19)
if OVF: wq = [j for j in wq if j in ovl] + [j for j in wq if j not in ovl]
wid = {}
def wnext(th=None):
    j = wq.pop(0)
    if opt("now"): wid[j] = vm.n; return
    if nq and j == ovl[0]: a("s_cmp_lt_u32 s27, 8\ns_cbranch_scc1 L_kqd")
    ad, ld = wtext(j)
    if j not in ovl: a(f"s_add_u32 m0, s63, {wpos(*j)*4096}")
    a(ad)
    if th is not None: a(f"s_waitcnt vmcnt({th})")
    if j in ovl[:nq]: a(ld)
    else: wid[j] = vm.op(ld)
    if nq and j == ovl[nq - 1]: a("L_kqd:")
assert not nq or N6 + N7 >= 21 + nq
for n in range(min(4, N6)): wnext()
a("s_mov_b32 s31, 0\nL_gw:\nv_cmp_eq_u64 vcc, s[22:23], v[10:11]\ns_add_u32 s31, s31, 1\ns_nop 0\ns_cmp_eq_u64 vcc, -1\ns_cbranch_scc1 L_gd")
a(f"buffer_load_dwordx4 v[8:11], v13, s[44:47], s66 offen sc1\ns_cmp_lt_u32 s31, {SPIN}\ns_waitcnt vmcnt(0)\ns_cbranch_scc1 L_gw\nL_gd:")
a("v_mul_f32 v8, s30, v8\nv_mul_f32 v9, s30, v9\nv_exp_f32 v8, v8\nv_exp_f32 v9, v9\ns_mov_b32 s67, 0x7f000000\nv_add_f32 v8, 1.0, v8\nv_add_f32 v9, 1.0, v9\nv_min_f32 v8, s67, v8\nv_min_f32 v9, s67, v9")
a("ds_write_b64 v12, v[8:9]")
assert N6 <= G1 + (NOV if OVF else 0) and N6 + N7 <= G2 + NOV - len(kod)
for n in range(4, N6): wnext()
a(f"v_min_u32 v12, {14 if WF else 28}, v0\nv_lshlrev_b32 v12, {FSH}, v12\nv_and_b32 v13, 31, v0\nv_lshlrev_b32 v13, {FSH}, v13\nv_mov_b32 v14, {CNT_LDS}")
vm.wait(last, " lgkmcnt(0)")
stamp(2)
keep(6)
lbar(7)
for n in range(N7):
    if n == 14: keep(7)
    wnext(TH2)
fin_setup("v8", "v9")
stamp(3)
def ldswait(cmp, sl):
    u = lab()
    a(f"s_mov_b32 s31, 0\nLW{u}:\nds_read_b32 v8, v14\ns_add_u32 s31, s31, 1\ns_waitcnt lgkmcnt(0)\n{cmp}\ns_cmp_lt_u32 s31, {SPIN}\ns_cbranch_scc0 LD{u}\ns_cbranch_vccz LW{u}\nLD{u}:")
NQX = min(int(opt("nqx", 0)), len(wq) - 12)
def wcond(items, br, th, name):
    a(f"s_cmp_lt_u32 s27, 8\n{br} {name}")
    for j in items:
        ad, ld = wtext(j); assert j not in ovl
        a(f"s_add_u32 m0, s63, {wpos(*j)*4096}\n{ad}\ns_waitcnt vmcnt({th})\n{ld}")
    a(name + ":")
qx = wq[:NQX]; wq = wq[NQX:]
if qx:
    wcond(qx, "s_cbranch_scc0", TH2, "L_qx0"); a.l.pop()
    a(f"s_waitcnt vmcnt({vm.cnt(wid[(NP0 - 1, 1)]) + NQX})\ns_branch L_qx1\nL_qx0:")
vm.wait(wid[(NP0 - 1, 1)])
a("L_qx1:\ns_barrier")
if qx: wcond(qx, "s_cbranch_scc1", TH, "L_qx2")
for j in qx: wid[j] = vm.n
a("s_cmp_lt_u32 s27, 8\ns_cselect_b32 s19, 4, s52")
while len(wq) > PA: wnext(TH)
if opt("nofh"): a("s_mov_b32 s19, 4")
a(f"s_cmp_lt_u32 s19, {1 if WF else 2}\ns_cbranch_scc0 L_np\nbuffer_load_dwordx2 v[8:9], v12, s[44:47], s79 offen sc1\nL_np:")
npa = 0 if opt("now") else len(wq)
while wq: wnext(TH)
stamp(4)
if opt("nofh"): a("s_waitcnt vmcnt(0)\ns_sleep 20\ns_branch L_s0")
a(f"s_cmp_lt_u32 s52, {1 if WF else 2}\ns_cbranch_scc0 L_s0\ns_cmp_lt_u32 s27, 8\ns_cbranch_scc1 L_sq")
a(f"s_waitcnt vmcnt({npa})\nv_cmp_eq_u64 vcc, s[22:23], v[8:9]\ns_nop 1\ns_cmp_eq_u64 vcc, -1\ns_cbranch_scc1 L_s0\ns_branch L_sp\nL_sq:")
ldswait("v_cmp_ne_u32 vcc, 0, v8", 2)
a("L_sp:")
poll(8, "v12", "s79")
a("L_s0:")
vm.wait(wid[(NRES - 1, 1)])
stamp(5)
a("s_barrier")
a("s_waitcnt vmcnt(0)\ns_barrier")
for n, j in enumerate(ovl):
    p = wpos(*j)
    if LV2 and n == int(opt("l1p", 10)): a(f"s_add_u32 s79, s79, {11*FROW}\ns_cmp_eq_u32 s52, 0\ns_cbranch_scc0 L_l0\nbuffer_load_dwordx2 v[8:9], v12, s[44:47], s79 offen sc1\nL_l0:")
    if not opt("noovw"): a(f"ds_write_b128 v{(29, 30, 15)[p // 16]}, {q4(OV+4*n)} offset:{(p % 16) * 4096}")
stamp(6)
if LV2:
    a("s_cbranch_scc0 L_l1\ns_waitcnt vmcnt(0)\nv_cmp_eq_u64 vcc, s[22:23], v[8:9]\ns_nop 1\ns_cmp_eq_u64 vcc, -1\ns_cbranch_scc1 L_l1")
    poll(8, "v12", "s79"); a("L_l1:\ns_barrier")
a("s_waitcnt lgkmcnt(0)")
if S2B: a("s_barrier")
a("s_cmp_eq_u32 s52, 0\ns_cbranch_scc0 L_o2")
poll(8, "v13", "s18")
a("L_o2:")
stamp(7)
a("s_barrier")
a(f"s_lshl_b32 s67, s2, 2\ns_add_u32 s67, s67, s52\ns_cmp_eq_u32 s67, 0\ns_cbranch_scc0 L_fin\ns_mov_b32 s67, {X_OFF}\nv_mov_b32 v8, s22\nv_mov_b32 v9, s23")
setflag(8, f"v{VL}", "s67")
a("s_branch L_fin")
a("L_exit:\ns_endpgm")

FR = 144; VX = 216; VW = 218; VGA = 220; VZS = 221; VZG = 222; VMK = 223; VG = 224; ONE = 236; VS = 240
WA = 244; VH = 248; VT = 250; TG = 252
HB = 32; RES = HB + 8 * HD
assert RES == 80
if opt("mpad"): a(f".fill {int(opt('mpad')) // 4}, 4, 0xbf800000")
a("M_start:"); MSIDE = True; stamp(1, "mp")
mapping()
a("s_lshr_b32 s52, s28, 1\ns_and_b32 s53, s28, 1")
a("v_and_b32 v2, 31, v0\nv_lshrrev_b32 v3, 5, v0\nv_bfe_u32 v4, v0, 1, 3\nv_and_b32 v14, 15, v0\nv_lshrrev_b32 v15, 4, v0")
a("s_mul_i32 s54, s52, 96\ns_cmp_lt_u32 s27, 8\ns_cselect_b32 s54, 0, s54\nv_add_u32 v5, s54, v14\nv_lshlrev_b32 v6, 7, v5")
a(f"v_xor_b32 v7, v15, v4\nv_lshl_add_u32 v{VX}, v7, 4, v6\nv_xor_b32 v{VX+1}, 64, v{VX}")
a(f"v_lshlrev_b32 v{VGA}, 2, v5\nv_add_u32 v{VGA}, {G_LDS}, v{VGA}")
a("v_bfe_u32 v8, v0, 4, 1\nv_bfe_u32 v9, v0, 2, 2\nv_and_b32 v10, 3, v0\nv_lshl_add_u32 v11, v15, 3, v9")
a(f"s_mov_b32 s63, 0\ns_mov_b32 s66, 0\ns_mov_b32 s65, {SLOT}")
a(f"v_and_b32 v12, 2, v9\nv_or_b32 v12, v12, v8\nv_lshlrev_b32 v12, 5, v12\nv_lshl_add_u32 v12, v11, 7, v12\nv_lshl_add_u32 v12, v10, 3, v12")
a(f"s_lshl_b32 s77, s52, 12\ns_add_u32 s57, s77, {12*8192}\nv_add_u32 v{WA}, s57, v12")
for c in (1, 2, 3): a(f"v_xor_b32 v{WA+c}, {32*c}, v{WA}")
a(f"v_lshlrev_b32 v12, 4, v14\nv_lshl_add_u32 v{VH}, v15, 9, v12\ns_lshl_b32 s79, s52, 30")
toktile("s60", "s53", "s62")
a(f"s_mul_i32 s60, s60, {HP*1024}\ns_mul_i32 s57, s52, {42*1024}\ns_add_u32 s76, s60, s57\ns_add_u32 s74, s60, {84*1024}\ns_lshl_b32 s57, s52, 14\ns_add_u32 s78, s60, s57\ns_add_u32 s78, s78, {96*1024}")
a(f"s_lshl_b32 s56, s53, 5\nv_add_u32 v12, s56, v14\nv_lshlrev_b32 v12, 8, v12\nv_bfe_u32 v13, v0, 1, 1\nv_xor_b32 v13, v13, v8\nv_lshl_add_u32 v12, v13, 7, v12\nv_and_b32 v13, 7, v0\nv_xor_b32 v13, v13, v3\nv_lshl_add_u32 v12, v13, 4, v12\ns_mul_i32 s56, s52, {64*PIT}\ns_add_u32 s56, s56, {PART}\nv_add_u32 v{VT}, s56, v12")
a(f"v_mov_b32 v{VS}, {CNT_LDS}\nv_mov_b32 v{VS+1}, 0\nds_write_b32 v{VS}, v{VS+1}")
stamp(2, "mp")
a("s_waitcnt lgkmcnt(0)")
stamp(3, "mp")
tag_load()
if WARM:
    a("s_mov_b64 exec, 0")
    for w in range(3): a(f"s_cmp_eq_u32 s28, {w}\ns_cbranch_scc1 WS_{w}")
    a("s_branch WS_3\nWRET:\ns_mov_b64 exec, -1\nWDONE:")
stamp(4, "mp")
srd(a, 44, 24, WSB)
fin_setup("v12", "v13")
PEEL = not opt("nopeel")
if not PEEL:
    for r in range(16, 144, 2): a(f"v_mov_b64 {pr(r)}, 0")
def m_ready():
    if not PEEL:
        for r in range(0, 16, 2): a(f"v_mov_b64 {pr(r)}, 0")
    stamp(5, "mp")
    a(f"v_mov_b32 v{VS+1}, 1\ns_waitcnt lgkmcnt(0)")
    stamp(6, "mp")
    tag_make()
    a(f"v_mov_b32 v{TG}, s22\nv_mov_b32 v{TG+1}, s23")
    stamp(1)
a("s_cmp_lt_u32 s27, 8\ns_cbranch_scc1 M_qkv")

def signal(): a(f"s_mov_b64 exec, 1\nds_add_u32 v{VS}, v{VS+1}\ns_mov_b64 exec, -1")
def kloop(kind, nleft):
    ffn = kind == "ffn"
    no, ni = (6, 6) if ffn else (12, 3)
    def O(o): return FR + 4 * o
    def I(st, i): return FR + 4 * no + 4 * ni * st + 4 * i
    def rx(r, ti, s): return [f"ds_read_b128 {q4(r)}, v{VX+s} offset:{2048*ti}"]
    def rw(r, k_, s):
        if ffn:
            fi, mat = k_ >> 1, k_ & 1; va = VW + (fi & 1); off = mat * W3OFF + s * 6144 + 32 * (fi & 2); st = 768
        else: va = VW; off = k_ * 8192 + s * 4096; st = 512
        return [f"ds_read_b64_tr_b16 {pr(r+2*rd)}, v{va} offset:{off + rd*st}" for rd in range(2)]
    rO = (lambda o, s: rw(O(o), o, s)) if ffn else (lambda o, s: rx(O(o), o, s))
    rI = (lambda st, i, s: rx(I(st, i), i, s)) if ffn else (lambda st, i, s: rw(I(st, i), i, s))
    def mf(o, i, st, zero=False):
        if ffn: d = 24 * o + 4 * i; A, B = O(o), I(st, i)
        else:
            d = 48 * i + 4 * o; A, B = (I(st, i), O(o)) if i == 0 else (O(o), I(st, i))
        return f"v_mfma_f32_16x16x32_bf16 {q4(d)}, {q4(A)}, {q4(B)}, {0 if zero else q4(d)}"
    SY = int(opt("sy", 10)); NTOP = 4 if ffn else 3
    DL = int(opt("dl", 1)); AL = opt("al")
    def step(s, head=False):
        ns = s ^ 1; qu = []; n = 0; pend = []
        e64 = "_e64" if AL else ""
        if s == 0:
            early = [f"s_cmp_eq_u32 s63, {2*SLOT}", f"s_cselect_b32 s64, {(-2*SLOT) & 0xffffffff}, s65", "s_add_u32 s63, s63, s64", "s_add_u32 s66, s66, 1", "s_cmp_lt_u32 s66, 8"]
            if AL: early = early[:2] + ["s_add_u32 s63, s63, s64", "s_add_u32 s66, s66, 0x100", "s_cmp_lt_u32 s66, 0x800"]; early = early[:2] + early[3:4] + early[2:3] + early[4:]
        else: early = [f"v_add_u32{e64} v{r}, s64, v{r}" for r in ([VX, VX + 1, VW] + ([VW + 1] if ffn else []))]
        carry = rO(no - 1, s) if DL else []
        if head:
            nf = 3 if ffn else 6; log = []
            def rd(tag, xs):
                for x in xs: a(x); log.append(tag)
            rd(("o", 0), rO(0, 0))
            for k_ in range(ni): rd(("i", k_), rI(0, k_, 0))
            for k_ in range(1, nf): rd(("o", k_), rO(k_, 0))
            carry = sum((rO(k_, 0) for k_ in range(nf, no)), []); done = 0
        else: a(f"s_waitcnt lgkmcnt({NTOP - len(carry)})")
        for o in range(no):
            for i_ in range(ni):
                i = ni - 1 - i_ if (o & 1 and opt("snake")) else i_
                if head and n < SY:
                    need = max(k_ + 1 for k_, t_ in enumerate(log) if t_ in (("o", o), ("i", i)))
                    if need > done: a(f"s_waitcnt lgkmcnt({len(log) - need})"); done = need
                a(mf(o, i, s, head)); n += 1
                if DL: qu += pend; pend = []
                if i_ == ni - 1:
                    if DL: pend = rO(o, ns)
                    else: qu += rO(o, ns)
                if n < SY:
                    if head:
                        if carry: a(carry.pop(0)); log.append(None)
                        if early and n >= 3: a(early.pop(0))
                    elif carry: a(carry.pop(0))
                    elif early: a(early.pop(0))
                elif n == SY:
                    assert not early
                    a("s_waitcnt lgkmcnt(0)")
                    if s == 1: a("s_barrier")
                    qu = qu[:2] + sum((rI(ns, k_, ns) for k_ in range(ni)), []) + qu[2:]
                elif qu: a(qu.pop(0))
        assert len(qu) <= 1, qu
        for x in qu: a(x)
    a("s_setprio " + str(opt("mprio", 2)))
    if PEEL: a(f"s_branch M_b0_{kind}\n.p2align 6\n.fill ((64 - ((M_loop_{kind} - M_b0_{kind}) & 63)) & 63) / 4, 4, 0xbf800000\nM_b0_{kind}:")
    a("s_barrier")
    stamp(2); stamp(7, "mp")
    if PEEL:
        a(f"M_head_{kind}:")
        step(0, True)
    else:
        first = rO(0, 0) + sum((rI(0, i, 0) for i in range(ni)), []) + sum((rO(o, 0) for o in range(1, no - DL)), [])
        for n, x in enumerate(first):
            if n == 12: a("s_waitcnt lgkmcnt(8)")
            a(x)
        a(f"s_branch M_in_{kind}\n.p2align 6")
    a(f"M_loop_{kind}:")
    step(1)
    a(f"M_in_{kind}:")
    step(0)
    a(f"s_cbranch_scc1 M_loop_{kind}")
    order = [(o, i) for o in range(no) for i in range(ni)] if ffn else [(o, i) for o in range(no) for i in (1, 2)] + [(o, 0) for o in range(no)]
    ms = [mf(o, i, 1) for o, i in order]
    gr = [f"ds_read2_b32 {pr(VG+2*i)}, v{VGA} offset0:{32*i} offset1:{32*i+16}" for i in range(3 if ffn else 6)]
    if DL: gr = rO(no - 1, 1) + gr
    a(f"s_waitcnt lgkmcnt({NTOP - (len(rO(0, 0)) if DL else 0)})")
    for n, x in enumerate(ms[:36 - nleft]):
        a(x)
        if gr: a(gr.pop(0))
        if n == 10:
            a("s_waitcnt lgkmcnt(0)")
    a("M_kend_%s:" % kind)
    stamp(3)
    return ms[36 - nleft:]
def bsel(hi, n): return " op_sel:[0" + ",1" * n + "]" if hi else " op_sel_hi:[1" + ",0" * n + "]"
def swaps(o): return [f"v_permlane16_swap_b32 v{o}, v{o+2}", f"v_permlane16_swap_b32 v{o+1}, v{o+3}"]

wbase = [12 * 8192, True]
def wreg(i): return RES + 16 * (i if i < NRES else i % (LA + 1))
def wreads(i):
    o = []; tgt = 38 * 4096 if i == 21 else pslot(i) * 8192
    if (i != 21) != wbase[1]:
        o += [f"v_{'add' if i != 21 else 'subrev'}_u32 v{WA+c}, s77, v{WA+c}" for c in range(4)]; wbase[1] = i != 21
    if not 0 <= tgt - wbase[0] <= 65536 - 1024:
        nb = 12 * 8192 if tgt >= 12 * 8192 else 65536 if tgt >= 65536 else 0
        o += [f"v_add_u32 v{WA+c}, {(nb - wbase[0]) & 0xffffffff}, v{WA+c}" for c in range(4)]; wbase[0] = nb
    rd = [f"ds_read_b64_tr_b16 {pr(wreg(i) + 4*c + 2*h)}, v{WA+c} offset:{tgt - wbase[0] + 512*h}" for c in range(4) for h in range(2)]
    rd[0] = "\n".join(o + rd[:1])
    return rd
def preread():
    for i in range(NP0):
        for x in wreads(i): a(x)

a(f"v_mul_u32_u24 v13, 192, v11\nv_lshl_add_u32 v13, v10, 3, v13\nv_add_u32 v13, {XIMG}, v13\ns_mul_i32 s54, s53, 3\nv_xor_b32 v12, s54, v8\nv_lshl_add_u32 v{VW}, v12, 5, v13\ns_add_u32 s54, s54, 1\nv_xor_b32 v12, s54, v8\nv_lshl_add_u32 v{VW+1}, v12, 5, v13")
a(f"s_lshl_b32 s59, s26, 1\ns_add_u32 s59, s59, s52\ns_mul_i32 s56, s59, {3*HP}\ns_lshl_b32 s59, s59, {FSH+5}")
a("s_sub_u32 s60, s27, 8\ns_lshl_b32 s60, s60, 1\ns_add_u32 s60, s60, s53\ns_mul_i32 s57, s60, 3\ns_add_u32 s56, s56, s57\ns_lshl_b32 s68, s56, 10")
if LV2:
    a("s_sub_u32 s56, s56, s57\ns_cmp_ge_u32 s60, 14\ns_cselect_b32 s57, 14, 0\ns_cmp_ge_u32 s60, 28\ns_cselect_b32 s57, 28, s57\ns_lshl_b32 s58, s60, 1\ns_add_u32 s57, s57, s58\ns_add_u32 s57, s57, s56\ns_lshl_b32 s68, s57, 10")
    a("s_cmp_ge_u32 s60, 14\ns_cselect_b32 s57, 56, 28\ns_cmp_ge_u32 s60, 28\ns_cselect_b32 s57, 64, s57\ns_add_u32 s57, s57, s60\ns_add_u32 s57, s57, s56\ns_lshl_b32 s36, s57, 10")
    a(f"s_add_u32 s37, s36, {HP*1024}\ns_add_u32 s38, s36, {2*HP*1024}")
a(f"s_add_u32 s69, s68, {HP*1024}\ns_add_u32 s70, s68, {2*HP*1024}")
a(f"s_lshl_b32 s60, s60, {FSH}\ns_add_u32 s71, s59, s60\ns_add_u32 s71, s71, {FH}")
if WF: a(f"s_lshl_b32 s71, s26, 5\ns_add_u32 s71, s71, s27\ns_lshl_b32 s71, s71, {FSH}\ns_add_u32 s71, s71, {FH - (8 << FSH)}")
a(f"s_mov_b32 s30, {NLOG2E}\ns_mov_b32 s31, {NLOG2E}")
m_ready()
NL = int(opt("nl", 22)); NPK = int(opt("npk", 1 if NL else 0))
assert NL <= 22
ops = kloop("ffn", NL)
TS = (168, 180, 144, 156, 192, 204)
for fi in range(3):
    for ti in range(3):
        un = 3 * fi + ti
        d = 48 * fi + 8 * ti; u = d + 24; t = TS[un % 6]; g = pr(VG + 2 * ti)
        if un < NPK:
            for j in range(8): ops.append(f"v_mul_f32 v{t+j}, s30, v{d+j}")
            for j in range(8): ops.append(f"v_exp_f32 v{t+j}, v{t+j}")
            for j in range(8): ops.append(f"v_fma_f32 v{t+j}, v{t+j}, v{VG+2*ti+(j>>2)}, v{VG+2*ti+(j>>2)}")
        else:
            for j in range(0, 8, 2): ops.append(f"v_pk_mul_f32 {pr(t+j)}, {pr(d+j)}, s[30:31]")
            for j in range(8): ops.append(f"v_exp_f32 v{t+j}, v{t+j}")
            for j in range(0, 8, 2): ops.append(f"v_pk_fma_f32 {pr(t+j)}, {pr(t+j)}, {g}, {g}" + bsel(j >= 4, 2))
        for j in range(0, 8, 2): ops.append(f"v_pk_mul_f32 {pr(d+j)}, {pr(d+j)}, {pr(u+j)}")
        for j in range(8): ops.append(f"v_rcp_f32 v{t+j}, v{t+j}")
        for j in range(0, 8, 2): ops.append(f"v_pk_mul_f32 {pr(d+j)}, {pr(d+j)}, {pr(t+j)}")
        for j in range(4): ops.append(f"v_cvt_pk_bf16_f32 v{t+8+j}, v{d+2*j}, v{d+2*j+1}")
        ops += swaps(t + 8)
        if not opt("nost"): ops.append(f"buffer_store_dwordx4 {q4(t+8)}, v{VL}, s[44:47], " + (f"s{36+ti} offen sc1" if LV2 and fi == 2 else f"s{68+ti} offen offset:{1024*fi} sc1"))
print("ffn epilogue model cycles", schedule(ops, a, window=NL + 40, holdpk=True), file=sys.stderr)
stamp(4)
if LV2:
    a("s_cmp_eq_u32 s28, 0\ns_waitcnt vmcnt(3)\ns_barrier\ns_cbranch_scc0 M_nf"); setflag(TG, f"v{VL}", "s71"); a("M_nf:")
    preread()
    a(f"s_add_u32 s71, s71, {11*FROW}\ns_waitcnt vmcnt(0)\ns_mov_b64 exec, 1\nds_add_rtn_u32 v0, v{VS}, v{VS+1}\ns_waitcnt lgkmcnt(0)\nv_cmp_eq_u32 vcc, 3, v0\ns_mov_b64 exec, -1\ns_cbranch_vccz M_nf2")
    setflag(TG, f"v{VL}", "s71"); a("M_nf2:")
    stamp(5)
elif WF:
    a("s_cmp_eq_u32 s28, 0\ns_waitcnt vmcnt(0)\ns_barrier\ns_cbranch_scc0 M_nf"); setflag(TG, f"v{VL}", "s71", True); a("M_nf:")
    stamp(5); preread()
else:
    a("s_waitcnt vmcnt(0)")
    setflag(TG, f"v{VL}", "s71", True)
    stamp(5)
    a("s_barrier"); preread()
a("s_branch M_s2")

a("M_qkv:")
a(f"v_and_b32 v12, 2, v9\nv_or_b32 v12, v12, v8\nv_xor_b32 v12, s28, v12\nv_lshlrev_b32 v12, 5, v12\nv_lshl_add_u32 v12, v11, 7, v12\nv_lshl_add_u32 v12, v10, 3, v12\nv_add_u32 v{VW}, {XIMG}, v12")
a("s_lshl_b32 s60, s27, 2\ns_add_u32 s60, s60, s28")
a(f"s_mul_i32 s56, s26, {6*HP}\ns_add_u32 s56, s56, s60\ns_add_u32 s56, s56, 96\ns_lshl_b32 s36, s56, 10")
for ti in range(1, 6): a(f"s_add_u32 s{36+ti}, s36, {ti*HP*1024}")
a(f"s_lshl_b32 s59, s26, {FSH+5}\ns_lshl_b32 s57, s60, {FSH}\ns_add_u32 s71, s59, s57\ns_add_u32 s71, s71, {FO}")
a(f"s_mul_i32 s72, s60, {11*PSZ}\ns_add_u32 s72, s72, {P_OFF}\ns_mul_i32 s73, s26, {PSZ}\ns_add_u32 s73, s73, s72\ns_add_u32 s57, s72, {4*PSZ}\ns_add_u32 s58, s72, {8*PSZ}")
a("s_cmp_eq_u32 s26, 10\ns_cselect_b32 s75, 0, 0x3f803f80")
a(f"v_lshlrev_b32 v{VZS}, 4, v15\nv_mul_u32_u24 v12, {PSZ}, v14\nv_add_u32 v{VZG}, v12, v{VZS}\nv_lshl_add_u32 v{VZS}, v14, 6, v{VZS}\nv_mov_b32 v{VMK}, 0xffffff00")
for j in range(4): a(f"v_mov_b32 v{ONE+j}, 0x3f803f80")
a(f"s_mov_b32 s30, {LOG2E}\ns_mov_b32 s31, {LOG2E}\ns_mov_b32 s3, {EPS}")
m_ready()
for i in range(4): a(f"s_bfe_u32 s{32+i}, s22, {0x80000 + 8*i}")
NLQ = int(opt("nlq", 12))
qm = kloop("qkv", 12 + NLQ); km = qm[:NLQ]; qm = qm[NLQ:]
assert NLQ <= 12
CK = 200; CZ = 216; TP = (192, 208)
def phi8(b, t, dst=None, plain=False):
    if dst is None: dst = b
    o = []
    if plain:
        for j in range(8): o.append(f"v_mul_f32 v{t+j}, s30, v{b+j}")
    else:
        for j in range(0, 8, 2): o.append(f"v_pk_mul_f32 {pr(t+j)}, {pr(b+j)}, s[30:31]")
    for j in range(8): o.append(f"v_exp_f32 v{t+j}, v{t+j} clamp")
    for j in range(8): o.append(f"v_max_f32 v{b+j}, s3, v{b+j}")
    for j in range(0, 8, 2): o.append(f"v_pk_add_f32 {pr(b+j)}, {pr(b+j)}, {pr(t+j)}")
    for j in range(4): o.append(f"v_cvt_pk_bf16_f32 v{dst+j}, v{b+2*j}, v{b+2*j+1}")
    return o
ops = []
for p in range(6):
    dk = 48 + 8 * p; dv = 96 + 8 * p
    ops += phi8(dk, TP[p & 1], plain=(p == 0 and NLQ > 0))
    if p == 4: ops += [f"v_mov_b32 v{ONE+j}, s75" for j in range(4)]
    for j in range(4): ops.append(f"v_cvt_pk_bf16_f32 v{dv+j}, v{dv+2*j}, v{dv+2*j+1}")
    ops.append(f"v_mfma_f32_16x16x32_bf16 {q4(CK)}, {q4(dk)}, {q4(dv)}, {q4(CK) if p else 0}")
    ops.append(f"v_mfma_f32_16x16x32_bf16 {q4(CZ)}, {q4(dk)}, {q4(ONE)}, {q4(CZ) if p else 0}")
print("k epilogue model cycles", schedule(km + ops, a, window=30, holdpk=NLQ), file=sys.stderr)
stamp(1, "kq")
a(qm[0]); a(qm[1]); a("s_nop 4")
for j in range(4): a(f"v_and_or_b32 v{CK+j}, v{CK+j}, v{VMK}, s{32+j}")
a(f"buffer_store_dwordx4 {q4(CK)}, v{VL}, s[44:47], s73 offen sc1")
for j in range(4): a(f"v_and_or_b32 v{CZ+j}, v{CZ+j}, v{VMK}, s{32+j}")
stamp(2, "kq")
ZM = 0x30003 if opt("zw") else 0x10001
a(f"s_mov_b32 exec_lo, {ZM}\ns_mov_b32 exec_hi, {ZM}\nbuffer_store_dwordx4 {q4(CZ)}, v{VZS}, s[44:47], s73 offen offset:1024 sc1\ns_mov_b64 exec, -1")
stamp(4)
PBQ = int(opt("pbq", 0))
if PBQ == 0: a("s_barrier")
GK = 24; GZ = 72; GA = 76
EZ = int(opt("ez", 4))
def zload():
    for j in range(4): a(f"v_mov_b32 v{GZ+j}, s{32+j}")
    a(f"s_add_u32 s67, s67, 1\ns_cmp_lt_u32 s67, {SPIN}\ns_cselect_b32 s62, {0 if opt('noz') else 0xff}, 0\ns_mov_b32 exec_lo, 0x7ff07ff\ns_mov_b32 exec_hi, 0x7ff07ff")
    a(f"buffer_load_dwordx4 {q4(GZ)}, v{VZG}, s[44:47], s72 offen offset:1024 sc1\ns_mov_b64 exec, -1")
a("s_mov_b32 s67, 0")
assert PBQ <= EZ
if PBQ:
    schedule(qm[2:] + sum((phi8(8 * p, TP[p & 1], 4 * p) for p in range(PBQ)), []), a, window=40, holdpk=True)
    a("s_barrier")
    schedule(sum((phi8(8 * p, TP[p & 1], 4 * p) for p in range(PBQ, EZ)), []), a, window=40)
else: schedule(qm[2:] + sum((phi8(8 * p, TP[p & 1], 4 * p, p == 0) for p in range(EZ)), []), a, window=40, holdpk=True)
def kvloads():
    for p in range(11): a(f"buffer_load_dwordx4 {q4(GK+4*p)}, v{VL}, s[44:47], {('s72', 's57', 's58')[p//4]} offen offset:{(p%4)*PSZ} sc1")
def zcheck(br):
    a("s_waitcnt vmcnt(0)")
    for j in range(4): a(f"v_xor_b32 v{GZ+j}, s{32+j}, v{GZ+j}")
    a(f"v_or3_b32 v{GA}, v{GZ}, v{GZ+1}, v{GZ+2}\nv_or_b32 v{GA}, v{GA}, v{GZ+3}\nv_and_b32 v{GA}, s62, v{GA}\nv_cmp_ne_u32 vcc, 0, v{GA}\ns_nop 0\n{br}")
zload()
schedule(sum((phi8(8 * p, TP[p & 1], 4 * p) for p in range(EZ, 6)), []), a, window=40)
stamp(5, "kq")
zcheck("s_cbranch_vccnz M_g1")
kvloads(); signal(); preread()
if not opt("nm"):
    a("s_branch M_g3\nM_g1:")
    zload(); preread()
    a("s_branch M_g2\nM_gw:")
    zload()
    a("M_g2:")
    zcheck("s_cbranch_vccnz M_gw")
    kvloads(); signal()
    a("M_g3:")
else:
    a("s_branch M_g3\nM_g1:")
    zload(); kvloads(); preread()
    a("s_branch M_g2\nM_gw:\ns_mov_b64 vcc, -1\nM_g4:")
    a("s_or_b32 s61, vcc_lo, vcc_hi\ns_lshr_b32 s60, s61, 16\ns_or_b32 s61, s61, s60")
    zload()
    for p in range(11):
        a(f"s_bitcmp1_b32 s61, {p}\ns_cbranch_scc0 M_gs{p}\nbuffer_load_dwordx4 {q4(GK+4*p)}, v{VL}, s[44:47], {('s72', 's57', 's58')[p//4]} offen offset:{(p%4)*PSZ} sc1\nM_gs{p}:")
    a("M_g2:")
    zcheck("s_cbranch_vccnz M_g4")
    signal()
    a("M_g3:")
stamp(5); stamp(6, "kq")
for ctl in ["quad_perm:[1,0,3,2]", "quad_perm:[2,3,0,1]", "row_half_mirror", "row_mirror"]:
    for j in range(4): a(f"v_add_f32_dpp v{GZ+j}, v{GZ+j}, v{GZ+j} {ctl} row_mask:0xf bank_mask:0xf")
ZA = 216; KA = 78
a(f"s_mov_b32 vcc_lo, 0x55555555\ns_mov_b32 vcc_hi, 0x55555555\nv_cvt_pk_bf16_f32 v{GZ}, v{GZ}, v{GZ+1}\nv_cvt_pk_bf16_f32 v{GZ+1}, v{GZ+2}, v{GZ+3}")
a(f"v_cndmask_b32 v{ZA}, 0, v{GZ}, vcc\nv_cndmask_b32 v{ZA+1}, 0, v{GZ+1}, vcc\nv_xor_b32 v{ZA+2}, v{ZA}, v{GZ}\nv_xor_b32 v{ZA+3}, v{ZA+1}, v{GZ+1}")
DN = 192
ops = []
for p in range(6): ops.append(f"v_mfma_f32_16x16x32_bf16 {q4(DN+4*p)}, {q4(ZA)}, {q4(4*p)}, 0")
for p in range(6):
    for h in range(2):
        r = DN + 4 * p + h; ops += [f"v_add_f32 v{r}, s3, v{r}", f"v_mul_f32 v{r}, v{r}, v{VG+2*p+h}", f"v_rcp_f32 v{r}, v{r}"]
a("s_nop 1"); schedule(ops, a)
for p in range(11):
    a(f"s_waitcnt vmcnt({10-p})")
    r = GK + 4 * p
    for j in range(4): a(f"v_xor_b32 v{r+j}, s{32+j}, v{r+j}")
    a(f"v_or3_b32 v{GA}, v{r}, v{r+1}, v{GA}\nv_or3_b32 v{GA}, v{r+2}, v{r+3}, v{GA}")
    if p:
        for j in range(0, 4, 2): a(f"v_pk_add_f32 {pr(GK+j)}, {pr(GK+j)}, {pr(r+j)}")
a(f"v_and_b32 v{GA}, s62, v{GA}\nv_cmp_ne_u32 vcc, 0, v{GA}\nv_cvt_pk_bf16_f32 v{KA}, v{GK}, v{GK+1}\nv_cvt_pk_bf16_f32 v{KA+1}, v{GK+2}, v{GK+3}\ns_cbranch_vccnz M_gw\ns_nop 0")
stamp(7, "kq"); stamp(8, "kq")
ops = []
for p in range(6):
    for h in range(2): ops.append(f"v_mfma_f32_16x16x16_bf16 {q4(GK+8*p+4*h)}, {pr(KA)}, {pr(4*p+2*h)}, 0")
for p in range(6):
    n_ = GK + 8 * p; o = n_
    if p < int(opt("onp", 1)):
        for j in range(8): ops.append(f"v_mul_f32 v{n_+j}, v{n_+j}, v{DN+4*p+(j>>2)}")
    else:
        for j in range(0, 8, 2): ops.append(f"v_pk_mul_f32 {pr(n_+j)}, {pr(n_+j)}, {pr(DN+4*p)}" + bsel(j >= 4, 1))
    for j in range(4): ops.append(f"v_cvt_pk_bf16_f32 v{o+j}, v{n_+2*j}, v{n_+2*j+1}")
    ops += swaps(o)
    ops.append(f"buffer_store_dwordx4 {q4(o)}, v{VL}, s[44:47], s{36+p} offen sc1")
print("o block model cycles", schedule(ops, a, window=40, holdpk=True), file=sys.stderr)

stamp(9, "kq")
a("M_s2:")
stamp(6)
HLD = str(opt("hld", "sc1")).replace("none", "").replace("_", " ")
def hload(i):
    r = HB + 8 * (i % HD); o = []; va = VH
    if i == 21: base, jj = "s74", 0; va = VH + 1; o.append(f"v_add_u32 v{va}, s79, v{VH}")
    else: base, jj = ("s76", i) if i < 21 else ("s78", i - 22)
    if jj % 2 == 0 and jj: o.append(f"s_add_u32 {base}, {base}, 4096")
    ld = [f"buffer_load_dwordx4 {q4(r+4*t)}, v{va}, s[44:47], {base} offen offset:{(jj%2)*2048 + 256*t} {HLD}" for t in range(2)]
    return ["\n".join(o + ld[:1]), ld[1]]
a("s_barrier")
stamp(7)
for i in range(HD - 1):
    for x in hload(i): a(x)
NPRE = int(opt("npre", NRES))
for i in range(NP0, NPRE):
    for x in wreads(i): a(x)
issued = HD - 1; nread = NPRE
for i in range(30):
    h = HB + 8 * (i % HD); w = wreg(i)
    s1 = nread == NRES and i == NRES - NPRE
    a(f"s_waitcnt vmcnt({2 * (issued - 1 - i)})" + (" lgkmcnt(0)" if s1 or i == 29 else f" lgkmcnt({8*(LA-1)})" if i >= NRES else " lgkmcnt(8)" if i < NRES - NPRE else ""))
    if i == 0:
        a("s_cmp_lt_u32 s27, 8\ns_cbranch_scc0 M_noflag"); setflag(TG, f"v{VL}", "s71", True); a("s_nop 2\nM_noflag:")
        stamp(1, True)
    rd = []
    if nread < NRES: rd = wreads(nread); nread += 1
    elif NRES <= i + LA < 30: rd = wreads(i + LA)
    ld = []
    if issued < 30: ld = hload(issued); issued += 1
    n = 0
    for c in range(4):
        for t in range(2):
            d = 16 * t + 4 * c
            a(f"v_mfma_f32_16x16x32_bf16 {q4(d)}, {q4(w+4*c)}, {q4(h+4*t)}, {q4(d) if i else 0}")
            if n == 0 and LV2 and i == 15 - HD: a("s_barrier")
            if n == 0 and (s1 or i == JS or (S2B and i == int(S2B))):
                st_ = (2, 3) if s1 else (6, 8) if i == JS else (4, 5)
                stamp(st_[0], True); a("s_barrier"); stamp(st_[1], st_[1] != 8)
            if LA == 1 or opt("rd2"):
                if n < 4:
                    for x in rd[2*n:2*n+2]: a(x)
                elif n in (4, 6) and ld: a(ld.pop(0))
            else:
                if rd: a(rd.pop(0))
                if n in (1, 5) and ld: a(ld.pop(0))
                if i == 28 and 1 <= n <= 3: a(f"v_xor_b32 v{WA+n}, {32*n}, v{VT}")
            n += 1
stamp(9)
a("s_nop 0")
for c in range(4):
    for t in range(2): a(f"ds_write_b128 v{WA+c if c else VT}, {q4(16*t + 4*c)} offset:{16*t*PIT}")
a("s_waitcnt lgkmcnt(0)")
a(f"L_fin:\nv_xor_b32 v{VH+1}, 0x80, v{VFA}\ns_barrier")
a(f"ds_read_b128 v[16:19], v{VFA} offset:{PART}\nds_read_b128 v[24:27], v{VFA} offset:{PART+64*PIT}\nds_read_b128 v[20:23], v{VH+1} offset:{PART}\nds_read_b128 v[28:31], v{VH+1} offset:{PART+64*PIT}")
a("s_waitcnt lgkmcnt(2)\nv_pk_add_f32 v[16:17], v[16:17], v[24:25]\nv_pk_add_f32 v[18:19], v[18:19], v[26:27]\ns_waitcnt lgkmcnt(0)\nv_pk_add_f32 v[20:21], v[20:21], v[28:29]\nv_pk_add_f32 v[22:23], v[22:23], v[30:31]")
for j in range(4): a(f"v_cvt_pk_bf16_f32 v{16+j}, v{16+2*j}, v{17+2*j}")
a(f"buffer_store_dwordx4 v[16:19], v{VFO}, s[48:51], s42 offen " + str(opt("outflag", "sc1")).replace("_", " ").replace("none", ""))
stamp(10)
dump_stamps()
a("s_endpgm\nL_codeend:")
if WARM:
    import subprocess, tempfile, os
    def addrs(lines):
        t = []
        for i, x in enumerate(lines):
            if x is None: t.append(f"ZZ{i}:\ns_nop 0")
            elif re.match(r"(s_|v_|ds_|buffer_)", x): t.append(f"ZZ{i}:\n" + re.sub(r"WS_\d", "WRET", x))
            else: t.append(x)
        with tempfile.TemporaryDirectory() as d:
            open(d + "/t.s", "w").write("\n".join(t) + "\n")
            subprocess.check_call(["clang", "-x", "assembler", "-target", "amdgcn-amd-amdhsa", "-mcpu=gfx950", "-c", d + "/t.s", "-o", d + "/t.o"])
            sym = subprocess.check_output(["llvm-objdump", "-t", d + "/t.o"], text=True)
        return {int(m.group(2)): int(m.group(1), 16) for m in re.finditer(r"^([0-9a-f]+) .* ZZ(\d+)$", sym, re.M)}
    ENTRY = 0x300
    out = list(a.l); marks = []; nxt = 0x1000
    while True:
        ad = addrs(out); noins = False; pick = None
        for i, x in enumerate(out):
            if x is None: continue
            if x.startswith(("M_start:", "M_loop_", "M_b0_")): noins = True
            if i in ad and ad[i] + ENTRY >= nxt and not noins and not (out[i-1] or "").startswith(("s_add_u32 m0", "s_mov_b32 exec", "s_mov_b64 exec", "s_movk_i32 exec", "s_brev_b64 exec")):
                pick = i; break
            if x.startswith("WDONE:") or x.startswith("s_cbranch_scc1 M_loop_"): noins = False
        if pick is None: break
        at = ad[pick] + ENTRY
        if nxt % 0x1000 == 0 and at - nxt > 60: print("warning: page boundary %x not covered (stub at %x)" % (nxt, at), file=sys.stderr)
        out.insert(pick, None); marks.append(pick)
        page_end = (at | 0xfff) + 1
        left = page_end - at; k_ = -(-left // WARM)
        nxt = page_end if k_ <= 1 else at + left // k_
    n = len(marks); size = max(ad.values()); print("warm stubs", n, "code bytes", size, file=sys.stderr)
    assert size < 128 * 256
    for k_, m_ in enumerate(marks): out[m_] = f"WS_{k_}:\ns_cbranch_execz {'WS_%d' % (k_ + 4) if k_ + 4 < n else 'WRET'}"
    a.l = out
rodata(a)
kdesc(a, K, 256, 256)
open(OUT, "w").write(a.text())
```

```python
import sys, re
from asmlib import *
import sched
from sched import schedule
def opt(name, default=None):
    for x in sys.argv[1:]:
        if x == "--" + name: return True
        if x.startswith("--" + name + "="): return x.split("=", 1)[1]
    return default
STAMP = opt("stamp", False)
OUT = [x for x in sys.argv[1:] if not x.startswith("--")][0]
TH = int(opt("th", 7)); TH2 = int(opt("th2", 8))
N6 = int(opt("n6", 10)); N7 = int(opt("n7", 26))
PA = int(opt("pa", 0))
XPOS = int(opt("xpos", 0))
LP = str(opt("lp", "--oww-"))
C3 = str(opt("c3", "4")); SPC = int(opt("spc", 5)); ROT = str(opt("rot", "c")); SIG = str(opt("sig", "d"))
WF = not opt("nowf")
NB = [int(x, 16) for x in str(opt("nb", "8888888"))]
QO = [int(x, 16) for x in str(opt("qo", "061728394a5b"))]
KA = str(opt("ka", "")); KN = int(opt("kn", 4))
OVF = not opt("noovf")
LV2 = opt("lv2")
CX = [[int(y) for y in x] for x in str(opt("cx", ".....3")).replace("-", "").split(".")]
SNAKE = not opt("nosnake")
M2 = int(opt("m2", 4))
WARM = int(opt("warm", 2048))
sched.PKGAP = int(opt("pkgap", 32))
SPIN = 1 << 16

SLOT = 49152; XIMG = 24576; W3OFF = 12288
NA = 39; NOV = 59 - NA; G1 = 15; G2 = 27
G_LDS = NA * 4096; CNT_LDS = G_LDS + 768
assert CNT_LDS + 64 <= 163840
HP = int(opt("hp", 129))
P_OFF = 9 << 20; FH = 10 << 20; S_OFF = (10 << 20) + (512 << 10); X_OFF = 11 << 20; ST_OFF = 12 << 20
FSH = int(opt("fsh", 6)); FW = int(opt("fw", 0))
FROW = 32 << FSH; FO = FH + 22 * FROW
PSZ = 1152; PIT = 256; PART = 6 * 4096
LOG2E = 0x3fb8aa3b; NLOG2E = 0xbfb8aa3b; EPS = 0x358637bd
WSB = 16 << 20
K = NAME + "_kernel"
def pslot(i):
    if i >= 22: i -= 20
    elif i >= 19: i -= 19
    return 12 + i if i < 7 else i - 7
def wpos(i, kh): return 38 if i == 21 else 2 * pslot(i) + kh
def wrow(i, kh):
    if LV2 and i < 14: return "w2", 48 * (i + 14 * kh)
    if LV2 and i < 21: return "w2b", 96 * (i - 14 + 7 * kh) + 32
    if i < 21: return "w2", 32 * (i + 21 * kh)
    if i == 21: return "w2", 32 * 42
    return "wo", 32 * (i - 22 + 8 * kh)
NRES = 10; NP0 = 7; S2B = int(opt("s2b", 12))
HD = int(opt("hd", 6)); LA = int(opt("la", 2))
JS = min(19 - LA, 23 - HD)

a = Asm(); MSIDE = False
header(a, ["; fused linear-attention + SwiGLU gated mix; generated by my own script",
           "; @launch grid=(256,1,1) block=(512,1,1) lds=163840"])
class VM:
    def __init__(self): self.n = 0
    def op(self, s): a(s); self.n += 1; return self.n
    def cnt(self, i): return min(self.n - i, 63)
    def wait(self, i, extra=""): a(f"s_waitcnt vmcnt({self.cnt(i)}){extra}")
def stamp(i, det=False):
    if not STAMP: return
    if opt("lb") and not MSIDE:
        if det == "lb" or i in (0, 1, 10): a(("s_memrealtime" if opt("rt") else "s_memtime") + f" s[{80+2*i}:{81+2*i}]")
        return
    if det == "lb": return
    if opt("mp") and MSIDE:
        if det == "mp" or (i == 10 and not det): a(f"s_memtime s[{80+2*i}:{81+2*i}]")
        return
    if det == "mp": return
    if opt("kq") and MSIDE:
        if det == "kq" or (i in (3, 4, 10) and not det): a(f"s_memtime s[{80+2*i}:{81+2*i}]")
        return
    if det == "kq": return
    if opt("s2") and MSIDE and (i in (1, 2, 3, 4, 5, 6)) != det: return
    if det and not opt("s2"): return
    a(("s_memrealtime" if opt("rt") else "s_memtime") + f" s[{80+2*i}:{81+2*i}]")
def dump_stamps():
    if not STAMP: return
    if opt("enc"):
        wg, i0, i1 = [int(x) for x in str(opt("enc")).split(":")]
        if wg >= 0: a(f"s_cmp_eq_u32 s2, {wg}\ns_cbranch_scc0 EN_d")
        a(f"s_cmp_eq_u32 s28, 0\ns_cbranch_scc0 EN_d\ns_waitcnt lgkmcnt(0)\ns_sub_u32 s30, s{80+2*i1}, s{80+2*i0}\ns_min_u32 s30, s30, 5000\ns_mul_i32 s30, s30, 10")
        a("EN_l:\ns_memrealtime s[32:33]\ns_waitcnt lgkmcnt(0)\ns_sub_u32 s32, s32, s100\ns_cmp_lt_u32 s32, s30\ns_cbranch_scc1 EN_l\nEN_d:")
        return
    a("s_waitcnt lgkmcnt(0)\ns_memrealtime s[30:31]\ns_waitcnt lgkmcnt(0)")
    for i in range(16):
        a(f"v_mov_b32 v{i+32}, " + (f"s{80+2*i}" if i < 11 else {15: "s30", 14: "s27", 13: "s0"}.get(i, "0")))
    a(f"s_lshl_b32 s30, s2, 3\ns_add_u32 s30, s30, s28\ns_lshl_b32 s30, s30, 6\ns_add_u32 s30, s30, {ST_OFF}\nv_mov_b32 v1, 0\ns_mov_b64 exec, 1")
    for q in range(4): a(f"buffer_store_dwordx4 v[{32+4*q}:{35+4*q}], v1, s[44:47], s30 offen offset:{16*q} sc1")
uid = 0
def lab():
    global uid; uid += 1; return uid
def pr(r): return f"v[{r}:{r+1}]"
def q4(r): return f"v[{r}:{r+3}]"
def poll(vt, voff, soff):
    u = lab()
    a(f"s_mov_b32 s67, 0\nPL{u}:\nbuffer_load_dwordx2 {pr(vt)}, {voff}, s[44:47], {soff} offen sc1\ns_waitcnt vmcnt(0)")
    a(f"v_cmp_eq_u64 vcc, s[22:23], {pr(vt)}\ns_add_u32 s67, s67, 1\ns_nop 0\ns_cmp_eq_u64 vcc, -1\ns_cbranch_scc1 PD{u}")
    if opt("bo"): a(f"s_sleep {opt('bo')}")
    a(f"s_cmp_lt_u32 s67, {SPIN}\ns_cbranch_scc1 PL{u}\nPD{u}:")
def setflag(vt, vlane16, soff, wide=False):
    if wide and FW:
        a(f"s_mov_b64 exec, {(1 << FW) - 1}\nbuffer_store_dwordx4 {q4(vt)}, {vlane16}, s[44:47], {soff} offen sc1\ns_mov_b64 exec, -1"); return
    a(f"s_mov_b64 exec, 1\nbuffer_store_dwordx2 {pr(vt)}, {vlane16}, s[44:47], {soff} offen sc1\ns_mov_b64 exec, -1")
def tag_load(): a(f"s_mov_b32 s67, {X_OFF}\ns_load_dwordx2 s[22:23], s[24:25], s67")
def tag_make(): a("s_add_u32 s22, s22, 0x7f4a7c15\ns_addc_u32 s23, s23, 0x9e3779b9")
def mapping():
    a("""s_and_b32 s30, s2, 1
s_lshr_b32 s31, s2, 3
s_bfe_u32 s52, s2, 0x20001
s_lshl_b32 s30, s30, 5
s_add_u32 s30, s30, s31
s_cmp_eq_u32 s52, 3
s_cselect_b32 s54, 52, 43
s_cselect_b32 s55, 5, 6
s_cselect_b32 s56, 55, 54
s_mul_i32 s26, s30, s54
s_lshr_b32 s26, s26, 8
s_mul_i32 s31, s26, s55
s_sub_u32 s27, s30, s31
s_sub_u32 s57, s30, s56
s_cmp_ge_u32 s57, 5
s_cselect_b32 s58, 10, 9
s_cselect_b32 s31, 5, 0
s_sub_u32 s59, s57, s31
s_and_b32 s60, s57, 1
s_add_u32 s60, s60, 9
s_lshr_b32 s61, s57, 1
s_cmp_eq_u32 s52, 3
s_cselect_b32 s58, s60, s58
s_cselect_b32 s59, 5, s59
s_cselect_b32 s61, s61, s52
s_cmp_lt_u32 s30, s56
s_cselect_b32 s26, s26, s58
s_cselect_b32 s27, s27, s59
s_cselect_b32 s52, s52, s61
s_lshl_b32 s52, s52, 1
s_add_u32 s31, s52, 6
s_cmp_lt_u32 s27, 2
s_cselect_b32 s31, 0, s31
s_add_u32 s27, s27, s52
s_add_u32 s27, s27, s31
s_min_u32 s27, s27, 23""")
def tile64(dst, t):
    if M2 == 4: a(f"s_and_b32 {dst}, s2, 7\ns_lshl_b32 {dst}, {dst}, 2\ns_lshr_b32 {t}, s2, 6\ns_add_u32 {dst}, {dst}, {t}")
    else: a(f"s_and_b32 {dst}, s2, 6\ns_lshl_b32 {dst}, {dst}, 2\ns_lshr_b32 {t}, s2, 5\ns_add_u32 {dst}, {dst}, {t}")
def coltile(dst, t):
    if M2 == 4: a(f"s_bfe_u32 {dst}, s2, 0x30003\ns_lshl_b32 {dst}, {dst}, 7")
    else: a(f"s_bfe_u32 {dst}, s2, 0x20003\ns_lshl_b32 {dst}, {dst}, 7\ns_and_b32 {t}, s2, 1\ns_lshl_b32 {t}, {t}, 9\ns_add_u32 {dst}, {dst}, {t}")
def toktile(dst, th, t):
    tile64(dst, t); a(f"s_lshl_b32 {dst}, {dst}, 1\ns_add_u32 {dst}, {dst}, {th}")
VFA = 254; VFO = 255
def fin_setup(t0, t1):
    srd(a, 48, 20, 2048*1024)
    a(f"v_lshrrev_b32 {t0}, 3, v0\ns_lshl_b32 s42, s28, 3\nv_add_u32 {t0}, s42, {t0}\nv_and_b32 {t1}, 7, v0\nv_and_b32 v{VFA}, 7, {t0}\nv_xor_b32 v{VFA}, v{VFA}, {t1}\nv_bfe_u32 v{VFO}, {t0}, 1, 1\nv_lshl_or_b32 v{VFA}, v{VFO}, 3, v{VFA}\nv_lshlrev_b32 v{VFA}, 4, v{VFA}\nv_lshl_add_u32 v{VFA}, {t0}, 8, v{VFA}")
    a(f"v_lshlrev_b32 {t0}, 10, {t0}\nv_lshl_add_u32 v{VFO}, {t1}, 4, {t0}")
    tile64("s42", "s43"); coltile("s43", "s31"); a("s_lshl_b32 s42, s42, 16\ns_add_u32 s42, s42, s43")

a(".p2align 12")
kstart(a, K)
a("s_cmp_ge_u32 s2, 256\ns_cbranch_scc1 L_exit")
stamp(0)
a("v_lshrrev_b32 v1, 6, v0\ns_load_dwordx16 s[4:19], s[0:1], 0\nv_readfirstlane_b32 s28, v1\ns_load_dwordx2 s[20:21], s[0:1], 64\ns_load_dwordx2 s[24:25], s[0:1], 80")
if STAMP: a("s_memrealtime s[0:1]")
VL = 251
a(f"v_and_b32 v0, 63, v0\nv_lshlrev_b32 v{VL}, 4, v0\ns_cmp_ge_u32 s28, 4\ns_cbranch_scc1 L_start")
a("s_getpc_b64 s[48:49]\nM_pc:\ns_and_b32 s49, s49, 0xffff\ns_mov_b32 s50, L_codeend-M_pc\ns_mov_b32 s51, 0x00020000")
a("s_lshr_b32 s30, s2, 3\ns_lshl_b32 s30, s30, 2\ns_add_u32 s30, s30, s28\ns_lshl_b32 s30, s30, 8\ns_min_u32 s30, s30, L_codeend-M_pc-256")
for i in range(4): a(f"s_buffer_load_dword s3, s[48:51], s30 offset:{64*i}")
a("s_branch M_start")
a("L_start:\ns_setprio 3")
mapping()
a("s_sub_u32 s52, s28, 4\ns_mul_i32 s29, s26, 192")
a("v_lshrrev_b32 v2, 3, v0\nv_and_b32 v3, 7, v0\nv_lshrrev_b32 v4, 4, v0")
a("s_mul_i32 s54, s52, 48\ns_add_u32 s54, s54, s29\ns_lshl_b32 s54, s54, 10\ns_cmp_eq_u32 s27, 23\ns_cselect_b32 s54, 0x40000000, s54")
a("v_xor_b32 v5, v3, v4\nv_lshl_add_u32 v5, v5, 4, s54\nv_lshl_add_u32 v16, v2, 10, v5\nv_xor_b32 v7, 64, v16")
for i in range(1, 6): a(f"v_add_u32 v{16+i}, {i*8192}, v{16 if i%2==0 else 7}")
a("s_mul_i32 s53, s52, 6144")
a({"0": "s_mov_b32 s65, 0",
   "a": "s_and_b32 s65, s26, 1\ns_lshl_b32 s65, s65, 1\ns_and_b32 s31, s2, 1\ns_add_u32 s65, s65, s31\ns_lshl_b32 s65, s65, 1",
   "c": "s_and_b32 s65, s2, 1\ns_lshl_b32 s65, s65, 2",
   "r": "s_and_b32 s65, s2, 6",
   "s": "s_and_b32 s65, s2, 2\ns_lshl_b32 s65, s65, 1",
   "d": "s_and_b32 s65, s26, 1\ns_lshl_b32 s65, s65, 2",
   "h": "s_and_b32 s65, s2, 1\ns_lshl_b32 s65, s65, 1\ns_and_b32 s31, s26, 1\ns_add_u32 s65, s65, s31\ns_lshl_b32 s65, s65, 1",
   "i": "s_and_b32 s65, s2, 1\ns_lshl_b32 s65, s65, 2\ns_and_b32 s31, s26, 1\ns_add_u32 s65, s65, s31",
   "j": "s_mul_i32 s65, s26, 11\ns_lshr_b32 s65, s65, 5\ns_mul_i32 s65, s65, 3\ns_sub_u32 s65, s26, s65\ns_mul_i32 s65, s65, 3"}[ROT])
XM = int(opt("xm", 1)); XN = int(opt("xn", 4))
if XM:
    if opt("xm4"): a("s_and_b32 s75, s26, 3")
    else: a(f"s_and_b32 s75, s26, 1\ns_mul_i32 s75, s75, {XM}")
    a("s_mov_b32 s74, s65\ns_add_u32 s65, s65, s75")
a("s_lshl_b32 s54, s65, 7")
a("s_mov_b32 s34, 0x200000\ns_mov_b32 s35, 0x00020000\ns_mov_b32 s39, s35\ns_mov_b32 s43, s35\ns_mov_b32 s51, s35\ns_movk_i32 s50, 0x400")
a("s_lshl_b32 s66, s2, 13\ns_lshl_b32 s31, s52, 11\ns_add_u32 s66, s66, s31")
a("s_waitcnt lgkmcnt(0)")
a("s_mov_b32 s32, s4\ns_and_b32 s33, s5, 0xffff\ns_mov_b32 s48, s18\ns_and_b32 s49, s19, 0xffff")
if opt("tl"):
    a("s_lshl_b32 s67, s2, 12\ns_load_dword s10, s[6:7], s67\ns_load_dword s10, s[12:13], s67\ns_load_dword s10, s[14:15], s67")
stamp(1)
def wsetup():
    a("s_cmp_lt_u32 s27, 8\ns_cbranch_scc1 L_qkv")
    a("s_cmp_eq_u32 s27, 22\ns_cselect_b32 s31, 4, 12\ns_cmp_eq_u32 s27, 23\ns_cselect_b32 s31, 0, s31\nv_bfrev_b32 v11, 2")
    for i in range(3):
        a(f"v_add_u32 v8, {64*i}, v0\nv_mul_u32_u24 v9, 43691, v8\nv_lshrrev_b32 v9, 19, v9\nv_mul_u32_u24 v10, 12, v9\nv_sub_u32 v10, v8, v10\nv_cmp_gt_u32 vcc, s31, v10")
        a(f"v_lshrrev_b32 v8, 2, v9\nv_and_b32 v8, 2, v8\nv_xor_b32 v10, v10, v8\nv_mul_u32_u24 v9, 2752, v9\nv_lshl_add_u32 v9, v10, 4, v9\nv_cndmask_b32 v{22+i}, v11, v9, vcc\nv_cndmask_b32 v{25+i}, v11, v9, vcc")
    a(f"s_sub_u32 s3, s27, 8\ns_mul_i32 s3, s3, 192\ns_mul_i32 s67, s52, {16*2752}\ns_add_u32 s3, s3, s67\ns_mov_b32 s56, {64*2752}")
    a(f"s_mul_i32 s67, s52, 3072\ns_add_u32 s57, s67, {XIMG}")
    for i in range(1, 6): a(f"s_add_u32 s{57+i}, s57, {(i%3)*1024 + (W3OFF if i>=3 else 0)}")
    a(f"s_mov_b32 s38, {512*2752}\ns_mov_b32 s30, {LOG2E}\ns_mul_i32 s55, s65, s56\ns_add_u32 s55, s55, s3\ns_mov_b32 s42, s38")
    a("s_mov_b32 s36, s12\ns_and_b32 s37, s13, 0xffff\ns_mov_b32 s40, s14\ns_and_b32 s41, s15, 0xffff")
    a("s_branch L_go")
    a("L_qkv:")
    a("v_and_b32 v8, 1, v4\nv_lshlrev_b32 v8, 2, v8\nv_xor_b32 v8, v8, v3\nv_mul_u32_u24 v9, 3072, v2\nv_lshl_add_u32 v22, v8, 4, v9\nv_xor_b32 v8, 32, v22")
    for i in range(1, 6): a(f"v_add_u32 v{22+i}, {(i//2)*1024 + (i%2)*8*3072}, v{8 if i%2 else 22}")
    a(f"s_lshl_b32 s3, s27, 7\ns_mul_i32 s67, s52, {16*3072}\ns_add_u32 s3, s3, s67\ns_mov_b32 s56, {64*3072}")
    a(f"s_lshl_b32 s67, s52, 11\ns_add_u32 s57, s67, {XIMG}")
    for i in range(1, 6): a(f"s_add_u32 s{57+i}, s57, {(i//2)*8192 + (i%2)*1024}")
    a(f"s_mov_b32 s38, {512*3072}\ns_mov_b32 s30, {NLOG2E}\ns_mul_i32 s55, s65, s56\ns_add_u32 s55, s55, s3\ns_mov_b32 s42, s38")
    a("s_mov_b32 s36, s6\ns_and_b32 s37, s7, 0xffff\ns_mov_b32 s40, s6\ns_and_b32 s41, s7, 0xffff")
    a("L_go:")
vm = VM()
def dma(q, c):
    sl = (c % 3) * SLOT; q = QO[q] if c or opt("wf0") else q
    if q < 6: a(f"s_add_u32 m0, s53, {sl + q*1024}\ns_nop 0"); return vm.op(f"buffer_load_dwordx4 v{16+q}, s[32:35], s54 offen lds")
    i = q - 6
    a(f"s_add_u32 m0, s{57+i}, {sl}\ns_nop 0"); return vm.op(f"buffer_load_dwordx4 v{22+i}, s[{36 if i<3 else 40}:{39 if i<3 else 43}], s55 offen lds")
def adv(c):
    if XM and c <= XN:
        a((f"s_xor_b32 s54, s19, {c}" if c < XN else f"s_mov_b32 s54, {c}") + "\ns_add_u32 s54, s54, s11\ns_and_b32 s54, s54, 7\ns_mul_i32 s55, s54, s56\ns_add_u32 s55, s55, s3\ns_lshl_b32 s54, s54, 7")
    else: a("s_add_u32 s54, s54, 128\ns_add_u32 s55, s55, s56\ns_and_b32 s54, s54, 0x3ff\ns_cselect_b32 s55, s55, s3")
OV = 32; GR = 120
lastof = {}
for q in range(12 + NB[0]):
    if q == XPOS:
        vm.op(f"buffer_load_dwordx4 {q4(GR+4)}, v{VL}, s[32:35], s66 offen"); vm.op(f"buffer_load_dwordx4 {q4(GR+8)}, v{VL}, s[32:35], s66 offen offset:1024")
        gl = vm.op(f"buffer_load_dwordx4 {q4(GR)}, v{VL}, s[48:51], 0 offen")
    if q == (1 if opt("wf0") else 6): wsetup()
    if q == 6:
        tag_load(); a(f"s_lshl_b32 s67, s2, 6\ns_add_u32 s67, s67, {S_OFF}\ns_load_dword s10, s[24:25], s67")
    if q == 13 and opt("burst"):
        a(f"v_lshlrev_b32 v12, 7, v0\ns_lshl_b32 s67, s2, 2\ns_add_u32 s67, s67, s52\ns_lshl_b32 s67, s67, 12\ns_mov_b32 exec_hi, 0\ns_add_u32 s67, s67, {12 << 20}\nbuffer_load_dword v14, v12, s[44:47], s67 offen\ns_mov_b64 exec, -1")
    if q == 12:
        if XM: a("s_mov_b32 s11, s74\ns_mov_b32 s19, s75")
        srd(a, 44, 24, WSB); srd(a, 72, 8, 512*1024); srd(a, 68, 16, 1376*1024); adv(1)
    if q < 12: last = dma(q, 0)
    else: nxt = dma(q - 12, 1)
def gate_dots():
    a("v_mov_b32 v8, 0\nv_mov_b32 v9, 0")
    for d in range(4): a(f"v_dot2c_f32_bf16 v8, v{GR+4+d}, v{GR+d}\nv_dot2c_f32_bf16 v9, v{GR+8+d}, v{GR+d}")
    a(f"s_lshr_b32 s66, s66, 7\ns_add_u32 s66, s66, {S_OFF - 63*16}\ns_nop 0")
    for ctl in ["quad_perm:[1,0,3,2] row_mask:0xf", "quad_perm:[2,3,0,1] row_mask:0xf", "row_half_mirror row_mask:0xf", "row_mirror row_mask:0xf", "row_bcast:15 row_mask:0xa", "row_bcast:31 row_mask:0xc"]:
        a(f"v_add_f32_dpp v8, v8, v8 {ctl} bank_mask:0xf\nv_add_f32_dpp v9, v9, v9 {ctl} bank_mask:0xf\ns_nop 0")
    a("v_mov_b32 v10, s22\nv_mov_b32 v11, s23")
a("s_waitcnt lgkmcnt(0)"); tag_make()
if XPOS < 6 and not opt("glate"): vm.wait(gl); gate_dots()
a("s_setprio " + str(opt("lprio", 0)))
def pf(n, srdn, off):
    for i in range(n): a(f"s_buffer_load_dword s10, s[{srdn}:{srdn+3}], {off} offset:{64*i}")
w2done = 0
KQ = [int(x) for x in str(opt("kq4", "000000"))]
ovl = [(i, kh) for i in list(range(22, 30)) + [19, 20] for kh in range(2)]; nq = 0
KO = [int(x) for x in str(opt("ko", "000000"))]; kol = ovl[16 - sum(KO):16]; kod = []
assert sum(KO) + sum(KQ) <= 16
def wtext(j):
    mat, row = wrow(*j); s_ = 72 if mat == "wo" else 68
    return f"s_add_u32 s67, {'s78' if mat == 'w2b' else 's64'}, {row*1024}", (f"buffer_load_dwordx4 {q4(OV + 4*ovl.index(j))}, v28, s[{s_}:{s_+3}], s67 offen" if j in ovl else f"buffer_load_dwordx4 v28, s[{s_}:{s_+3}], s67 offen lds")
kad = 0
def keep(c):
    global kad
    if str(c) not in KA: return
    a(f"s_lshl_b32 s67, s2, 2\ns_add_u32 s67, s67, s52\ns_mul_i32 s67, s67, 2816\ns_add_u32 s67, s67, {13 << 20}")
    for i in range(KN): a(f"s_buffer_load_dword s10, s[44:47], s67 offset:{128*kad}"); kad += 1
def lbar(c):
    if opt("lb") == "a": stamp(2 + c, "lb")
    if opt("lb") == "c" and c >= 4: stamp(2 * c - 6, "lb")
    a("s_barrier")
    if opt("lb") == "c" and c >= 4: stamp(2 * c - 5, "lb")
    if opt("lb") == "b": stamp(2 + c, "lb")
for c in range(6):
    vm.wait(last); lbar(c)
    last = nxt
    for q in range(NB[c], 12): last = dma(q, c + 1)
    if c == 0:
        if not (XPOS < 6 and not opt("glate")): vm.wait(gl); gate_dots()
        a("s_brev_b64 exec, 1"); vm.op(f"buffer_store_dwordx4 v[8:11], v{VL}, s[44:47], s66 offen sc1"); a("s_mov_b64 exec, -1")
    if c == SPC:
        a("s_cmp_lt_u32 s27, 8\ns_cbranch_scc1 L_spq")
        if WF: a(f"s_lshl_b32 s67, s26, 5\ns_add_u32 s67, s67, s27\ns_lshl_b32 s67, s67, {FSH}\ns_add_u32 s67, s67, {FH - (8 << FSH)}\ns_buffer_load_dword s10, s[44:47], s67\ns_buffer_load_dword s10, s[44:47], s67 offset:{11*FROW if LV2 else 64}")
        else: a(f"s_lshl_b32 s67, s26, 1\ns_lshr_b32 s31, s52, 1\ns_add_u32 s67, s67, s31\ns_lshl_b32 s67, s67, 4\ns_add_u32 s67, s67, s27\ns_lshl_b32 s67, s67, 1\ns_and_b32 s31, s52, 1\ns_add_u32 s67, s67, s31\ns_lshl_b32 s67, s67, {FSH}\ns_add_u32 s67, s67, {FH - (16 << FSH)}\ns_buffer_load_dword s10, s[44:47], s67\ns_buffer_load_dword s10, s[44:47], s67 offset:64")
        a("s_branch L_spd\nL_spq:\ns_lshl_b32 s31, s27, 2\ns_add_u32 s31, s31, s52")
        a(f"s_lshl_b32 s67, s26, 5\ns_add_u32 s67, s67, s31\ns_lshl_b32 s67, s67, {FSH}\ns_add_u32 s67, s67, {FO}\ns_buffer_load_dword s10, s[44:47], s67\ns_buffer_load_dword s10, s[44:47], s67 offset:64")
        a(f"s_mul_i32 s67, s31, 11\ns_add_u32 s67, s67, s26\ns_mul_i32 s67, s67, {PSZ}\ns_add_u32 s67, s67, {P_OFF}")
        for i in range(9): a(f"s_buffer_load_dword s10, s[44:47], s67 offset:{128*i}")
        a("s_buffer_load_dword s10, s[44:47], s67 offset:1088\nL_spd:")
    if c == 2:
        coltile("s31", "s67"); a("s_and_b32 s77, s52, 1\ns_lshl_b32 s76, s77, 1")
        a("v_and_b32 v13, 1, v4\nv_lshlrev_b32 v13, 2, v13\nv_xor_b32 v13, v13, v3\nv_xor_b32 v13, s76, v13\nv_lshlrev_b32 v13, 4, v13\nv_lshl_add_u32 v28, v2, 10, v13")
        a("s_lshl_b32 s67, s52, 13\ns_add_u32 s64, s31, s67\ns_lshr_b32 s67, s52, 1\ns_lshl_b32 s67, s67, 15\ns_add_u32 s78, s64, s67")
        a(f"s_lshl_b32 s63, s52, 10\nv_add_u32 v29, s63, v{VL}\nv_add_u32 v30, 0x10000, v29\nv_add_u32 v15, 0x20000, v29")
        toktile("s31", "s77", "s67")
        a(f"s_mul_i32 s67, s31, 86\ns_lshr_b32 s67, s67, 8\ns_lshl_b32 s79, s67, {FSH+5}\ns_add_u32 s79, s79, {FH}\ns_lshr_b32 s67, s67, 1\ns_lshl_b32 s18, s67, {FSH+5}\ns_add_u32 s18, s18, {FO}")
        if WF: a(f"s_sub_u32 s79, s18, {FO - FH}")
    for cls in CX[c]:
        u = lab(); hi = u & 1
        if M2 == 8: a(f"s_bitcmp{cls >> 2}_b32 s2, 0\ns_cbranch_scc0 L_c3{u}")
        a(f"s_bitcmp{hi}_b32 s52, 1\ns_cbranch_scc0 L_c3{u}\nv_lshlrev_b32 v12, 10, v0\ns_lshr_b32 s67, s2, 3\ns_bitcmp0_b32 s52, 0\ns_cbranch_scc0 L_c3b{u}")
        a(f"s_mul_i32 s67, s67, {43*1024}\ns_movk_i32 exec_hi, 0x7ff\nbuffer_load_dword v14, v12, s[68:71], s67 offen offset:{128*cls}\ns_branch L_c3c{u}\nL_c3b{u}:")
        a(f"s_lshl_b32 s67, s67, 14\ns_mov_b64 exec, 0xffff\nbuffer_load_dword v14, v12, s[72:75], s67 offen offset:{128*cls}\nL_c3c{u}:\ns_mov_b64 exec, -1\nL_c3{u}:")
    if c == 5:
        a(f"s_mul_i32 s66, s52, 24\ns_lshr_b32 s67, s29, 1\ns_add_u32 s66, s66, s67\nv_min_u32 v13, 23, v0\nv_lshlrev_b32 v12, 3, v13\nv_add_u32 v13, s66, v13\nv_min_u32 v13, 0x3ff, v13\nv_lshlrev_b32 v13, 4, v13")
        a(f"s_mul_i32 s67, s52, 192\ns_add_u32 s67, s67, {G_LDS}\nv_add_u32 v12, s67, v12\ns_mov_b32 s66, {S_OFF}")
        last = vm.op("buffer_load_dwordx4 v[8:11], v13, s[44:47], s66 offen sc1")
    keep(c)
    if LP[c] == "o": a("s_lshl_b32 s67, s2, 2\ns_add_u32 s67, s67, s52\ns_lshl_b32 s67, s67, 9"); pf(8, 72, "s67")
    if LP[c] == "w":
        a(f"s_mul_i32 s67, s2, 5504\ns_mul_i32 s31, s52, 704\ns_add_u32 s67, s67, s31\ns_add_u32 s67, s67, {2816*w2done}\ns_min_u32 s67, s67, {1376*1024 - 704}"); pf(11, 68, "s67"); w2done += 1
    adv(c + 2)
    for q in range(NB[c + 1]): nxt = dma(q, c + 2)
    for n in range(KO[c]):
        j = kol[len(kod)]; kod.append(j); ad, ld = wtext(j); a(ad); vm.op(ld)
    if KQ[c]:
        assert c >= 2
        a(f"s_cmp_lt_u32 s27, 8\ns_cbranch_scc0 L_kq{c}")
        for j in ovl[nq:nq + KQ[c]]: a("\n".join(wtext(j)))
        nq += KQ[c]; a(f"L_kq{c}:")
vm.wait(last); lbar(6)
last = nxt
for q in range(NB[6], 12): last = dma(q, 7)
pairs = lambda i0, i1: [(i, kh) for i in range(i0, i1) for kh in range(2)]
wq = pairs(0, 7) + [(21, 0)] + pairs(7, NRES) + [j for j in ovl if j not in kod] + pairs(NRES, 19)
if OVF: wq = [j for j in wq if j in ovl] + [j for j in wq if j not in ovl]
wid = {}
def wnext(th=None):
    j = wq.pop(0)
    if opt("now"): wid[j] = vm.n; return
    if nq and j == ovl[0]: a("s_cmp_lt_u32 s27, 8\ns_cbranch_scc1 L_kqd")
    ad, ld = wtext(j)
    if j not in ovl: a(f"s_add_u32 m0, s63, {wpos(*j)*4096}")
    a(ad)
    if th is not None: a(f"s_waitcnt vmcnt({th})")
    if j in ovl[:nq]: a(ld)
    else: wid[j] = vm.op(ld)
    if nq and j == ovl[nq - 1]: a("L_kqd:")
assert not nq or N6 + N7 >= 21 + nq
for n in range(min(4, N6)): wnext()
a("s_mov_b32 s31, 0\nL_gw:\nv_cmp_eq_u64 vcc, s[22:23], v[10:11]\ns_add_u32 s31, s31, 1\ns_nop 0\ns_cmp_eq_u64 vcc, -1\ns_cbranch_scc1 L_gd")
a(f"buffer_load_dwordx4 v[8:11], v13, s[44:47], s66 offen sc1\ns_cmp_lt_u32 s31, {SPIN}\ns_waitcnt vmcnt(0)\ns_cbranch_scc1 L_gw\nL_gd:")
a("v_mul_f32 v8, s30, v8\nv_mul_f32 v9, s30, v9\nv_exp_f32 v8, v8\nv_exp_f32 v9, v9\ns_mov_b32 s67, 0x7f000000\nv_add_f32 v8, 1.0, v8\nv_add_f32 v9, 1.0, v9\nv_min_f32 v8, s67, v8\nv_min_f32 v9, s67, v9")
a("ds_write_b64 v12, v[8:9]")
assert N6 <= G1 + (NOV if OVF else 0) and N6 + N7 <= G2 + NOV - len(kod)
for n in range(4, N6): wnext()
a(f"v_min_u32 v12, {14 if WF else 28}, v0\nv_lshlrev_b32 v12, {FSH}, v12\nv_and_b32 v13, 31, v0\nv_lshlrev_b32 v13, {FSH}, v13\nv_mov_b32 v14, {CNT_LDS}")
vm.wait(last, " lgkmcnt(0)")
stamp(2)
keep(6)
lbar(7)
for n in range(N7):
    if n == 14: keep(7)
    wnext(TH2)
fin_setup("v8", "v9")
stamp(3)
def ldswait(cmp, sl):
    u = lab()
    a(f"s_mov_b32 s31, 0\nLW{u}:\nds_read_b32 v8, v14\ns_add_u32 s31, s31, 1\ns_waitcnt lgkmcnt(0)\n{cmp}\ns_cmp_lt_u32 s31, {SPIN}\ns_cbranch_scc0 LD{u}\ns_cbranch_vccz LW{u}\nLD{u}:")
NQX = min(int(opt("nqx", 0)), len(wq) - 12)
def wcond(items, br, th, name):
    a(f"s_cmp_lt_u32 s27, 8\n{br} {name}")
    for j in items:
        ad, ld = wtext(j); assert j not in ovl
        a(f"s_add_u32 m0, s63, {wpos(*j)*4096}\n{ad}\ns_waitcnt vmcnt({th})\n{ld}")
    a(name + ":")
qx = wq[:NQX]; wq = wq[NQX:]
if qx:
    wcond(qx, "s_cbranch_scc0", TH2, "L_qx0"); a.l.pop()
    a(f"s_waitcnt vmcnt({vm.cnt(wid[(NP0 - 1, 1)]) + NQX})\ns_branch L_qx1\nL_qx0:")
vm.wait(wid[(NP0 - 1, 1)])
a("L_qx1:\ns_barrier")
if qx: wcond(qx, "s_cbranch_scc1", TH, "L_qx2")
for j in qx: wid[j] = vm.n
a("s_cmp_lt_u32 s27, 8\ns_cselect_b32 s19, 4, s52")
while len(wq) > PA: wnext(TH)
if opt("nofh"): a("s_mov_b32 s19, 4")
a(f"s_cmp_lt_u32 s19, {1 if WF else 2}\ns_cbranch_scc0 L_np\nbuffer_load_dwordx2 v[8:9], v12, s[44:47], s79 offen sc1\nL_np:")
npa = 0 if opt("now") else len(wq)
while wq: wnext(TH)
stamp(4)
if opt("nofh"): a("s_waitcnt vmcnt(0)\ns_sleep 20\ns_branch L_s0")
a(f"s_cmp_lt_u32 s52, {1 if WF else 2}\ns_cbranch_scc0 L_s0\ns_cmp_lt_u32 s27, 8\ns_cbranch_scc1 L_sq")
a(f"s_waitcnt vmcnt({npa})\nv_cmp_eq_u64 vcc, s[22:23], v[8:9]\ns_nop 1\ns_cmp_eq_u64 vcc, -1\ns_cbranch_scc1 L_s0\ns_branch L_sp\nL_sq:")
ldswait("v_cmp_ne_u32 vcc, 0, v8", 2)
a("L_sp:")
poll(8, "v12", "s79")
a("L_s0:")
vm.wait(wid[(NRES - 1, 1)])
stamp(5)
a("s_barrier")
a("s_waitcnt vmcnt(0)\ns_barrier")
for n, j in enumerate(ovl):
    p = wpos(*j)
    if LV2 and n == int(opt("l1p", 10)): a(f"s_add_u32 s79, s79, {11*FROW}\ns_cmp_eq_u32 s52, 0\ns_cbranch_scc0 L_l0\nbuffer_load_dwordx2 v[8:9], v12, s[44:47], s79 offen sc1\nL_l0:")
    if not opt("noovw"): a(f"ds_write_b128 v{(29, 30, 15)[p // 16]}, {q4(OV+4*n)} offset:{(p % 16) * 4096}")
stamp(6)
if LV2:
    a("s_cbranch_scc0 L_l1\ns_waitcnt vmcnt(0)\nv_cmp_eq_u64 vcc, s[22:23], v[8:9]\ns_nop 1\ns_cmp_eq_u64 vcc, -1\ns_cbranch_scc1 L_l1")
    poll(8, "v12", "s79"); a("L_l1:\ns_barrier")
a("s_waitcnt lgkmcnt(0)")
if S2B: a("s_barrier")
a("s_cmp_eq_u32 s52, 0\ns_cbranch_scc0 L_o2")
poll(8, "v13", "s18")
a("L_o2:")
stamp(7)
a("s_barrier")
a(f"s_lshl_b32 s67, s2, 2\ns_add_u32 s67, s67, s52\ns_cmp_eq_u32 s67, 0\ns_cbranch_scc0 L_fin\ns_mov_b32 s67, {X_OFF}\nv_mov_b32 v8, s22\nv_mov_b32 v9, s23")
setflag(8, f"v{VL}", "s67")
a("s_branch L_fin")
a("L_exit:\ns_endpgm")

FR = 144; VX = 216; VW = 218; VGA = 220; VZS = 221; VZG = 222; VMK = 223; VG = 224; ONE = 236; VS = 240
WA = 244; VH = 248; VT = 250; TG = 252
HB = 32; RES = HB + 8 * HD
assert RES == 80
if opt("mpad"): a(f".fill {int(opt('mpad')) // 4}, 4, 0xbf800000")
a("M_start:"); MSIDE = True; stamp(1, "mp")
mapping()
a("s_lshr_b32 s52, s28, 1\ns_and_b32 s53, s28, 1")
a("v_and_b32 v2, 31, v0\nv_lshrrev_b32 v3, 5, v0\nv_bfe_u32 v4, v0, 1, 3\nv_and_b32 v14, 15, v0\nv_lshrrev_b32 v15, 4, v0")
a("s_mul_i32 s54, s52, 96\ns_cmp_lt_u32 s27, 8\ns_cselect_b32 s54, 0, s54\nv_add_u32 v5, s54, v14\nv_lshlrev_b32 v6, 7, v5")
a(f"v_xor_b32 v7, v15, v4\nv_lshl_add_u32 v{VX}, v7, 4, v6\nv_xor_b32 v{VX+1}, 64, v{VX}")
a(f"v_lshlrev_b32 v{VGA}, 2, v5\nv_add_u32 v{VGA}, {G_LDS}, v{VGA}")
a("v_bfe_u32 v8, v0, 4, 1\nv_bfe_u32 v9, v0, 2, 2\nv_and_b32 v10, 3, v0\nv_lshl_add_u32 v11, v15, 3, v9")
a(f"s_mov_b32 s63, 0\ns_mov_b32 s66, 0\ns_mov_b32 s65, {SLOT}")
a(f"v_and_b32 v12, 2, v9\nv_or_b32 v12, v12, v8\nv_lshlrev_b32 v12, 5, v12\nv_lshl_add_u32 v12, v11, 7, v12\nv_lshl_add_u32 v12, v10, 3, v12")
a(f"s_lshl_b32 s77, s52, 12\ns_add_u32 s57, s77, {12*8192}\nv_add_u32 v{WA}, s57, v12")
for c in (1, 2, 3): a(f"v_xor_b32 v{WA+c}, {32*c}, v{WA}")
a(f"v_lshlrev_b32 v12, 4, v14\nv_lshl_add_u32 v{VH}, v15, 9, v12\ns_lshl_b32 s79, s52, 30")
toktile("s60", "s53", "s62")
a(f"s_mul_i32 s60, s60, {HP*1024}\ns_mul_i32 s57, s52, {42*1024}\ns_add_u32 s76, s60, s57\ns_add_u32 s74, s60, {84*1024}\ns_lshl_b32 s57, s52, 14\ns_add_u32 s78, s60, s57\ns_add_u32 s78, s78, {96*1024}")
a(f"s_lshl_b32 s56, s53, 5\nv_add_u32 v12, s56, v14\nv_lshlrev_b32 v12, 8, v12\nv_bfe_u32 v13, v0, 1, 1\nv_xor_b32 v13, v13, v8\nv_lshl_add_u32 v12, v13, 7, v12\nv_and_b32 v13, 7, v0\nv_xor_b32 v13, v13, v3\nv_lshl_add_u32 v12, v13, 4, v12\ns_mul_i32 s56, s52, {64*PIT}\ns_add_u32 s56, s56, {PART}\nv_add_u32 v{VT}, s56, v12")
a(f"v_mov_b32 v{VS}, {CNT_LDS}\nv_mov_b32 v{VS+1}, 0\nds_write_b32 v{VS}, v{VS+1}")
stamp(2, "mp")
a("s_waitcnt lgkmcnt(0)")
stamp(3, "mp")
tag_load()
if WARM:
    a("s_mov_b64 exec, 0")
    for w in range(3): a(f"s_cmp_eq_u32 s28, {w}\ns_cbranch_scc1 WS_{w}")
    a("s_branch WS_3\nWRET:\ns_mov_b64 exec, -1\nWDONE:")
stamp(4, "mp")
srd(a, 44, 24, WSB)
fin_setup("v12", "v13")
PEEL = not opt("nopeel")
if not PEEL:
    for r in range(16, 144, 2): a(f"v_mov_b64 {pr(r)}, 0")
def m_ready():
    if not PEEL:
        for r in range(0, 16, 2): a(f"v_mov_b64 {pr(r)}, 0")
    stamp(5, "mp")
    a(f"v_mov_b32 v{VS+1}, 1\ns_waitcnt lgkmcnt(0)")
    stamp(6, "mp")
    tag_make()
    a(f"v_mov_b32 v{TG}, s22\nv_mov_b32 v{TG+1}, s23")
    stamp(1)
a("s_cmp_lt_u32 s27, 8\ns_cbranch_scc1 M_qkv")

def signal(): a(f"s_mov_b64 exec, 1\nds_add_u32 v{VS}, v{VS+1}\ns_mov_b64 exec, -1")
def kloop(kind, nleft):
    ffn = kind == "ffn"
    no, ni = (6, 6) if ffn else (12, 3)
    def O(o): return FR + 4 * o
    def I(st, i): return FR + 4 * no + 4 * ni * st + 4 * i
    def rx(r, ti, s): return [f"ds_read_b128 {q4(r)}, v{VX+s} offset:{2048*ti}"]
    def rw(r, k_, s):
        if ffn:
            fi, mat = k_ >> 1, k_ & 1; va = VW + (fi & 1); off = mat * W3OFF + s * 6144 + 32 * (fi & 2); st = 768
        else: va = VW; off = k_ * 8192 + s * 4096; st = 512
        return [f"ds_read_b64_tr_b16 {pr(r+2*rd)}, v{va} offset:{off + rd*st}" for rd in range(2)]
    rO = (lambda o, s: rw(O(o), o, s)) if ffn else (lambda o, s: rx(O(o), o, s))
    rI = (lambda st, i, s: rx(I(st, i), i, s)) if ffn else (lambda st, i, s: rw(I(st, i), i, s))
    def mf(o, i, st, zero=False):
        if ffn: d = 24 * o + 4 * i; A, B = O(o), I(st, i)
        else:
            d = 48 * i + 4 * o; A, B = (I(st, i), O(o)) if i == 0 else (O(o), I(st, i))
        return f"v_mfma_f32_16x16x32_bf16 {q4(d)}, {q4(A)}, {q4(B)}, {0 if zero else q4(d)}"
    SY = int(opt("sy", 10)); NTOP = 4 if ffn else 3
    DL = int(opt("dl", 1)); AL = opt("al")
    def step(s, head=False):
        ns = s ^ 1; qu = []; n = 0; pend = []
        e64 = "_e64" if AL else ""
        if s == 0:
            early = [f"s_cmp_eq_u32 s63, {2*SLOT}", f"s_cselect_b32 s64, {(-2*SLOT) & 0xffffffff}, s65", "s_add_u32 s63, s63, s64", "s_add_u32 s66, s66, 1", "s_cmp_lt_u32 s66, 8"]
            if AL: early = early[:2] + ["s_add_u32 s63, s63, s64", "s_add_u32 s66, s66, 0x100", "s_cmp_lt_u32 s66, 0x800"]; early = early[:2] + early[3:4] + early[2:3] + early[4:]
        else: early = [f"v_add_u32{e64} v{r}, s64, v{r}" for r in ([VX, VX + 1, VW] + ([VW + 1] if ffn else []))]
        carry = rO(no - 1, s) if DL else []
        if head:
            nf = 3 if ffn else 6; log = []
            def rd(tag, xs):
                for x in xs: a(x); log.append(tag)
            rd(("o", 0), rO(0, 0))
            for k_ in range(ni): rd(("i", k_), rI(0, k_, 0))
            for k_ in range(1, nf): rd(("o", k_), rO(k_, 0))
            carry = sum((rO(k_, 0) for k_ in range(nf, no)), []); done = 0
        else: a(f"s_waitcnt lgkmcnt({NTOP - len(carry)})")
        for o in range(no):
            for i_ in range(ni):
                i = ni - 1 - i_ if (o & 1 and SNAKE) else i_
                if head and n < SY:
                    need = max(k_ + 1 for k_, t_ in enumerate(log) if t_ in (("o", o), ("i", i)))
                    if need > done: a(f"s_waitcnt lgkmcnt({len(log) - need})"); done = need
                a(mf(o, i, s, head)); n += 1
                if DL: qu += pend; pend = []
                if i_ == ni - 1:
                    if DL: pend = rO(o, ns)
                    else: qu += rO(o, ns)
                if n < SY:
                    if head:
                        if carry: a(carry.pop(0)); log.append(None)
                        if early and n >= 3: a(early.pop(0))
                    elif carry: a(carry.pop(0))
                    elif early: a(early.pop(0))
                elif n == SY:
                    assert not early
                    a("s_waitcnt lgkmcnt(0)")
                    if s == 1: a("s_barrier")
                    qu = qu[:2] + sum((rI(ns, k_, ns) for k_ in range(ni)), []) + qu[2:]
                elif qu: a(qu.pop(0))
        assert len(qu) <= 1, qu
        for x in qu: a(x)
    a("s_setprio " + str(opt("mprio", 2)))
    if PEEL: a(f"s_branch M_b0_{kind}\n.p2align 6\n.fill ((64 - ((M_loop_{kind} - M_b0_{kind}) & 63)) & 63) / 4, 4, 0xbf800000\nM_b0_{kind}:")
    a("s_barrier")
    stamp(2); stamp(7, "mp")
    if PEEL:
        a(f"M_head_{kind}:")
        step(0, True)
    else:
        first = rO(0, 0) + sum((rI(0, i, 0) for i in range(ni)), []) + sum((rO(o, 0) for o in range(1, no - DL)), [])
        for n, x in enumerate(first):
            if n == 12: a("s_waitcnt lgkmcnt(8)")
            a(x)
        a(f"s_branch M_in_{kind}\n.p2align 6")
    a(f"M_loop_{kind}:")
    step(1)
    a(f"M_in_{kind}:")
    step(0)
    a(f"s_cbranch_scc1 M_loop_{kind}")
    order = [(o, ni - 1 - i if o & 1 and SNAKE else i) for o in range(no) for i in range(ni)] if ffn else [(o, i) for o in range(no) for i in ((2, 1) if o & 1 and SNAKE else (1, 2))] + [(o, 0) for o in range(no)]
    ms = [mf(o, i, 1) for o, i in order]
    gr = [f"ds_read2_b32 {pr(VG+2*i)}, v{VGA} offset0:{32*i} offset1:{32*i+16}" for i in range(3 if ffn else 6)]
    if DL: gr = rO(no - 1, 1) + gr
    a(f"s_waitcnt lgkmcnt({NTOP - (len(rO(0, 0)) if DL else 0)})")
    for n, x in enumerate(ms[:36 - nleft]):
        a(x)
        if gr: a(gr.pop(0))
        if n == 10:
            a("s_waitcnt lgkmcnt(0)")
    a("M_kend_%s:" % kind)
    stamp(3)
    return ms[36 - nleft:]
def bsel(hi, n): return " op_sel:[0" + ",1" * n + "]" if hi else " op_sel_hi:[1" + ",0" * n + "]"
def swaps(o): return [f"v_permlane16_swap_b32 v{o}, v{o+2}", f"v_permlane16_swap_b32 v{o+1}, v{o+3}"]

wbase = [12 * 8192, True]
def wreg(i): return RES + 16 * (i if i < NRES else i % (LA + 1))
def wreads(i):
    o = []; tgt = 38 * 4096 if i == 21 else pslot(i) * 8192
    if (i != 21) != wbase[1]:
        o += [f"v_{'add' if i != 21 else 'subrev'}_u32 v{WA+c}, s77, v{WA+c}" for c in range(4)]; wbase[1] = i != 21
    if not 0 <= tgt - wbase[0] <= 65536 - 1024:
        nb = 12 * 8192 if tgt >= 12 * 8192 else 65536 if tgt >= 65536 else 0
        o += [f"v_add_u32 v{WA+c}, {(nb - wbase[0]) & 0xffffffff}, v{WA+c}" for c in range(4)]; wbase[0] = nb
    rd = [f"ds_read_b64_tr_b16 {pr(wreg(i) + 4*c + 2*h)}, v{WA+c} offset:{tgt - wbase[0] + 512*h}" for c in range(4) for h in range(2)]
    rd[0] = "\n".join(o + rd[:1])
    return rd
def preread():
    for i in range(NP0):
        for x in wreads(i): a(x)

a(f"v_mul_u32_u24 v13, 192, v11\nv_lshl_add_u32 v13, v10, 3, v13\nv_add_u32 v13, {XIMG}, v13\ns_mul_i32 s54, s53, 3\nv_xor_b32 v12, s54, v8\nv_lshl_add_u32 v{VW}, v12, 5, v13\ns_add_u32 s54, s54, 1\nv_xor_b32 v12, s54, v8\nv_lshl_add_u32 v{VW+1}, v12, 5, v13")
a(f"s_lshl_b32 s59, s26, 1\ns_add_u32 s59, s59, s52\ns_mul_i32 s56, s59, {3*HP}\ns_lshl_b32 s59, s59, {FSH+5}")
a("s_sub_u32 s60, s27, 8\ns_lshl_b32 s60, s60, 1\ns_add_u32 s60, s60, s53\ns_mul_i32 s57, s60, 3\ns_add_u32 s56, s56, s57\ns_lshl_b32 s68, s56, 10")
if LV2:
    a("s_sub_u32 s56, s56, s57\ns_cmp_ge_u32 s60, 14\ns_cselect_b32 s57, 14, 0\ns_cmp_ge_u32 s60, 28\ns_cselect_b32 s57, 28, s57\ns_lshl_b32 s58, s60, 1\ns_add_u32 s57, s57, s58\ns_add_u32 s57, s57, s56\ns_lshl_b32 s68, s57, 10")
    a("s_cmp_ge_u32 s60, 14\ns_cselect_b32 s57, 56, 28\ns_cmp_ge_u32 s60, 28\ns_cselect_b32 s57, 64, s57\ns_add_u32 s57, s57, s60\ns_add_u32 s57, s57, s56\ns_lshl_b32 s36, s57, 10")
    a(f"s_add_u32 s37, s36, {HP*1024}\ns_add_u32 s38, s36, {2*HP*1024}")
a(f"s_add_u32 s69, s68, {HP*1024}\ns_add_u32 s70, s68, {2*HP*1024}")
a(f"s_lshl_b32 s60, s60, {FSH}\ns_add_u32 s71, s59, s60\ns_add_u32 s71, s71, {FH}")
if WF: a(f"s_lshl_b32 s71, s26, 5\ns_add_u32 s71, s71, s27\ns_lshl_b32 s71, s71, {FSH}\ns_add_u32 s71, s71, {FH - (8 << FSH)}")
a(f"s_mov_b32 s30, {NLOG2E}\ns_mov_b32 s31, {NLOG2E}")
m_ready()
NL = int(opt("nl", 22)); NPK = int(opt("npk", 1 if NL else 0))
assert NL <= 22
ops = kloop("ffn", NL)
TS = (168, 180, 144, 156, 192, 204)
for fi in range(3):
    for ti in range(3):
        un = 3 * fi + ti
        d = 48 * fi + 8 * ti; u = d + 24; t = TS[un % 6]; g = pr(VG + 2 * ti)
        if un < NPK:
            for j in range(8): ops.append(f"v_mul_f32 v{t+j}, s30, v{d+j}")
            for j in range(8): ops.append(f"v_exp_f32 v{t+j}, v{t+j}")
            for j in range(8): ops.append(f"v_fma_f32 v{t+j}, v{t+j}, v{VG+2*ti+(j>>2)}, v{VG+2*ti+(j>>2)}")
        else:
            for j in range(0, 8, 2): ops.append(f"v_pk_mul_f32 {pr(t+j)}, {pr(d+j)}, s[30:31]")
            for j in range(8): ops.append(f"v_exp_f32 v{t+j}, v{t+j}")
            for j in range(0, 8, 2): ops.append(f"v_pk_fma_f32 {pr(t+j)}, {pr(t+j)}, {g}, {g}" + bsel(j >= 4, 2))
        for j in range(0, 8, 2): ops.append(f"v_pk_mul_f32 {pr(d+j)}, {pr(d+j)}, {pr(u+j)}")
        for j in range(8): ops.append(f"v_rcp_f32 v{t+j}, v{t+j}")
        for j in range(0, 8, 2): ops.append(f"v_pk_mul_f32 {pr(d+j)}, {pr(d+j)}, {pr(t+j)}")
        for j in range(4): ops.append(f"v_cvt_pk_bf16_f32 v{t+8+j}, v{d+2*j}, v{d+2*j+1}")
        ops += swaps(t + 8)
        if not opt("nost"): ops.append(f"buffer_store_dwordx4 {q4(t+8)}, v{VL}, s[44:47], " + (f"s{36+ti} offen sc1" if LV2 and fi == 2 else f"s{68+ti} offen offset:{1024*fi} sc1"))
print("ffn epilogue model cycles", schedule(ops, a, window=NL + 40, holdpk=True), file=sys.stderr)
stamp(4)
if LV2:
    a("s_cmp_eq_u32 s28, 0\ns_waitcnt vmcnt(3)\ns_barrier\ns_cbranch_scc0 M_nf"); setflag(TG, f"v{VL}", "s71"); a("M_nf:")
    preread()
    a(f"s_add_u32 s71, s71, {11*FROW}\ns_waitcnt vmcnt(0)\ns_mov_b64 exec, 1\nds_add_rtn_u32 v0, v{VS}, v{VS+1}\ns_waitcnt lgkmcnt(0)\nv_cmp_eq_u32 vcc, 3, v0\ns_mov_b64 exec, -1\ns_cbranch_vccz M_nf2")
    setflag(TG, f"v{VL}", "s71"); a("M_nf2:")
    stamp(5)
elif WF:
    a("s_cmp_eq_u32 s28, 0\ns_waitcnt vmcnt(0)\ns_barrier\ns_cbranch_scc0 M_nf"); setflag(TG, f"v{VL}", "s71", True); a("M_nf:")
    stamp(5); preread()
else:
    a("s_waitcnt vmcnt(0)")
    setflag(TG, f"v{VL}", "s71", True)
    stamp(5)
    a("s_barrier"); preread()
a("s_branch M_s2")

a("M_qkv:")
a(f"v_and_b32 v12, 2, v9\nv_or_b32 v12, v12, v8\nv_xor_b32 v12, s28, v12\nv_lshlrev_b32 v12, 5, v12\nv_lshl_add_u32 v12, v11, 7, v12\nv_lshl_add_u32 v12, v10, 3, v12\nv_add_u32 v{VW}, {XIMG}, v12")
a("s_lshl_b32 s60, s27, 2\ns_add_u32 s60, s60, s28")
a(f"s_mul_i32 s56, s26, {6*HP}\ns_add_u32 s56, s56, s60\ns_add_u32 s56, s56, 96\ns_lshl_b32 s36, s56, 10")
for ti in range(1, 6): a(f"s_add_u32 s{36+ti}, s36, {ti*HP*1024}")
a(f"s_lshl_b32 s59, s26, {FSH+5}\ns_lshl_b32 s57, s60, {FSH}\ns_add_u32 s71, s59, s57\ns_add_u32 s71, s71, {FO}")
a(f"s_mul_i32 s72, s60, {11*PSZ}\ns_add_u32 s72, s72, {P_OFF}\ns_mul_i32 s73, s26, {PSZ}\ns_add_u32 s73, s73, s72\ns_add_u32 s57, s72, {4*PSZ}\ns_add_u32 s58, s72, {8*PSZ}")
a("s_cmp_eq_u32 s26, 10\ns_cselect_b32 s75, 0, 0x3f803f80")
a(f"v_lshlrev_b32 v{VZS}, 4, v15\nv_mul_u32_u24 v12, {PSZ}, v14\nv_add_u32 v{VZG}, v12, v{VZS}\nv_lshl_add_u32 v{VZS}, v14, 6, v{VZS}\nv_mov_b32 v{VMK}, 0xffffff00")
for j in range(4): a(f"v_mov_b32 v{ONE+j}, 0x3f803f80")
a(f"s_mov_b32 s30, {LOG2E}\ns_mov_b32 s31, {LOG2E}\ns_mov_b32 s3, {EPS}")
m_ready()
for i in range(4): a(f"s_bfe_u32 s{32+i}, s22, {0x80000 + 8*i}")
NLQ = int(opt("nlq", 12))
qm = kloop("qkv", 12 + NLQ); km = qm[:NLQ]; qm = qm[NLQ:]
assert NLQ <= 12
CK = 200; CZ = 216; TP = (192, 208)
def phi8(b, t, dst=None, plain=False):
    if dst is None: dst = b
    o = []
    if plain:
        for j in range(8): o.append(f"v_mul_f32 v{t+j}, s30, v{b+j}")
    else:
        for j in range(0, 8, 2): o.append(f"v_pk_mul_f32 {pr(t+j)}, {pr(b+j)}, s[30:31]")
    for j in range(8): o.append(f"v_exp_f32 v{t+j}, v{t+j} clamp")
    for j in range(8): o.append(f"v_max_f32 v{b+j}, s3, v{b+j}")
    for j in range(0, 8, 2): o.append(f"v_pk_add_f32 {pr(b+j)}, {pr(b+j)}, {pr(t+j)}")
    for j in range(4): o.append(f"v_cvt_pk_bf16_f32 v{dst+j}, v{b+2*j}, v{b+2*j+1}")
    return o
ops = []
for p in range(6):
    dk = 48 + 8 * p; dv = 96 + 8 * p
    ops += phi8(dk, TP[p & 1], plain=(p == 0 and NLQ > 0))
    if p == 4: ops += [f"v_mov_b32 v{ONE+j}, s75" for j in range(4)]
    for j in range(4): ops.append(f"v_cvt_pk_bf16_f32 v{dv+j}, v{dv+2*j}, v{dv+2*j+1}")
    ops.append(f"v_mfma_f32_16x16x32_bf16 {q4(CK)}, {q4(dk)}, {q4(dv)}, {q4(CK) if p else 0}")
    ops.append(f"v_mfma_f32_16x16x32_bf16 {q4(CZ)}, {q4(dk)}, {q4(ONE)}, {q4(CZ) if p else 0}")
print("k epilogue model cycles", schedule(km + ops, a, window=30, holdpk=NLQ), file=sys.stderr)
stamp(1, "kq")
a(qm[0]); a(qm[1]); a("s_nop 4")
for j in range(4): a(f"v_and_or_b32 v{CK+j}, v{CK+j}, v{VMK}, s{32+j}")
a(f"buffer_store_dwordx4 {q4(CK)}, v{VL}, s[44:47], s73 offen sc1")
for j in range(4): a(f"v_and_or_b32 v{CZ+j}, v{CZ+j}, v{VMK}, s{32+j}")
stamp(2, "kq")
ZM = 0x30003 if opt("zw") else 0x10001
a(f"s_mov_b32 exec_lo, {ZM}\ns_mov_b32 exec_hi, {ZM}\nbuffer_store_dwordx4 {q4(CZ)}, v{VZS}, s[44:47], s73 offen offset:1024 sc1\ns_mov_b64 exec, -1")
stamp(4)
PBQ = int(opt("pbq", 0))
if PBQ == 0: a("s_barrier")
GK = 24; GZ = 72; GA = 76
EZ = int(opt("ez", 4))
def zload():
    for j in range(4): a(f"v_mov_b32 v{GZ+j}, s{32+j}")
    a(f"s_add_u32 s67, s67, 1\ns_cmp_lt_u32 s67, {SPIN}\ns_cselect_b32 s62, {0 if opt('noz') else 0xff}, 0\ns_mov_b32 exec_lo, 0x7ff07ff\ns_mov_b32 exec_hi, 0x7ff07ff")
    a(f"buffer_load_dwordx4 {q4(GZ)}, v{VZG}, s[44:47], s72 offen offset:1024 sc1\ns_mov_b64 exec, -1")
a("s_mov_b32 s67, 0")
assert PBQ <= EZ
if PBQ:
    schedule(qm[2:] + sum((phi8(8 * p, TP[p & 1], 4 * p) for p in range(PBQ)), []), a, window=40, holdpk=True)
    a("s_barrier")
    schedule(sum((phi8(8 * p, TP[p & 1], 4 * p) for p in range(PBQ, EZ)), []), a, window=40)
else: schedule(qm[2:] + sum((phi8(8 * p, TP[p & 1], 4 * p, p == 0) for p in range(EZ)), []), a, window=40, holdpk=True)
def kvloads():
    for p in range(11): a(f"buffer_load_dwordx4 {q4(GK+4*p)}, v{VL}, s[44:47], {('s72', 's57', 's58')[p//4]} offen offset:{(p%4)*PSZ} sc1")
def zcheck(br):
    a("s_waitcnt vmcnt(0)")
    for j in range(4): a(f"v_xor_b32 v{GZ+j}, s{32+j}, v{GZ+j}")
    a(f"v_or3_b32 v{GA}, v{GZ}, v{GZ+1}, v{GZ+2}\nv_or_b32 v{GA}, v{GA}, v{GZ+3}\nv_and_b32 v{GA}, s62, v{GA}\nv_cmp_ne_u32 vcc, 0, v{GA}\ns_nop 0\n{br}")
zload()
schedule(sum((phi8(8 * p, TP[p & 1], 4 * p) for p in range(EZ, 6)), []), a, window=40)
stamp(5, "kq")
zcheck("s_cbranch_vccnz M_g1")
kvloads(); signal(); preread()
if not opt("nm"):
    a("s_branch M_g3\nM_g1:")
    zload(); preread()
    a("s_branch M_g2\nM_gw:")
    zload()
    a("M_g2:")
    zcheck("s_cbranch_vccnz M_gw")
    kvloads(); signal()
    a("M_g3:")
else:
    a("s_branch M_g3\nM_g1:")
    zload(); kvloads(); preread()
    a("s_branch M_g2\nM_gw:\ns_mov_b64 vcc, -1\nM_g4:")
    a("s_or_b32 s61, vcc_lo, vcc_hi\ns_lshr_b32 s60, s61, 16\ns_or_b32 s61, s61, s60")
    zload()
    for p in range(11):
        a(f"s_bitcmp1_b32 s61, {p}\ns_cbranch_scc0 M_gs{p}\nbuffer_load_dwordx4 {q4(GK+4*p)}, v{VL}, s[44:47], {('s72', 's57', 's58')[p//4]} offen offset:{(p%4)*PSZ} sc1\nM_gs{p}:")
    a("M_g2:")
    zcheck("s_cbranch_vccnz M_g4")
    signal()
    a("M_g3:")
stamp(5); stamp(6, "kq")
for ctl in ["quad_perm:[1,0,3,2]", "quad_perm:[2,3,0,1]", "row_half_mirror", "row_mirror"]:
    for j in range(4): a(f"v_add_f32_dpp v{GZ+j}, v{GZ+j}, v{GZ+j} {ctl} row_mask:0xf bank_mask:0xf")
ZA = 216; KA = 78
a(f"s_mov_b32 vcc_lo, 0x55555555\ns_mov_b32 vcc_hi, 0x55555555\nv_cvt_pk_bf16_f32 v{GZ}, v{GZ}, v{GZ+1}\nv_cvt_pk_bf16_f32 v{GZ+1}, v{GZ+2}, v{GZ+3}")
a(f"v_cndmask_b32 v{ZA}, 0, v{GZ}, vcc\nv_cndmask_b32 v{ZA+1}, 0, v{GZ+1}, vcc\nv_xor_b32 v{ZA+2}, v{ZA}, v{GZ}\nv_xor_b32 v{ZA+3}, v{ZA+1}, v{GZ+1}")
DN = 192
ops = []
for p in range(6): ops.append(f"v_mfma_f32_16x16x32_bf16 {q4(DN+4*p)}, {q4(ZA)}, {q4(4*p)}, 0")
for p in range(6):
    for h in range(2):
        r = DN + 4 * p + h; ops += [f"v_add_f32 v{r}, s3, v{r}", f"v_mul_f32 v{r}, v{r}, v{VG+2*p+h}", f"v_rcp_f32 v{r}, v{r}"]
a("s_nop 1"); schedule(ops, a)
for p in range(11):
    a(f"s_waitcnt vmcnt({10-p})")
    r = GK + 4 * p
    for j in range(4): a(f"v_xor_b32 v{r+j}, s{32+j}, v{r+j}")
    a(f"v_or3_b32 v{GA}, v{r}, v{r+1}, v{GA}\nv_or3_b32 v{GA}, v{r+2}, v{r+3}, v{GA}")
    if p:
        for j in range(0, 4, 2): a(f"v_pk_add_f32 {pr(GK+j)}, {pr(GK+j)}, {pr(r+j)}")
a(f"v_and_b32 v{GA}, s62, v{GA}\nv_cmp_ne_u32 vcc, 0, v{GA}\nv_cvt_pk_bf16_f32 v{KA}, v{GK}, v{GK+1}\nv_cvt_pk_bf16_f32 v{KA+1}, v{GK+2}, v{GK+3}\ns_cbranch_vccnz M_gw\ns_nop 0")
stamp(7, "kq"); stamp(8, "kq")
ops = []
for p in range(6):
    for h in range(2): ops.append(f"v_mfma_f32_16x16x16_bf16 {q4(GK+8*p+4*h)}, {pr(KA)}, {pr(4*p+2*h)}, 0")
for p in range(6):
    n_ = GK + 8 * p; o = n_
    if p < int(opt("onp", 1)):
        for j in range(8): ops.append(f"v_mul_f32 v{n_+j}, v{n_+j}, v{DN+4*p+(j>>2)}")
    else:
        for j in range(0, 8, 2): ops.append(f"v_pk_mul_f32 {pr(n_+j)}, {pr(n_+j)}, {pr(DN+4*p)}" + bsel(j >= 4, 1))
    for j in range(4): ops.append(f"v_cvt_pk_bf16_f32 v{o+j}, v{n_+2*j}, v{n_+2*j+1}")
    ops += swaps(o)
    ops.append(f"buffer_store_dwordx4 {q4(o)}, v{VL}, s[44:47], s{36+p} offen sc1")
print("o block model cycles", schedule(ops, a, window=40, holdpk=True), file=sys.stderr)

stamp(9, "kq")
a("M_s2:")
stamp(6)
HLD = str(opt("hld", "sc1")).replace("none", "").replace("_", " ")
def hload(i):
    r = HB + 8 * (i % HD); o = []; va = VH
    if i == 21: base, jj = "s74", 0; va = VH + 1; o.append(f"v_add_u32 v{va}, s79, v{VH}")
    else: base, jj = ("s76", i) if i < 21 else ("s78", i - 22)
    if jj % 2 == 0 and jj: o.append(f"s_add_u32 {base}, {base}, 4096")
    ld = [f"buffer_load_dwordx4 {q4(r+4*t)}, v{va}, s[44:47], {base} offen offset:{(jj%2)*2048 + 256*t} {HLD}" for t in range(2)]
    return ["\n".join(o + ld[:1]), ld[1]]
a("s_barrier")
stamp(7)
for i in range(HD - 1):
    for x in hload(i): a(x)
NPRE = int(opt("npre", NRES))
for i in range(NP0, NPRE):
    for x in wreads(i): a(x)
issued = HD - 1; nread = NPRE
for i in range(30):
    h = HB + 8 * (i % HD); w = wreg(i)
    s1 = nread == NRES and i == NRES - NPRE
    a(f"s_waitcnt vmcnt({2 * (issued - 1 - i)})" + (" lgkmcnt(0)" if s1 or i == 29 else f" lgkmcnt({8*(LA-1)})" if i >= NRES else " lgkmcnt(8)" if i < NRES - NPRE else ""))
    if i == 0:
        a("s_cmp_lt_u32 s27, 8\ns_cbranch_scc0 M_noflag"); setflag(TG, f"v{VL}", "s71", True); a("s_nop 2\nM_noflag:")
        stamp(1, True)
    rd = []
    if nread < NRES: rd = wreads(nread); nread += 1
    elif NRES <= i + LA < 30: rd = wreads(i + LA)
    ld = []
    if issued < 30: ld = hload(issued); issued += 1
    n = 0
    for c in range(4):
        for t in ((1, 0) if c & 1 and SNAKE else (0, 1)):
            d = 16 * t + 4 * c
            a(f"v_mfma_f32_16x16x32_bf16 {q4(d)}, {q4(w+4*c)}, {q4(h+4*t)}, {q4(d) if i else 0}")
            if n == 0 and LV2 and i == 15 - HD: a("s_barrier")
            if n == 0 and (s1 or i == JS or (S2B and i == int(S2B))):
                st_ = (2, 3) if s1 else (6, 8) if i == JS else (4, 5)
                stamp(st_[0], True); a("s_barrier"); stamp(st_[1], st_[1] != 8)
            if LA == 1 or opt("rd2"):
                if n < 4:
                    for x in rd[2*n:2*n+2]: a(x)
                elif n in (4, 6) and ld: a(ld.pop(0))
            else:
                if rd: a(rd.pop(0))
                if n in (1, 5) and ld: a(ld.pop(0))
                if i == 28 and 1 <= n <= 3: a(f"v_xor_b32 v{WA+n}, {32*n}, v{VT}")
            n += 1
stamp(9)
a("s_nop 0")
for c in range(4):
    for t in ((1, 0) if c & 1 and SNAKE else (0, 1)): a(f"ds_write_b128 v{WA+c if c else VT}, {q4(16*t + 4*c)} offset:{16*t*PIT}")
a("s_waitcnt lgkmcnt(0)")
a(f"L_fin:\nv_xor_b32 v{VH+1}, 0x80, v{VFA}\ns_barrier")
a(f"ds_read_b128 v[16:19], v{VFA} offset:{PART}\nds_read_b128 v[24:27], v{VFA} offset:{PART+64*PIT}\nds_read_b128 v[20:23], v{VH+1} offset:{PART}\nds_read_b128 v[28:31], v{VH+1} offset:{PART+64*PIT}")
a("s_waitcnt lgkmcnt(2)\nv_pk_add_f32 v[16:17], v[16:17], v[24:25]\nv_pk_add_f32 v[18:19], v[18:19], v[26:27]\ns_waitcnt lgkmcnt(0)\nv_pk_add_f32 v[20:21], v[20:21], v[28:29]\nv_pk_add_f32 v[22:23], v[22:23], v[30:31]")
for j in range(4): a(f"v_cvt_pk_bf16_f32 v{16+j}, v{16+2*j}, v{17+2*j}")
a(f"buffer_store_dwordx4 v[16:19], v{VFO}, s[48:51], s42 offen " + str(opt("outflag", "sc1")).replace("_", " ").replace("none", ""))
stamp(10)
dump_stamps()
a("s_endpgm\nL_codeend:")
if WARM:
    import subprocess, tempfile, os
    def addrs(lines):
        t = []
        for i, x in enumerate(lines):
            if x is None: t.append(f"ZZ{i}:\ns_nop 0")
            elif re.match(r"(s_|v_|ds_|buffer_)", x): t.append(f"ZZ{i}:\n" + re.sub(r"WS_\d", "WRET", x))
            else: t.append(x)
        with tempfile.TemporaryDirectory() as d:
            open(d + "/t.s", "w").write("\n".join(t) + "\n")
            subprocess.check_call(["clang", "-x", "assembler", "-target", "amdgcn-amd-amdhsa", "-mcpu=gfx950", "-c", d + "/t.s", "-o", d + "/t.o"])
            sym = subprocess.check_output(["llvm-objdump", "-t", d + "/t.o"], text=True)
        return {int(m.group(2)): int(m.group(1), 16) for m in re.finditer(r"^([0-9a-f]+) .* ZZ(\d+)$", sym, re.M)}
    ENTRY = 0x300
    out = list(a.l); marks = []; nxt = 0x1000
    while True:
        ad = addrs(out); noins = False; pick = None
        for i, x in enumerate(out):
            if x is None: continue
            if x.startswith(("M_start:", "M_loop_", "M_b0_")): noins = True
            if i in ad and ad[i] + ENTRY >= nxt and not noins and not (out[i-1] or "").startswith(("s_add_u32 m0", "s_mov_b32 exec", "s_mov_b64 exec", "s_movk_i32 exec", "s_brev_b64 exec")):
                pick = i; break
            if x.startswith("WDONE:") or x.startswith("s_cbranch_scc1 M_loop_"): noins = False
        if pick is None: break
        at = ad[pick] + ENTRY
        if nxt % 0x1000 == 0 and at - nxt > 60: print("warning: page boundary %x not covered (stub at %x)" % (nxt, at), file=sys.stderr)
        out.insert(pick, None); marks.append(pick)
        page_end = (at | 0xfff) + 1
        left = page_end - at; k_ = -(-left // WARM)
        nxt = page_end if k_ <= 1 else at + left // k_
    n = len(marks); size = max(ad.values()); print("warm stubs", n, "code bytes", size, file=sys.stderr)
    assert size < 128 * 256
    for k_, m_ in enumerate(marks): out[m_] = f"WS_{k_}:\ns_cbranch_execz {'WS_%d' % (k_ + 4) if k_ + 4 < n else 'WRET'}"
    a.l = out
rodata(a)
kdesc(a, K, 256, 256)
open(OUT, "w").write(a.text())
```

```python
import sys, re
from asmlib import *
import sched
from sched import schedule
def opt(name, default=None):
    for x in sys.argv[1:]:
        if x == "--" + name: return True
        if x.startswith("--" + name + "="): return x.split("=", 1)[1]
    return default
STAMP = opt("stamp", False)
OUT = [x for x in sys.argv[1:] if not x.startswith("--")][0]
TH = int(opt("th", 7)); TH2 = int(opt("th2", 8))
N6 = int(opt("n6", 10)); N7 = int(opt("n7", 26))
PA = int(opt("pa", 0))
XPOS = int(opt("xpos", 0))
LP = str(opt("lp", "--oww-"))
C3 = str(opt("c3", "4")); SPC = int(opt("spc", 5)); ROT = str(opt("rot", "c")); SIG = str(opt("sig", "d"))
WF = not opt("nowf")
NB = [int(x, 16) for x in str(opt("nb", "8888888"))]
QO = [int(x, 16) for x in str(opt("qo", "061728394a5b"))]
KA = str(opt("ka", "")); KN = int(opt("kn", 4))
OVF = not opt("noovf")
LV2 = opt("lv2")
CX = [[int(y) for y in x] for x in str(opt("cx", ".....3")).replace("-", "").split(".")]
SNAKE = not opt("nosnake")
M2 = int(opt("m2", 4))
H3 = int(opt("h3", 5))
QP = str(opt("qp", "xiwiiiii"))
NOPAD = not opt("pad")
WARM = int(opt("warm", 2048))
sched.PKGAP = int(opt("pkgap", 32))
SPIN = 1 << 16

SLOT = 49152; XIMG = 24576; W3OFF = 12288
NA = 39; NOV = 59 - NA; G1 = 15; G2 = 27
G_LDS = NA * 4096; CNT_LDS = G_LDS + 768
assert CNT_LDS + 64 <= 163840
HP = int(opt("hp", 129))
P_OFF = 9 << 20; FH = 10 << 20; S_OFF = (10 << 20) + (512 << 10); X_OFF = 11 << 20; ST_OFF = 12 << 20
FSH = int(opt("fsh", 6)); FW = int(opt("fw", 0))
FROW = 32 << FSH; FO = FH + 22 * FROW
PSZ = 1152; PIT = 256; PART = 6 * 4096
LOG2E = 0x3fb8aa3b; NLOG2E = 0xbfb8aa3b; EPS = 0x358637bd
WSB = 16 << 20
K = NAME + "_kernel"
def pslot(i):
    if i >= 22: i -= 20
    elif i >= 19: i -= 19
    return 12 + i if i < 7 else i - 7
def wpos(i, kh): return 38 if i == 21 else 2 * pslot(i) + kh
def wrow(i, kh):
    if LV2 and i < 14: return "w2", 48 * (i + 14 * kh)
    if LV2 and i < 21: return "w2b", 96 * (i - 14 + 7 * kh) + 32
    if i < 21: return "w2", 32 * (i + 21 * kh)
    if i == 21: return "w2", 32 * 42
    return "wo", 32 * (i - 22 + 8 * kh)
NRES = 10; NP0 = 7; S2B = int(opt("s2b", 12))
HD = int(opt("hd", 6)); LA = int(opt("la", 2))
JS = min(19 - LA, 23 - HD)

a = Asm(); MSIDE = False
header(a, ["; fused linear-attention + SwiGLU gated mix; generated by my own script",
           "; @launch grid=(256,1,1) block=(512,1,1) lds=163840"])
class VM:
    def __init__(self): self.n = 0
    def op(self, s): a(s); self.n += 1; return self.n
    def cnt(self, i): return min(self.n - i, 63)
    def wait(self, i, extra=""): a(f"s_waitcnt vmcnt({self.cnt(i)}){extra}")
def stamp(i, det=False):
    if not STAMP: return
    if opt("lb") and not MSIDE:
        if det == "lb" or i in (0, 1, 10): a(("s_memrealtime" if opt("rt") else "s_memtime") + f" s[{80+2*i}:{81+2*i}]")
        return
    if det == "lb": return
    if opt("mp") and MSIDE:
        if det == "mp" or (i == 10 and not det): a(f"s_memtime s[{80+2*i}:{81+2*i}]")
        return
    if det == "mp": return
    if opt("kq") and MSIDE:
        if det == "kq" or (i in (3, 4, 10) and not det): a(f"s_memtime s[{80+2*i}:{81+2*i}]")
        return
    if det == "kq": return
    if opt("s2") and MSIDE and (i in (1, 2, 3, 4, 5, 6)) != det: return
    if det and not opt("s2"): return
    a(("s_memrealtime" if opt("rt") else "s_memtime") + f" s[{80+2*i}:{81+2*i}]")
def dump_stamps():
    if not STAMP: return
    if opt("enc"):
        wg, i0, i1 = [int(x) for x in str(opt("enc")).split(":")]
        if wg >= 0: a(f"s_cmp_eq_u32 s2, {wg}\ns_cbranch_scc0 EN_d")
        a("s_getreg_b32 s34, hwreg(HW_REG_XCC_ID)\ns_and_b32 s34, s34, 15")
        if wg <= -10: a(f"s_cmp_eq_u32 s34, {-10 - wg}\ns_cbranch_scc0 EN_d")
        a(f"s_cmp_eq_u32 s28, 0\ns_cbranch_scc0 EN_d\ns_waitcnt lgkmcnt(0)\ns_sub_u32 s30, s{80+2*i1}, s{80+2*i0}\ns_min_u32 s30, s30, 5000\ns_mul_i32 s30, s30, 10")
        if i0 == i1: a("s_mul_i32 s30, s34, 1000")
        a("EN_l:\ns_memrealtime s[32:33]\ns_waitcnt lgkmcnt(0)\ns_sub_u32 s32, s32, s100\ns_cmp_lt_u32 s32, s30\ns_cbranch_scc1 EN_l\nEN_d:")
        return
    a("s_waitcnt lgkmcnt(0)\ns_memrealtime s[30:31]\ns_waitcnt lgkmcnt(0)")
    for i in range(16):
        a(f"v_mov_b32 v{i+32}, " + (f"s{80+2*i}" if i < 11 else {15: "s30", 14: "s27", 13: "s0"}.get(i, "0")))
    a(f"s_lshl_b32 s30, s2, 3\ns_add_u32 s30, s30, s28\ns_lshl_b32 s30, s30, 6\ns_add_u32 s30, s30, {ST_OFF}\nv_mov_b32 v1, 0\ns_mov_b64 exec, 1")
    for q in range(4): a(f"buffer_store_dwordx4 v[{32+4*q}:{35+4*q}], v1, s[44:47], s30 offen offset:{16*q} sc1")
uid = 0
def lab():
    global uid; uid += 1; return uid
def pr(r): return f"v[{r}:{r+1}]"
def q4(r): return f"v[{r}:{r+3}]"
def poll(vt, voff, soff):
    u = lab()
    a(f"s_mov_b32 s67, 0\nPL{u}:\nbuffer_load_dwordx2 {pr(vt)}, {voff}, s[44:47], {soff} offen sc1\ns_waitcnt vmcnt(0)")
    a(f"v_cmp_eq_u64 vcc, s[22:23], {pr(vt)}\ns_add_u32 s67, s67, 1\ns_nop 0\ns_cmp_eq_u64 vcc, -1\ns_cbranch_scc1 PD{u}")
    if opt("bo"): a(f"s_sleep {opt('bo')}")
    a(f"s_cmp_lt_u32 s67, {SPIN}\ns_cbranch_scc1 PL{u}\nPD{u}:")
def setflag(vt, vlane16, soff, wide=False):
    if wide and FW:
        a(f"s_mov_b64 exec, {(1 << FW) - 1}\nbuffer_store_dwordx4 {q4(vt)}, {vlane16}, s[44:47], {soff} offen sc1\ns_mov_b64 exec, -1"); return
    a(f"s_mov_b64 exec, 1\nbuffer_store_dwordx2 {pr(vt)}, {vlane16}, s[44:47], {soff} offen sc1\ns_mov_b64 exec, -1")
def tag_load(): a(f"s_mov_b32 s67, {X_OFF}\ns_load_dwordx2 s[22:23], s[24:25], s67")
def tag_make(): a("s_add_u32 s22, s22, 0x7f4a7c15\ns_addc_u32 s23, s23, 0x9e3779b9")
def mapping():
    a("""s_and_b32 s30, s2, 1
s_lshr_b32 s31, s2, 3
s_bfe_u32 s52, s2, 0x20001
s_lshl_b32 s30, s30, 5
s_add_u32 s30, s30, s31
s_cmp_eq_u32 s52, 3
s_cselect_b32 s54, 52, 43
s_cselect_b32 s55, 5, 6
s_cselect_b32 s56, 55, 54
s_mul_i32 s26, s30, s54
s_lshr_b32 s26, s26, 8
s_mul_i32 s31, s26, s55
s_sub_u32 s27, s30, s31
s_sub_u32 s57, s30, s56
s_cmp_ge_u32 s57, 5
s_cselect_b32 s58, 10, 9
s_cselect_b32 s31, 5, 0
s_sub_u32 s59, s57, s31
s_and_b32 s60, s57, 1
s_add_u32 s60, s60, 9
s_lshr_b32 s61, s57, 1
s_cmp_eq_u32 s52, 3
s_cselect_b32 s58, s60, s58
s_cselect_b32 s59, 5, s59
s_cselect_b32 s61, s61, s52
s_cmp_lt_u32 s30, s56
s_cselect_b32 s26, s26, s58
s_cselect_b32 s27, s27, s59
s_cselect_b32 s52, s52, s61
s_lshl_b32 s52, s52, 1
s_add_u32 s31, s52, 6
s_cmp_lt_u32 s27, 2
s_cselect_b32 s31, 0, s31
s_add_u32 s27, s27, s52
s_add_u32 s27, s27, s31
s_min_u32 s27, s27, 23""")
def tile64(dst, t):
    if M2 == 4: a(f"s_and_b32 {dst}, s2, 7\ns_lshl_b32 {dst}, {dst}, 2\ns_lshr_b32 {t}, s2, 6\ns_add_u32 {dst}, {dst}, {t}")
    else: a(f"s_and_b32 {dst}, s2, 6\ns_lshl_b32 {dst}, {dst}, 2\ns_lshr_b32 {t}, s2, 5\ns_add_u32 {dst}, {dst}, {t}")
def coltile(dst, t):
    if M2 == 4: a(f"s_bfe_u32 {dst}, s2, 0x30003\ns_lshl_b32 {dst}, {dst}, 7")
    else: a(f"s_bfe_u32 {dst}, s2, 0x20003\ns_lshl_b32 {dst}, {dst}, 7\ns_and_b32 {t}, s2, 1\ns_lshl_b32 {t}, {t}, 9\ns_add_u32 {dst}, {dst}, {t}")
def toktile(dst, th, t):
    tile64(dst, t); a(f"s_lshl_b32 {dst}, {dst}, 1\ns_add_u32 {dst}, {dst}, {th}")
VFA = 254; VFO = 255
def fin_setup(t0, t1):
    srd(a, 48, 20, 2048*1024)
    a(f"v_lshrrev_b32 {t0}, 3, v0\ns_lshl_b32 s42, s28, 3\nv_add_u32 {t0}, s42, {t0}\nv_and_b32 {t1}, 7, v0\nv_and_b32 v{VFA}, 7, {t0}\nv_xor_b32 v{VFA}, v{VFA}, {t1}\nv_bfe_u32 v{VFO}, {t0}, 1, 1\nv_lshl_or_b32 v{VFA}, v{VFO}, 3, v{VFA}\nv_lshlrev_b32 v{VFA}, 4, v{VFA}\nv_lshl_add_u32 v{VFA}, {t0}, 8, v{VFA}")
    a(f"v_lshlrev_b32 {t0}, 10, {t0}\nv_lshl_add_u32 v{VFO}, {t1}, 4, {t0}")
    tile64("s42", "s43"); coltile("s43", "s31"); a("s_lshl_b32 s42, s42, 16\ns_add_u32 s42, s42, s43")

a(".p2align 12")
kstart(a, K)
a("s_cmp_ge_u32 s2, 256\ns_cbranch_scc1 L_exit")
stamp(0)
a("v_lshrrev_b32 v1, 6, v0\ns_load_dwordx16 s[4:19], s[0:1], 0\nv_readfirstlane_b32 s28, v1\ns_load_dwordx2 s[20:21], s[0:1], 64\ns_load_dwordx2 s[24:25], s[0:1], 80")
if STAMP: a("s_memrealtime s[0:1]")
VL = 251
a(f"v_and_b32 v0, 63, v0\nv_lshlrev_b32 v{VL}, 4, v0\ns_cmp_ge_u32 s28, 4\ns_cbranch_scc1 L_start")
a("s_getpc_b64 s[48:49]\nM_pc:\ns_and_b32 s49, s49, 0xffff\ns_mov_b32 s50, L_codeend-M_pc\ns_mov_b32 s51, 0x00020000")
a("s_lshr_b32 s30, s2, 3\ns_lshl_b32 s30, s30, 2\ns_add_u32 s30, s30, s28\ns_lshl_b32 s30, s30, 8\ns_min_u32 s30, s30, L_codeend-M_pc-256")
for i in range(4): a(f"s_buffer_load_dword s3, s[48:51], s30 offset:{64*i}")
a("s_branch M_start")
a("L_start:\ns_setprio 3")
mapping()
a("s_sub_u32 s52, s28, 4\ns_mul_i32 s29, s26, 192")
a("v_lshrrev_b32 v2, 3, v0\nv_and_b32 v3, 7, v0\nv_lshrrev_b32 v4, 4, v0")
a("s_mul_i32 s54, s52, 48\ns_add_u32 s54, s54, s29\ns_lshl_b32 s54, s54, 10\ns_cmp_eq_u32 s27, 23\ns_cselect_b32 s54, 0x40000000, s54")
a("v_xor_b32 v5, v3, v4\nv_lshl_add_u32 v5, v5, 4, s54\nv_lshl_add_u32 v16, v2, 10, v5\nv_xor_b32 v7, 64, v16")
for i in range(1, 6): a(f"v_add_u32 v{16+i}, {i*8192}, v{16 if i%2==0 else 7}")
a("s_mul_i32 s53, s52, 6144")
a({"0": "s_mov_b32 s65, 0",
   "a": "s_and_b32 s65, s26, 1\ns_lshl_b32 s65, s65, 1\ns_and_b32 s31, s2, 1\ns_add_u32 s65, s65, s31\ns_lshl_b32 s65, s65, 1",
   "c": "s_and_b32 s65, s2, 1\ns_lshl_b32 s65, s65, 2",
   "r": "s_and_b32 s65, s2, 6",
   "s": "s_and_b32 s65, s2, 2\ns_lshl_b32 s65, s65, 1",
   "d": "s_and_b32 s65, s26, 1\ns_lshl_b32 s65, s65, 2",
   "h": "s_and_b32 s65, s2, 1\ns_lshl_b32 s65, s65, 1\ns_and_b32 s31, s26, 1\ns_add_u32 s65, s65, s31\ns_lshl_b32 s65, s65, 1",
   "i": "s_and_b32 s65, s2, 1\ns_lshl_b32 s65, s65, 2\ns_and_b32 s31, s26, 1\ns_add_u32 s65, s65, s31",
   "j": "s_mul_i32 s65, s26, 11\ns_lshr_b32 s65, s65, 5\ns_mul_i32 s65, s65, 3\ns_sub_u32 s65, s26, s65\ns_mul_i32 s65, s65, 3"}[ROT])
XM = int(opt("xm", 1)); XN = int(opt("xn", 4))
if XM:
    if opt("xm4"): a("s_and_b32 s75, s26, 3")
    else: a(f"s_and{'n2' if opt('xf') else ''}_b32 s75, 1, s26\ns_mul_i32 s75, s75, {XM}")
    if opt("r0"): a(f"s_add_u32 s65, s65, {opt('r0')}")
    a("s_mov_b32 s74, s65\ns_add_u32 s65, s65, s75\ns_and_b32 s65, s65, 7")
a("s_lshl_b32 s54, s65, 7")
a("s_mov_b32 s34, 0x200000\ns_mov_b32 s35, 0x00020000\ns_mov_b32 s39, s35\ns_mov_b32 s43, s35\ns_mov_b32 s51, s35\ns_movk_i32 s50, 0x400")
a("s_lshl_b32 s66, s2, 13\ns_lshl_b32 s31, s52, 11\ns_add_u32 s66, s66, s31")
a("s_waitcnt lgkmcnt(0)")
a("s_mov_b32 s32, s4\ns_and_b32 s33, s5, 0xffff\ns_mov_b32 s48, s18\ns_and_b32 s49, s19, 0xffff")
if opt("tl"):
    a("s_lshl_b32 s67, s2, 12\ns_load_dword s10, s[6:7], s67\ns_load_dword s10, s[12:13], s67\ns_load_dword s10, s[14:15], s67")
stamp(1)
def wsetup():
    a("s_cmp_lt_u32 s27, 8\ns_cbranch_scc1 L_qkv")
    a("s_cmp_eq_u32 s27, 22\ns_cselect_b32 s31, 4, 12\ns_cmp_eq_u32 s27, 23\ns_cselect_b32 s31, 0, s31\nv_bfrev_b32 v11, 2")
    for i in range(3):
        a(f"v_add_u32 v8, {64*i}, v0\nv_mul_u32_u24 v9, 43691, v8\nv_lshrrev_b32 v9, 19, v9\nv_mul_u32_u24 v10, 12, v9\nv_sub_u32 v10, v8, v10\nv_cmp_gt_u32 vcc, s31, v10")
        a(f"v_lshrrev_b32 v8, 2, v9\nv_and_b32 v8, 2, v8\nv_xor_b32 v10, v10, v8\nv_mul_u32_u24 v9, 2752, v9\nv_lshl_add_u32 v9, v10, 4, v9\nv_cndmask_b32 v{22+i}, v11, v9, vcc\nv_cndmask_b32 v{25+i}, v11, v9, vcc")
    a(f"s_sub_u32 s3, s27, 8\ns_mul_i32 s3, s3, 192\ns_mul_i32 s67, s52, {16*2752}\ns_add_u32 s3, s3, s67\ns_mov_b32 s56, {64*2752}")
    a(f"s_mul_i32 s67, s52, 3072\ns_add_u32 s57, s67, {XIMG}")
    for i in range(1, 6): a(f"s_add_u32 s{57+i}, s57, {(i%3)*1024 + (W3OFF if i>=3 else 0)}")
    a(f"s_mov_b32 s38, {512*2752}\ns_mov_b32 s30, {LOG2E}\ns_mul_i32 s55, s65, s56\ns_add_u32 s55, s55, s3\ns_mov_b32 s42, s38")
    a("s_mov_b32 s36, s12\ns_and_b32 s37, s13, 0xffff\ns_mov_b32 s40, s14\ns_and_b32 s41, s15, 0xffff")
    a("s_branch L_go")
    a("L_qkv:")
    a("v_and_b32 v8, 1, v4\nv_lshlrev_b32 v8, 2, v8\nv_xor_b32 v8, v8, v3\nv_mul_u32_u24 v9, 3072, v2\nv_lshl_add_u32 v22, v8, 4, v9\nv_xor_b32 v8, 32, v22")
    for i in range(1, 6): a(f"v_add_u32 v{22+i}, {(i//2)*1024 + (i%2)*8*3072}, v{8 if i%2 else 22}")
    a(f"s_lshl_b32 s3, s27, 7\ns_mul_i32 s67, s52, {16*3072}\ns_add_u32 s3, s3, s67\ns_mov_b32 s56, {64*3072}")
    a(f"s_lshl_b32 s67, s52, 11\ns_add_u32 s57, s67, {XIMG}")
    for i in range(1, 6): a(f"s_add_u32 s{57+i}, s57, {(i//2)*8192 + (i%2)*1024}")
    a(f"s_mov_b32 s38, {512*3072}\ns_mov_b32 s30, {NLOG2E}\ns_mul_i32 s55, s65, s56\ns_add_u32 s55, s55, s3\ns_mov_b32 s42, s38")
    a("s_mov_b32 s36, s6\ns_and_b32 s37, s7, 0xffff\ns_mov_b32 s40, s6\ns_and_b32 s41, s7, 0xffff")
    a("L_go:")
vm = VM()
def dma(q, c):
    sl = (c % 3) * SLOT; q = {"i": QO[q], "x": q, "w": (q + 6) % 12, "v": (6, 7, 8, 9, 0, 10, 1, 11, 2, 3, 4, 5)[q], "y": (0, 1, 6, 2, 7, 8, 9, 10, 3, 11, 4, 5)[q]}[QP[c]]
    if q < 6: a(f"s_add_u32 m0, s53, {sl + q*1024}\ns_nop 0"); return vm.op(f"buffer_load_dwordx4 v{16+q}, s[32:35], s54 offen lds")
    i = q - 6
    a(f"s_add_u32 m0, s{57+i}, {sl}\ns_nop 0"); return vm.op(f"buffer_load_dwordx4 v{22+i}, s[{36 if i<3 else 40}:{39 if i<3 else 43}], s55 offen lds")
def adv(c):
    if XM and c <= XN:
        a((f"s_xor_b32 s54, s19, {c}" if c < XN else f"s_mov_b32 s54, {c}") + "\ns_add_u32 s54, s54, s11\ns_and_b32 s54, s54, 7\ns_mul_i32 s55, s54, s56\ns_add_u32 s55, s55, s3\ns_lshl_b32 s54, s54, 7")
    else: a("s_add_u32 s54, s54, 128\ns_add_u32 s55, s55, s56\ns_and_b32 s54, s54, 0x3ff\ns_cselect_b32 s55, s55, s3")
OV = 32; GR = 120
def h3pf(half):
    u = lab()
    a(f"s_and_b32 s67, s2, 6\ns_cmp_eq_u32 s67, 2\ns_cbranch_scc0 L_h3{u}")
    a(f"s_and{'n2' if half else ''}_b32 s67, 1, s2\ns_lshl_b32 s67, s67, 5\ns_lshr_b32 s31, s2, 3\ns_add_u32 s67, s67, s31\ns_lshl_b32 s67, s67, 2\ns_add_u32 s67, s67, s52\ns_mul_i32 s67, s67, 6144")
    for i in range(12): a(f"s_load_dword s10, s[6:7], s67 offset:{(i >> 1)*1024 + 384 + 64*(i & 1)}")
    a(f"L_h3{u}:")
lastof = {}
for q in range(12 + NB[0]):
    if q == XPOS:
        vm.op(f"buffer_load_dwordx4 {q4(GR+4)}, v{VL}, s[32:35], s66 offen"); vm.op(f"buffer_load_dwordx4 {q4(GR+8)}, v{VL}, s[32:35], s66 offen offset:1024")
        gl = vm.op(f"buffer_load_dwordx4 {q4(GR)}, v{VL}, s[48:51], 0 offen")
    if q == (1 if opt("wf0") else 6): wsetup()
    if q == 6:
        tag_load(); a(f"s_lshl_b32 s67, s2, 6\ns_add_u32 s67, s67, {S_OFF}\ns_load_dword s10, s[24:25], s67")
    if q == H3: h3pf(0)
    if q == 13 and opt("burst"):
        a(f"v_lshlrev_b32 v12, 7, v0\ns_lshl_b32 s67, s2, 2\ns_add_u32 s67, s67, s52\ns_lshl_b32 s67, s67, 12\ns_mov_b32 exec_hi, 0\ns_add_u32 s67, s67, {12 << 20}\nbuffer_load_dword v14, v12, s[44:47], s67 offen\ns_mov_b64 exec, -1")
    if q == 12:
        if XM: a("s_mov_b32 s11, s74\ns_mov_b32 s19, s75")
        srd(a, 44, 24, WSB); srd(a, 72, 8, 512*1024); srd(a, 68, 16, 1376*1024); adv(1)
    if q < 12: last = dma(q, 0)
    else: nxt = dma(q - 12, 1)
def gate_dots():
    a("v_mov_b32 v8, 0\nv_mov_b32 v9, 0")
    for d in range(4): a(f"v_dot2c_f32_bf16 v8, v{GR+4+d}, v{GR+d}\nv_dot2c_f32_bf16 v9, v{GR+8+d}, v{GR+d}")
    a(f"s_lshr_b32 s66, s66, 7\ns_add_u32 s66, s66, {S_OFF - 63*16}\ns_nop 0")
    for ctl in ["quad_perm:[1,0,3,2] row_mask:0xf", "quad_perm:[2,3,0,1] row_mask:0xf", "row_half_mirror row_mask:0xf", "row_mirror row_mask:0xf", "row_bcast:15 row_mask:0xa", "row_bcast:31 row_mask:0xc"]:
        a(f"v_add_f32_dpp v8, v8, v8 {ctl} bank_mask:0xf\nv_add_f32_dpp v9, v9, v9 {ctl} bank_mask:0xf\ns_nop 0")
    a("v_mov_b32 v10, s22\nv_mov_b32 v11, s23")
a("s_waitcnt lgkmcnt(0)"); tag_make()
if XPOS < 6 and not opt("glate"): vm.wait(gl); gate_dots()
a("s_setprio " + str(opt("lprio", 0)))
def pf(n, srdn, off):
    for i in range(n): a(f"s_buffer_load_dword s10, s[{srdn}:{srdn+3}], {off} offset:{64*i}")
w2done = 0
KQ = [int(x) for x in str(opt("kq4", "000000"))]
ovl = [(i, kh) for i in list(range(22, 30)) + [19, 20] for kh in range(2)]; nq = 0
KO = [int(x) for x in str(opt("ko", "000000"))]; kol = ovl[16 - sum(KO):16]; kod = []
assert sum(KO) + sum(KQ) <= 16
def wtext(j):
    mat, row = wrow(*j); s_ = 72 if mat == "wo" else 68
    return f"s_add_u32 s67, {'s78' if mat == 'w2b' else 's64'}, {row*1024}", (f"buffer_load_dwordx4 {q4(OV + 4*ovl.index(j))}, v28, s[{s_}:{s_+3}], s67 offen" if j in ovl else f"buffer_load_dwordx4 v28, s[{s_}:{s_+3}], s67 offen lds")
kad = 0
def keep(c):
    global kad
    if str(c) not in KA: return
    a(f"s_lshl_b32 s67, s2, 2\ns_add_u32 s67, s67, s52\ns_mul_i32 s67, s67, 2816\ns_add_u32 s67, s67, {13 << 20}")
    for i in range(KN): a(f"s_buffer_load_dword s10, s[44:47], s67 offset:{128*kad}"); kad += 1
def lbar(c):
    if opt("lb") == "a": stamp(2 + c, "lb")
    if opt("lb") == "c" and c >= 4: stamp(2 * c - 6, "lb")
    a("s_barrier")
    if opt("lb") == "c" and c >= 4: stamp(2 * c - 5, "lb")
    if opt("lb") == "b": stamp(2 + c, "lb")
for c in range(6):
    vm.wait(last); lbar(c)
    last = nxt
    for q in range(NB[c], 12): last = dma(q, c + 1)
    if c == 0:
        if not (XPOS < 6 and not opt("glate")): vm.wait(gl); gate_dots()
        a("s_brev_b64 exec, 1"); vm.op(f"buffer_store_dwordx4 v[8:11], v{VL}, s[44:47], s66 offen sc1"); a("s_mov_b64 exec, -1")
    if c == SPC:
        a("s_cmp_lt_u32 s27, 8\ns_cbranch_scc1 L_spq")
        if WF: a(f"s_lshl_b32 s67, s26, 5\ns_add_u32 s67, s67, s27\ns_lshl_b32 s67, s67, {FSH}\ns_add_u32 s67, s67, {FH - (8 << FSH)}\ns_buffer_load_dword s10, s[44:47], s67\ns_buffer_load_dword s10, s[44:47], s67 offset:{11*FROW if LV2 else 64}")
        else: a(f"s_lshl_b32 s67, s26, 1\ns_lshr_b32 s31, s52, 1\ns_add_u32 s67, s67, s31\ns_lshl_b32 s67, s67, 4\ns_add_u32 s67, s67, s27\ns_lshl_b32 s67, s67, 1\ns_and_b32 s31, s52, 1\ns_add_u32 s67, s67, s31\ns_lshl_b32 s67, s67, {FSH}\ns_add_u32 s67, s67, {FH - (16 << FSH)}\ns_buffer_load_dword s10, s[44:47], s67\ns_buffer_load_dword s10, s[44:47], s67 offset:64")
        a("s_branch L_spd\nL_spq:\ns_lshl_b32 s31, s27, 2\ns_add_u32 s31, s31, s52")
        a(f"s_lshl_b32 s67, s26, 5\ns_add_u32 s67, s67, s31\ns_lshl_b32 s67, s67, {FSH}\ns_add_u32 s67, s67, {FO}\ns_buffer_load_dword s10, s[44:47], s67\ns_buffer_load_dword s10, s[44:47], s67 offset:64")
        a(f"s_mul_i32 s67, s31, 11\ns_add_u32 s67, s67, s26\ns_mul_i32 s67, s67, {PSZ}\ns_add_u32 s67, s67, {P_OFF}")
        for i in range(9): a(f"s_buffer_load_dword s10, s[44:47], s67 offset:{128*i}")
        a("s_buffer_load_dword s10, s[44:47], s67 offset:1088\nL_spd:")
    if c == 2:
        coltile("s31", "s67"); a("s_and_b32 s77, s52, 1\ns_lshl_b32 s76, s77, 1")
        a("v_and_b32 v13, 1, v4\nv_lshlrev_b32 v13, 2, v13\nv_xor_b32 v13, v13, v3\nv_xor_b32 v13, s76, v13\nv_lshlrev_b32 v13, 4, v13\nv_lshl_add_u32 v28, v2, 10, v13")
        a("s_lshl_b32 s67, s52, 13\ns_add_u32 s64, s31, s67\ns_lshr_b32 s67, s52, 1\ns_lshl_b32 s67, s67, 15\ns_add_u32 s78, s64, s67")
        a(f"s_lshl_b32 s63, s52, 10\nv_add_u32 v29, s63, v{VL}\nv_add_u32 v30, 0x10000, v29\nv_add_u32 v15, 0x20000, v29")
        toktile("s31", "s77", "s67")
        a(f"s_mul_i32 s67, s31, 86\ns_lshr_b32 s67, s67, 8\ns_lshl_b32 s79, s67, {FSH+5}\ns_add_u32 s79, s79, {FH}\ns_lshr_b32 s67, s67, 1\ns_lshl_b32 s18, s67, {FSH+5}\ns_add_u32 s18, s18, {FO}")
        if WF: a(f"s_sub_u32 s79, s18, {FO - FH}")
    for cls in CX[c]:
        u = lab(); hi = u & 1
        if M2 == 8: a(f"s_bitcmp{cls >> 2}_b32 s2, 0\ns_cbranch_scc0 L_c3{u}")
        a(f"s_bitcmp{hi}_b32 s52, 1\ns_cbranch_scc0 L_c3{u}\nv_lshlrev_b32 v12, 10, v0\ns_lshr_b32 s67, s2, 3\ns_bitcmp0_b32 s52, 0\ns_cbranch_scc0 L_c3b{u}")
        a(f"s_mul_i32 s67, s67, {43*1024}\ns_movk_i32 exec_hi, 0x7ff\nbuffer_load_dword v14, v12, s[68:71], s67 offen offset:{128*cls}\ns_branch L_c3c{u}\nL_c3b{u}:")
        a(f"s_lshl_b32 s67, s67, 14\ns_mov_b64 exec, 0xffff\nbuffer_load_dword v14, v12, s[72:75], s67 offen offset:{128*cls}\nL_c3c{u}:\ns_mov_b64 exec, -1\nL_c3{u}:")
    if c == 5:
        a(f"s_mul_i32 s66, s52, 24\ns_lshr_b32 s67, s29, 1\ns_add_u32 s66, s66, s67\nv_min_u32 v13, 23, v0\nv_lshlrev_b32 v12, 3, v13\nv_add_u32 v13, s66, v13\nv_min_u32 v13, 0x3ff, v13\nv_lshlrev_b32 v13, 4, v13")
        a(f"s_mul_i32 s67, s52, 192\ns_add_u32 s67, s67, {G_LDS}\nv_add_u32 v12, s67, v12\ns_mov_b32 s66, {S_OFF}")
        last = vm.op("buffer_load_dwordx4 v[8:11], v13, s[44:47], s66 offen sc1")
    keep(c)
    if H3 >= 0 and c == int(opt("h3c", 9)): h3pf(1)
    if LP[c] == "o": a("s_lshl_b32 s67, s2, 2\ns_add_u32 s67, s67, s52\ns_lshl_b32 s67, s67, 9"); pf(8, 72, "s67")
    if LP[c] == "w":
        a(f"s_mul_i32 s67, s2, 5504\ns_mul_i32 s31, s52, 704\ns_add_u32 s67, s67, s31\ns_add_u32 s67, s67, {2816*w2done}\ns_min_u32 s67, s67, {1376*1024 - 704}"); pf(11, 68, "s67"); w2done += 1
    adv(c + 2)
    for q in range(NB[c + 1]): nxt = dma(q, c + 2)
    for n in range(KO[c]):
        j = kol[len(kod)]; kod.append(j); ad, ld = wtext(j); a(ad); vm.op(ld)
    if KQ[c]:
        assert c >= 2
        a(f"s_cmp_lt_u32 s27, 8\ns_cbranch_scc0 L_kq{c}")
        for j in ovl[nq:nq + KQ[c]]: a("\n".join(wtext(j)))
        nq += KQ[c]; a(f"L_kq{c}:")
vm.wait(last); lbar(6)
last = nxt
for q in range(NB[6], 12): last = dma(q, 7)
pairs = lambda i0, i1: [(i, kh) for i in range(i0, i1) for kh in range(2)]
wq = pairs(0, 7) + [(21, 0)] + pairs(7, NRES) + [j for j in ovl if j not in kod] + pairs(NRES, 19)
if OVF: wq = [j for j in wq if j in ovl] + [j for j in wq if j not in ovl]
wid = {}
def wnext(th=None):
    j = wq.pop(0)
    if opt("now"): wid[j] = vm.n; return
    if nq and j == ovl[0]: a("s_cmp_lt_u32 s27, 8\ns_cbranch_scc1 L_kqd")
    ad, ld = wtext(j)
    if j not in ovl: a(f"s_add_u32 m0, s63, {wpos(*j)*4096}")
    a(ad)
    if th is not None: a(f"s_waitcnt vmcnt({th})")
    if j in ovl[:nq]: a(ld)
    else: wid[j] = vm.op(ld)
    if nq and j == ovl[nq - 1]: a("L_kqd:")
assert not nq or N6 + N7 >= 21 + nq
for n in range(min(4, N6)): wnext()
a("s_mov_b32 s31, 0\nL_gw:\nv_cmp_eq_u64 vcc, s[22:23], v[10:11]\ns_add_u32 s31, s31, 1\ns_nop 0\ns_cmp_eq_u64 vcc, -1\ns_cbranch_scc1 L_gd")
a(f"buffer_load_dwordx4 v[8:11], v13, s[44:47], s66 offen sc1\ns_cmp_lt_u32 s31, {SPIN}\ns_waitcnt vmcnt(0)\ns_cbranch_scc1 L_gw\nL_gd:")
a("v_mul_f32 v8, s30, v8\nv_mul_f32 v9, s30, v9\nv_exp_f32 v8, v8\nv_exp_f32 v9, v9\ns_mov_b32 s67, 0x7f000000\nv_add_f32 v8, 1.0, v8\nv_add_f32 v9, 1.0, v9\nv_min_f32 v8, s67, v8\nv_min_f32 v9, s67, v9")
a("ds_write_b64 v12, v[8:9]")
assert N6 <= G1 + (NOV if OVF else 0) and N6 + N7 <= G2 + NOV - len(kod)
for n in range(4, N6): wnext()
a(f"v_min_u32 v12, {14 if WF else 28}, v0\nv_lshlrev_b32 v12, {FSH}, v12\nv_and_b32 v13, 31, v0\nv_lshlrev_b32 v13, {FSH}, v13\nv_mov_b32 v14, {CNT_LDS}")
vm.wait(last, " lgkmcnt(0)")
stamp(2)
keep(6)
lbar(7)
for n in range(N7):
    if n == 14: keep(7)
    wnext(TH2)
fin_setup("v8", "v9")
stamp(3)
def ldswait(cmp, sl):
    u = lab()
    a(f"s_mov_b32 s31, 0\nLW{u}:\nds_read_b32 v8, v14\ns_add_u32 s31, s31, 1\ns_waitcnt lgkmcnt(0)\n{cmp}\ns_cmp_lt_u32 s31, {SPIN}\ns_cbranch_scc0 LD{u}\ns_cbranch_vccz LW{u}\nLD{u}:")
NQX = min(int(opt("nqx", 0)), len(wq) - 12)
def wcond(items, br, th, name):
    a(f"s_cmp_lt_u32 s27, 8\n{br} {name}")
    for j in items:
        ad, ld = wtext(j); assert j not in ovl
        a(f"s_add_u32 m0, s63, {wpos(*j)*4096}\n{ad}\ns_waitcnt vmcnt({th})\n{ld}")
    a(name + ":")
qx = wq[:NQX]; wq = wq[NQX:]
if qx:
    wcond(qx, "s_cbranch_scc0", TH2, "L_qx0"); a.l.pop()
    a(f"s_waitcnt vmcnt({vm.cnt(wid[(NP0 - 1, 1)]) + NQX})\ns_branch L_qx1\nL_qx0:")
vm.wait(wid[(NP0 - 1, 1)])
a("L_qx1:\ns_barrier")
if qx: wcond(qx, "s_cbranch_scc1", TH, "L_qx2")
for j in qx: wid[j] = vm.n
a("s_cmp_lt_u32 s27, 8\ns_cselect_b32 s19, 4, s52")
while len(wq) > PA: wnext(TH)
if opt("nofh"): a("s_mov_b32 s19, 4")
a(f"s_cmp_lt_u32 s19, {1 if WF else 2}\ns_cbranch_scc0 L_np\nbuffer_load_dwordx2 v[8:9], v12, s[44:47], s79 offen sc1\nL_np:")
npa = 0 if opt("now") else len(wq)
while wq: wnext(TH)
stamp(4)
if opt("nofh"): a("s_waitcnt vmcnt(0)\ns_sleep 20\ns_branch L_s0")
a(f"s_cmp_lt_u32 s52, {1 if WF else 2}\ns_cbranch_scc0 L_s0\ns_cmp_lt_u32 s27, 8\ns_cbranch_scc1 L_sq")
a(f"s_waitcnt vmcnt({npa})\nv_cmp_eq_u64 vcc, s[22:23], v[8:9]\ns_nop 1\ns_cmp_eq_u64 vcc, -1\ns_cbranch_scc1 L_s0\ns_branch L_sp\nL_sq:")
ldswait("v_cmp_ne_u32 vcc, 0, v8", 2)
a("L_sp:")
poll(8, "v12", "s79")
a("L_s0:")
vm.wait(wid[(NRES - 1, 1)])
stamp(5)
a("s_barrier")
a("s_waitcnt vmcnt(0)\ns_barrier")
for n, j in enumerate(ovl):
    p = wpos(*j)
    if LV2 and n == int(opt("l1p", 10)): a(f"s_add_u32 s79, s79, {11*FROW}\ns_cmp_eq_u32 s52, 0\ns_cbranch_scc0 L_l0\nbuffer_load_dwordx2 v[8:9], v12, s[44:47], s79 offen sc1\nL_l0:")
    if not opt("noovw"): a(f"ds_write_b128 v{(29, 30, 15)[p // 16]}, {q4(OV+4*n)} offset:{(p % 16) * 4096}")
stamp(6)
if LV2:
    a("s_cbranch_scc0 L_l1\ns_waitcnt vmcnt(0)\nv_cmp_eq_u64 vcc, s[22:23], v[8:9]\ns_nop 1\ns_cmp_eq_u64 vcc, -1\ns_cbranch_scc1 L_l1")
    poll(8, "v12", "s79"); a("L_l1:\ns_barrier")
a("s_waitcnt lgkmcnt(0)")
if S2B: a("s_barrier")
a("s_cmp_eq_u32 s52, 0\ns_cbranch_scc0 L_o2")
poll(8, "v13", "s18")
a("L_o2:")
stamp(7)
a("s_barrier")
a(f"s_lshl_b32 s67, s2, 2\ns_add_u32 s67, s67, s52\ns_cmp_eq_u32 s67, 0\ns_cbranch_scc0 L_fin\ns_mov_b32 s67, {X_OFF}\nv_mov_b32 v8, s22\nv_mov_b32 v9, s23")
setflag(8, f"v{VL}", "s67")
a("s_branch L_fin")
a("L_exit:\ns_endpgm")

FR = 144; VX = 216; VW = 218; VGA = 220; VZS = 221; VZG = 222; VMK = 223; VG = 224; ONE = 236; VS = 240
WA = 244; VH = 248; VT = 250; TG = 252
HB = 32; RES = HB + 8 * HD
assert RES == 80
if opt("mpad"): a(f".fill {int(opt('mpad')) // 4}, 4, 0xbf800000")
a("M_start:"); MSIDE = True; stamp(1, "mp")
mapping()
a("s_lshr_b32 s52, s28, 1\ns_and_b32 s53, s28, 1")
a("v_and_b32 v2, 31, v0\nv_lshrrev_b32 v3, 5, v0\nv_bfe_u32 v4, v0, 1, 3\nv_and_b32 v14, 15, v0\nv_lshrrev_b32 v15, 4, v0")
a("s_mul_i32 s54, s52, 96\ns_cmp_lt_u32 s27, 8\ns_cselect_b32 s54, 0, s54\nv_add_u32 v5, s54, v14\nv_lshlrev_b32 v6, 7, v5")
a(f"v_xor_b32 v7, v15, v4\nv_lshl_add_u32 v{VX}, v7, 4, v6\nv_xor_b32 v{VX+1}, 64, v{VX}")
a(f"v_lshlrev_b32 v{VGA}, 2, v5\nv_add_u32 v{VGA}, {G_LDS}, v{VGA}")
a("v_bfe_u32 v8, v0, 4, 1\nv_bfe_u32 v9, v0, 2, 2\nv_and_b32 v10, 3, v0\nv_lshl_add_u32 v11, v15, 3, v9")
a(f"s_mov_b32 s63, 0\ns_mov_b32 s66, 0\ns_mov_b32 s65, {SLOT}")
a(f"v_and_b32 v12, 2, v9\nv_or_b32 v12, v12, v8\nv_lshlrev_b32 v12, 5, v12\nv_lshl_add_u32 v12, v11, 7, v12\nv_lshl_add_u32 v12, v10, 3, v12")
a(f"s_lshl_b32 s77, s52, 12\ns_add_u32 s57, s77, {12*8192}\nv_add_u32 v{WA}, s57, v12")
for c in (1, 2, 3): a(f"v_xor_b32 v{WA+c}, {32*c}, v{WA}")
a(f"v_lshlrev_b32 v12, 4, v14\nv_lshl_add_u32 v{VH}, v15, 9, v12\ns_lshl_b32 s79, s52, 30")
toktile("s60", "s53", "s62")
a(f"s_mul_i32 s60, s60, {HP*1024}\ns_mul_i32 s57, s52, {42*1024}\ns_add_u32 s76, s60, s57\ns_add_u32 s74, s60, {84*1024}\ns_lshl_b32 s57, s52, 14\ns_add_u32 s78, s60, s57\ns_add_u32 s78, s78, {96*1024}")
a(f"s_lshl_b32 s56, s53, 5\nv_add_u32 v12, s56, v14\nv_lshlrev_b32 v12, 8, v12\nv_bfe_u32 v13, v0, 1, 1\nv_xor_b32 v13, v13, v8\nv_lshl_add_u32 v12, v13, 7, v12\nv_and_b32 v13, 7, v0\nv_xor_b32 v13, v13, v3\nv_lshl_add_u32 v12, v13, 4, v12\ns_mul_i32 s56, s52, {64*PIT}\ns_add_u32 s56, s56, {PART}\nv_add_u32 v{VT}, s56, v12")
a(f"v_mov_b32 v{VS}, {CNT_LDS}\nv_mov_b32 v{VS+1}, 0\nds_write_b32 v{VS}, v{VS+1}")
stamp(2, "mp")
a("s_waitcnt lgkmcnt(0)")
stamp(3, "mp")
tag_load()
if WARM:
    a("s_mov_b64 exec, 0")
    for w in range(3): a(f"s_cmp_eq_u32 s28, {w}\ns_cbranch_scc1 WS_{w}")
    a("s_branch WS_3\nWRET:\ns_mov_b64 exec, -1\nWDONE:")
stamp(4, "mp")
srd(a, 44, 24, WSB)
fin_setup("v12", "v13")
PEEL = not opt("nopeel")
if not PEEL:
    for r in range(16, 144, 2): a(f"v_mov_b64 {pr(r)}, 0")
def m_ready():
    if not PEEL:
        for r in range(0, 16, 2): a(f"v_mov_b64 {pr(r)}, 0")
    stamp(5, "mp")
    a(f"v_mov_b32 v{VS+1}, 1\ns_waitcnt lgkmcnt(0)")
    stamp(6, "mp")
    tag_make()
    a(f"v_mov_b32 v{TG}, s22\nv_mov_b32 v{TG+1}, s23")
    stamp(1)
a("s_cmp_lt_u32 s27, 8\ns_cbranch_scc1 M_qkv")

def signal(): a(f"s_mov_b64 exec, 1\nds_add_u32 v{VS}, v{VS+1}\ns_mov_b64 exec, -1")
def kloop(kind, nleft):
    ffn = kind == "ffn"
    no, ni = (6, 6) if ffn else (12, 3)
    def O(o): return FR + 4 * o
    def I(st, i): return FR + 4 * no + 4 * ni * st + 4 * i
    def rx(r, ti, s): return [f"ds_read_b128 {q4(r)}, v{VX+s} offset:{2048*ti}"]
    def rw(r, k_, s):
        if ffn:
            fi, mat = k_ >> 1, k_ & 1; va = VW + (fi & 1); off = mat * W3OFF + s * 6144 + 32 * (fi & 2); st = 768
        else: va = VW; off = k_ * 8192 + s * 4096; st = 512
        return [f"ds_read_b64_tr_b16 {pr(r+2*rd)}, v{va} offset:{off + rd*st}" for rd in range(2)]
    rO = (lambda o, s: rw(O(o), o, s)) if ffn else (lambda o, s: rx(O(o), o, s))
    rI = (lambda st, i, s: rx(I(st, i), i, s)) if ffn else (lambda st, i, s: rw(I(st, i), i, s))
    def mf(o, i, st, zero=False):
        if ffn: d = 24 * o + 4 * i; A, B = O(o), I(st, i)
        else:
            d = 48 * i + 4 * o; A, B = (I(st, i), O(o)) if i == 0 else (O(o), I(st, i))
        return f"v_mfma_f32_16x16x32_bf16 {q4(d)}, {q4(A)}, {q4(B)}, {0 if zero else q4(d)}"
    SY = int(opt("sy", 10)); NTOP = 4 if ffn else 3
    DL = int(opt("dl", 1)); AL = opt("al")
    def step(s, head=False):
        ns = s ^ 1; qu = []; n = 0; pend = []
        e64 = "_e64" if AL else ""
        if s == 0:
            early = [f"s_cmp_eq_u32 s63, {2*SLOT}", f"s_cselect_b32 s64, {(-2*SLOT) & 0xffffffff}, s65", "s_add_u32 s63, s63, s64", "s_add_u32 s66, s66, 1", "s_cmp_lt_u32 s66, 8"]
            if AL: early = early[:2] + ["s_add_u32 s63, s63, s64", "s_add_u32 s66, s66, 0x100", "s_cmp_lt_u32 s66, 0x800"]; early = early[:2] + early[3:4] + early[2:3] + early[4:]
        else: early = [f"v_add_u32{e64} v{r}, s64, v{r}" for r in ([VX, VX + 1, VW] + ([VW + 1] if ffn else []))]
        carry = rO(no - 1, s) if DL else []
        if head:
            nf = 3 if ffn else 6; log = []
            def rd(tag, xs):
                for x in xs: a(x); log.append(tag)
            rd(("o", 0), rO(0, 0))
            for k_ in range(ni): rd(("i", k_), rI(0, k_, 0))
            for k_ in range(1, nf): rd(("o", k_), rO(k_, 0))
            carry = sum((rO(k_, 0) for k_ in range(nf, no)), []); done = 0
        else: a(f"s_waitcnt lgkmcnt({NTOP - len(carry)})")
        for o in range(no):
            for i_ in range(ni):
                i = ni - 1 - i_ if (o & 1 and SNAKE) else i_
                if head and n < SY:
                    need = max(k_ + 1 for k_, t_ in enumerate(log) if t_ in (("o", o), ("i", i)))
                    if need > done: a(f"s_waitcnt lgkmcnt({len(log) - need})"); done = need
                a(mf(o, i, s, head)); n += 1
                if DL: qu += pend; pend = []
                if i_ == ni - 1:
                    if DL: pend = rO(o, ns)
                    else: qu += rO(o, ns)
                if n < SY:
                    if head:
                        if carry: a(carry.pop(0)); log.append(None)
                        if early and n >= 3: a(early.pop(0))
                    elif carry: a(carry.pop(0))
                    elif early: a(early.pop(0))
                elif n == SY:
                    assert not early
                    a("s_waitcnt lgkmcnt(0)")
                    if s == 1: a("s_barrier")
                    qu = qu[:2] + sum((rI(ns, k_, ns) for k_ in range(ni)), []) + qu[2:]
                elif qu: a(qu.pop(0))
        assert len(qu) <= 1, qu
        for x in qu: a(x)
    a("s_setprio " + str(opt("mprio", 2)))
    if PEEL: a(f"s_branch M_b0_{kind}\n.p2align 6\n.fill ((64 - ((M_loop_{kind} - M_b0_{kind}) & 63)) & 63) / 4, 4, 0xbf800000\nM_b0_{kind}:")
    a("s_barrier")
    stamp(2); stamp(7, "mp")
    if PEEL:
        a(f"M_head_{kind}:")
        step(0, True)
    else:
        first = rO(0, 0) + sum((rI(0, i, 0) for i in range(ni)), []) + sum((rO(o, 0) for o in range(1, no - DL)), [])
        for n, x in enumerate(first):
            if n == 12: a("s_waitcnt lgkmcnt(8)")
            a(x)
        a(f"s_branch M_in_{kind}\n.p2align 6")
    a(f"M_loop_{kind}:")
    step(1)
    a(f"M_in_{kind}:")
    step(0)
    a(f"s_cbranch_scc1 M_loop_{kind}")
    order = [(o, ni - 1 - i if o & 1 and SNAKE else i) for o in range(no) for i in range(ni)] if ffn else [(o, i) for o in range(no) for i in ((2, 1) if o & 1 and SNAKE else (1, 2))] + [(o, 0) for o in range(no)]
    ms = [mf(o, i, 1) for o, i in order]
    gr = [f"ds_read2_b32 {pr(VG+2*i)}, v{VGA} offset0:{32*i} offset1:{32*i+16}" for i in range(3 if ffn else 6)]
    if DL: gr = rO(no - 1, 1) + gr
    a(f"s_waitcnt lgkmcnt({NTOP - (len(rO(0, 0)) if DL else 0)})")
    for n, x in enumerate(ms[:36 - nleft]):
        a(x)
        if gr: a(gr.pop(0))
        if n == 10:
            a("s_waitcnt lgkmcnt(0)")
    a("M_kend_%s:" % kind)
    stamp(3)
    return ms[36 - nleft:]
def bsel(hi, n): return " op_sel:[0" + ",1" * n + "]" if hi else " op_sel_hi:[1" + ",0" * n + "]"
def swaps(o): return [f"v_permlane16_swap_b32 v{o}, v{o+2}", f"v_permlane16_swap_b32 v{o+1}, v{o+3}"]

wbase = [12 * 8192, True]
def wreg(i): return RES + 16 * (i if i < NRES else i % (LA + 1))
def wreads(i):
    o = []; tgt = 38 * 4096 if i == 21 else pslot(i) * 8192
    if (i != 21) != wbase[1]:
        o += [f"v_{'add' if i != 21 else 'subrev'}_u32 v{WA+c}, s77, v{WA+c}" for c in range(4)]; wbase[1] = i != 21
    if not 0 <= tgt - wbase[0] <= 65536 - 1024:
        nb = 12 * 8192 if tgt >= 12 * 8192 else 65536 if tgt >= 65536 else 0
        o += [f"v_add_u32 v{WA+c}, {(nb - wbase[0]) & 0xffffffff}, v{WA+c}" for c in range(4)]; wbase[0] = nb
    rd = [f"ds_read_b64_tr_b16 {pr(wreg(i) + 4*c + 2*h)}, v{WA+c} offset:{tgt - wbase[0] + 512*h}" for c in range(4) for h in range(2)]
    rd[0] = "\n".join(o + rd[:1])
    return rd
def preread():
    for i in range(NP0):
        for x in wreads(i): a(x)

a(f"v_mul_u32_u24 v13, 192, v11\nv_lshl_add_u32 v13, v10, 3, v13\nv_add_u32 v13, {XIMG}, v13\ns_mul_i32 s54, s53, 3\nv_xor_b32 v12, s54, v8\nv_lshl_add_u32 v{VW}, v12, 5, v13\ns_add_u32 s54, s54, 1\nv_xor_b32 v12, s54, v8\nv_lshl_add_u32 v{VW+1}, v12, 5, v13")
a(f"s_lshl_b32 s59, s26, 1\ns_add_u32 s59, s59, s52\ns_mul_i32 s56, s59, {3*HP}\ns_lshl_b32 s59, s59, {FSH+5}")
a("s_sub_u32 s60, s27, 8\ns_lshl_b32 s60, s60, 1\ns_add_u32 s60, s60, s53\ns_mul_i32 s57, s60, 3\ns_add_u32 s56, s56, s57\ns_lshl_b32 s68, s56, 10")
if LV2:
    a("s_sub_u32 s56, s56, s57\ns_cmp_ge_u32 s60, 14\ns_cselect_b32 s57, 14, 0\ns_cmp_ge_u32 s60, 28\ns_cselect_b32 s57, 28, s57\ns_lshl_b32 s58, s60, 1\ns_add_u32 s57, s57, s58\ns_add_u32 s57, s57, s56\ns_lshl_b32 s68, s57, 10")
    a("s_cmp_ge_u32 s60, 14\ns_cselect_b32 s57, 56, 28\ns_cmp_ge_u32 s60, 28\ns_cselect_b32 s57, 64, s57\ns_add_u32 s57, s57, s60\ns_add_u32 s57, s57, s56\ns_lshl_b32 s36, s57, 10")
    a(f"s_add_u32 s37, s36, {HP*1024}\ns_add_u32 s38, s36, {2*HP*1024}")
a(f"s_add_u32 s69, s68, {HP*1024}\ns_add_u32 s70, s68, {2*HP*1024}")
if NOPAD:
    a(f"s_cmp_eq_u32 s59, {21 << (FSH+5)}\ns_cselect_b32 s32, 0, s46")
    a(f"s_cmp_ge_u32 s60, 29\ns_cselect_b32 s57, 0x40000000, 0\nv_add_u32 v{VZS}, s57, v{VL}\ns_cmp_ge_u32 s60, 28\ns_cselect_b32 s57, 0x40000000, 0\nv_add_u32 v{VZG}, s57, v{VL}")
    a("s_mov_b32 s34, s32\ns_mov_b32 s32, s44\ns_mov_b32 s33, s45\ns_mov_b32 s35, 0x00020000")
a(f"s_lshl_b32 s60, s60, {FSH}\ns_add_u32 s71, s59, s60\ns_add_u32 s71, s71, {FH}")
if WF: a(f"s_lshl_b32 s71, s26, 5\ns_add_u32 s71, s71, s27\ns_lshl_b32 s71, s71, {FSH}\ns_add_u32 s71, s71, {FH - (8 << FSH)}")
a(f"s_mov_b32 s30, {NLOG2E}\ns_mov_b32 s31, {NLOG2E}")
m_ready()
NL = int(opt("nl", 22)); NPK = int(opt("npk", 1 if NL else 0))
assert NL <= 22
ops = kloop("ffn", NL)
TS = (168, 180, 144, 156, 192, 204)
for fi in range(3):
    for ti in range(3):
        un = 3 * fi + ti
        d = 48 * fi + 8 * ti; u = d + 24; t = TS[un % 6]; g = pr(VG + 2 * ti)
        if un < NPK:
            for j in range(8): ops.append(f"v_mul_f32 v{t+j}, s30, v{d+j}")
            for j in range(8): ops.append(f"v_exp_f32 v{t+j}, v{t+j}")
            for j in range(8): ops.append(f"v_fma_f32 v{t+j}, v{t+j}, v{VG+2*ti+(j>>2)}, v{VG+2*ti+(j>>2)}")
        else:
            for j in range(0, 8, 2): ops.append(f"v_pk_mul_f32 {pr(t+j)}, {pr(d+j)}, s[30:31]")
            for j in range(8): ops.append(f"v_exp_f32 v{t+j}, v{t+j}")
            for j in range(0, 8, 2): ops.append(f"v_pk_fma_f32 {pr(t+j)}, {pr(t+j)}, {g}, {g}" + bsel(j >= 4, 2))
        for j in range(0, 8, 2): ops.append(f"v_pk_mul_f32 {pr(d+j)}, {pr(d+j)}, {pr(u+j)}")
        for j in range(8): ops.append(f"v_rcp_f32 v{t+j}, v{t+j}")
        for j in range(0, 8, 2): ops.append(f"v_pk_mul_f32 {pr(d+j)}, {pr(d+j)}, {pr(t+j)}")
        for j in range(4): ops.append(f"v_cvt_pk_bf16_f32 v{t+8+j}, v{d+2*j}, v{d+2*j+1}")
        ops += swaps(t + 8)
        if not opt("nost"): ops.append(f"buffer_store_dwordx4 {q4(t+8)}, v{(VZG if fi == 2 else VZS) if NOPAD else VL}, {'s[32:35]' if ti and NOPAD else 's[44:47]'}, " + (f"s{36+ti} offen sc1" if LV2 and fi == 2 else f"s{68+ti} offen offset:{1024*fi} sc1"))
HOLD = int(opt("hold", 0))
if HOLD:
    idx = [i for i, x in enumerate(ops) if x.startswith("buffer_store")]
    st = [ops[i] for i in idx]; new = []
    for i, x in enumerate(ops):
        if i in idx:
            k_ = idx.index(i)
            if k_ < HOLD: continue
            new.append(x)
            if k_ - HOLD < HOLD: new.append(st[k_ - HOLD])
        else: new.append(x)
    ops = new
print("ffn epilogue model cycles", schedule(ops, a, window=NL + 40, holdpk=True), file=sys.stderr)
stamp(4)
if LV2:
    a("s_cmp_eq_u32 s28, 0\ns_waitcnt vmcnt(3)\ns_barrier\ns_cbranch_scc0 M_nf"); setflag(TG, f"v{VL}", "s71"); a("M_nf:")
    preread()
    a(f"s_add_u32 s71, s71, {11*FROW}\ns_waitcnt vmcnt(0)\ns_mov_b64 exec, 1\nds_add_rtn_u32 v0, v{VS}, v{VS+1}\ns_waitcnt lgkmcnt(0)\nv_cmp_eq_u32 vcc, 3, v0\ns_mov_b64 exec, -1\ns_cbranch_vccz M_nf2")
    setflag(TG, f"v{VL}", "s71"); a("M_nf2:")
    stamp(5)
elif WF:
    a("s_cmp_eq_u32 s28, 0\ns_waitcnt vmcnt(0)\ns_barrier\ns_cbranch_scc0 M_nf"); setflag(TG, f"v{VL}", "s71", True); a("M_nf:")
    stamp(5); preread()
else:
    a("s_waitcnt vmcnt(0)")
    setflag(TG, f"v{VL}", "s71", True)
    stamp(5)
    a("s_barrier"); preread()
a("s_branch M_s2")

a("M_qkv:")
a(f"v_and_b32 v12, 2, v9\nv_or_b32 v12, v12, v8\nv_xor_b32 v12, s28, v12\nv_lshlrev_b32 v12, 5, v12\nv_lshl_add_u32 v12, v11, 7, v12\nv_lshl_add_u32 v12, v10, 3, v12\nv_add_u32 v{VW}, {XIMG}, v12")
a("s_lshl_b32 s60, s27, 2\ns_add_u32 s60, s60, s28")
a(f"s_mul_i32 s56, s26, {6*HP}\ns_add_u32 s56, s56, s60\ns_add_u32 s56, s56, 96\ns_lshl_b32 s36, s56, 10")
for ti in range(1, 6): a(f"s_add_u32 s{36+ti}, s36, {ti*HP*1024}")
a(f"s_lshl_b32 s59, s26, {FSH+5}\ns_lshl_b32 s57, s60, {FSH}\ns_add_u32 s71, s59, s57\ns_add_u32 s71, s71, {FO}")
a(f"s_mul_i32 s72, s60, {11*PSZ}\ns_add_u32 s72, s72, {P_OFF}\ns_mul_i32 s73, s26, {PSZ}\ns_add_u32 s73, s73, s72\ns_add_u32 s57, s72, {4*PSZ}\ns_add_u32 s58, s72, {8*PSZ}")
a("s_cmp_eq_u32 s26, 10\ns_cselect_b32 s75, 0, 0x3f803f80")
if NOPAD: a("s_cselect_b32 s6, 0, s46\ns_mov_b32 s4, s44\ns_mov_b32 s5, s45\ns_mov_b32 s7, 0x00020000")
a(f"v_lshlrev_b32 v{VZS}, 4, v15\nv_mul_u32_u24 v12, {PSZ}, v14\nv_add_u32 v{VZG}, v12, v{VZS}\nv_lshl_add_u32 v{VZS}, v14, 6, v{VZS}\nv_mov_b32 v{VMK}, 0xffffff00")
for j in range(4): a(f"v_mov_b32 v{ONE+j}, 0x3f803f80")
a(f"s_mov_b32 s30, {LOG2E}\ns_mov_b32 s31, {LOG2E}\ns_mov_b32 s3, {EPS}")
m_ready()
for i in range(4): a(f"s_bfe_u32 s{32+i}, s22, {0x80000 + 8*i}")
NLQ = int(opt("nlq", 12))
qm = kloop("qkv", 12 + NLQ); km = qm[:NLQ]; qm = qm[NLQ:]
assert NLQ <= 12
CK = 200; CZ = 216; TP = (192, 208)
def phi8(b, t, dst=None, plain=False):
    if dst is None: dst = b
    o = []
    if plain:
        for j in range(8): o.append(f"v_mul_f32 v{t+j}, s30, v{b+j}")
    else:
        for j in range(0, 8, 2): o.append(f"v_pk_mul_f32 {pr(t+j)}, {pr(b+j)}, s[30:31]")
    for j in range(8): o.append(f"v_exp_f32 v{t+j}, v{t+j} clamp")
    for j in range(8): o.append(f"v_max_f32 v{b+j}, s3, v{b+j}")
    for j in range(0, 8, 2): o.append(f"v_pk_add_f32 {pr(b+j)}, {pr(b+j)}, {pr(t+j)}")
    for j in range(4): o.append(f"v_cvt_pk_bf16_f32 v{dst+j}, v{b+2*j}, v{b+2*j+1}")
    return o
ops = []
for p in range(6):
    dk = 48 + 8 * p; dv = 96 + 8 * p
    ops += phi8(dk, TP[p & 1], plain=(p == 0 and NLQ > 0))
    if p == 4: ops += [f"v_mov_b32 v{ONE+j}, s75" for j in range(4)]
    for j in range(4): ops.append(f"v_cvt_pk_bf16_f32 v{dv+j}, v{dv+2*j}, v{dv+2*j+1}")
    ops.append(f"v_mfma_f32_16x16x32_bf16 {q4(CK)}, {q4(dk)}, {q4(dv)}, {q4(CK) if p else 0}")
    ops.append(f"v_mfma_f32_16x16x32_bf16 {q4(CZ)}, {q4(dk)}, {q4(ONE)}, {q4(CZ) if p else 0}")
print("k epilogue model cycles", schedule(km + ops, a, window=30, holdpk=NLQ), file=sys.stderr)
stamp(1, "kq")
a(qm[0]); a(qm[1]); a("s_nop 4")
for j in range(4): a(f"v_and_or_b32 v{CK+j}, v{CK+j}, v{VMK}, s{32+j}")
a(f"buffer_store_dwordx4 {q4(CK)}, v{VL}, s[44:47], s73 offen sc1")
for j in range(4): a(f"v_and_or_b32 v{CZ+j}, v{CZ+j}, v{VMK}, s{32+j}")
stamp(2, "kq")
ZM = 0x30003 if opt("zw") else 0x10001
a(f"s_mov_b32 exec_lo, {ZM}\ns_mov_b32 exec_hi, {ZM}\nbuffer_store_dwordx4 {q4(CZ)}, v{VZS}, s[44:47], s73 offen offset:1024 sc1\ns_mov_b64 exec, -1")
stamp(4)
PBQ = int(opt("pbq", 0))
if PBQ == 0: a("s_barrier")
GK = 24; GZ = 72; GA = 76
EZ = int(opt("ez", 4))
def zload():
    for j in range(4): a(f"v_mov_b32 v{GZ+j}, s{32+j}")
    a(f"s_add_u32 s67, s67, 1\ns_cmp_lt_u32 s67, {SPIN}\ns_cselect_b32 s62, {0 if opt('noz') else 0xff}, 0\ns_mov_b32 exec_lo, 0x7ff07ff\ns_mov_b32 exec_hi, 0x7ff07ff")
    a(f"buffer_load_dwordx4 {q4(GZ)}, v{VZG}, s[44:47], s72 offen offset:1024 sc1\ns_mov_b64 exec, -1")
a("s_mov_b32 s67, 0")
assert PBQ <= EZ
if PBQ:
    schedule(qm[2:] + sum((phi8(8 * p, TP[p & 1], 4 * p) for p in range(PBQ)), []), a, window=40, holdpk=True)
    a("s_barrier")
    schedule(sum((phi8(8 * p, TP[p & 1], 4 * p) for p in range(PBQ, EZ)), []), a, window=40)
else: schedule(qm[2:] + sum((phi8(8 * p, TP[p & 1], 4 * p, p == 0) for p in range(EZ)), []), a, window=40, holdpk=True)
def kvloads():
    for p in range(11): a(f"buffer_load_dwordx4 {q4(GK+4*p)}, v{VL}, s[44:47], {('s72', 's57', 's58')[p//4]} offen offset:{(p%4)*PSZ} sc1")
def zcheck(br):
    a("s_waitcnt vmcnt(0)")
    for j in range(4): a(f"v_xor_b32 v{GZ+j}, s{32+j}, v{GZ+j}")
    a(f"v_or3_b32 v{GA}, v{GZ}, v{GZ+1}, v{GZ+2}\nv_or_b32 v{GA}, v{GA}, v{GZ+3}\nv_and_b32 v{GA}, s62, v{GA}\nv_cmp_ne_u32 vcc, 0, v{GA}\ns_nop 0\n{br}")
zload()
schedule(sum((phi8(8 * p, TP[p & 1], 4 * p) for p in range(EZ, 6)), []), a, window=40)
stamp(5, "kq")
zcheck("s_cbranch_vccnz M_g1")
kvloads(); signal(); preread()
if not opt("nm"):
    a("s_branch M_g3\nM_g1:")
    zload(); preread()
    a("s_branch M_g2\nM_gw:")
    zload()
    a("M_g2:")
    zcheck("s_cbranch_vccnz M_gw")
    kvloads(); signal()
    a("M_g3:")
else:
    a("s_branch M_g3\nM_g1:")
    zload(); kvloads(); preread()
    a("s_branch M_g2\nM_gw:\ns_mov_b64 vcc, -1\nM_g4:")
    a("s_or_b32 s61, vcc_lo, vcc_hi\ns_lshr_b32 s60, s61, 16\ns_or_b32 s61, s61, s60")
    zload()
    for p in range(11):
        a(f"s_bitcmp1_b32 s61, {p}\ns_cbranch_scc0 M_gs{p}\nbuffer_load_dwordx4 {q4(GK+4*p)}, v{VL}, s[44:47], {('s72', 's57', 's58')[p//4]} offen offset:{(p%4)*PSZ} sc1\nM_gs{p}:")
    a("M_g2:")
    zcheck("s_cbranch_vccnz M_g4")
    signal()
    a("M_g3:")
stamp(5); stamp(6, "kq")
for ctl in ["quad_perm:[1,0,3,2]", "quad_perm:[2,3,0,1]", "row_half_mirror", "row_mirror"]:
    for j in range(4): a(f"v_add_f32_dpp v{GZ+j}, v{GZ+j}, v{GZ+j} {ctl} row_mask:0xf bank_mask:0xf")
ZA = 216; KA = 78
a(f"s_mov_b32 vcc_lo, 0x55555555\ns_mov_b32 vcc_hi, 0x55555555\nv_cvt_pk_bf16_f32 v{GZ}, v{GZ}, v{GZ+1}\nv_cvt_pk_bf16_f32 v{GZ+1}, v{GZ+2}, v{GZ+3}")
a(f"v_cndmask_b32 v{ZA}, 0, v{GZ}, vcc\nv_cndmask_b32 v{ZA+1}, 0, v{GZ+1}, vcc\nv_xor_b32 v{ZA+2}, v{ZA}, v{GZ}\nv_xor_b32 v{ZA+3}, v{ZA+1}, v{GZ+1}")
DN = 192
ops = []
for p in range(6): ops.append(f"v_mfma_f32_16x16x32_bf16 {q4(DN+4*p)}, {q4(ZA)}, {q4(4*p)}, 0")
for p in range(6):
    for h in range(2):
        r = DN + 4 * p + h; ops += [f"v_add_f32 v{r}, s3, v{r}", f"v_mul_f32 v{r}, v{r}, v{VG+2*p+h}", f"v_rcp_f32 v{r}, v{r}"]
a("s_nop 1"); schedule(ops, a)
for p in range(11):
    a(f"s_waitcnt vmcnt({10-p})")
    r = GK + 4 * p
    for j in range(4): a(f"v_xor_b32 v{r+j}, s{32+j}, v{r+j}")
    a(f"v_or3_b32 v{GA}, v{r}, v{r+1}, v{GA}\nv_or3_b32 v{GA}, v{r+2}, v{r+3}, v{GA}")
    if p:
        for j in range(0, 4, 2): a(f"v_pk_add_f32 {pr(GK+j)}, {pr(GK+j)}, {pr(r+j)}")
a(f"v_and_b32 v{GA}, s62, v{GA}\nv_cmp_ne_u32 vcc, 0, v{GA}\nv_cvt_pk_bf16_f32 v{KA}, v{GK}, v{GK+1}\nv_cvt_pk_bf16_f32 v{KA+1}, v{GK+2}, v{GK+3}\ns_cbranch_vccnz M_gw\ns_nop 0")
stamp(7, "kq"); stamp(8, "kq")
ops = []
for p in range(6):
    for h in range(2): ops.append(f"v_mfma_f32_16x16x16_bf16 {q4(GK+8*p+4*h)}, {pr(KA)}, {pr(4*p+2*h)}, 0")
for p in range(6):
    n_ = GK + 8 * p; o = n_
    if p < int(opt("onp", 1)):
        for j in range(8): ops.append(f"v_mul_f32 v{n_+j}, v{n_+j}, v{DN+4*p+(j>>2)}")
    else:
        for j in range(0, 8, 2): ops.append(f"v_pk_mul_f32 {pr(n_+j)}, {pr(n_+j)}, {pr(DN+4*p)}" + bsel(j >= 4, 1))
    for j in range(4): ops.append(f"v_cvt_pk_bf16_f32 v{o+j}, v{n_+2*j}, v{n_+2*j+1}")
    ops += swaps(o)
    ops.append(f"buffer_store_dwordx4 {q4(o)}, v{VL}, {'s[4:7]' if p >= 4 and NOPAD else 's[44:47]'}, s{36+p} offen sc1")
print("o block model cycles", schedule(ops, a, window=40, holdpk=True), file=sys.stderr)

stamp(9, "kq")
a("M_s2:")
stamp(6)
HLD = str(opt("hld", "sc1")).replace("none", "").replace("_", " ")
def hload(i):
    r = HB + 8 * (i % HD); o = []; va = VH
    if i == 21: base, jj = "s74", 0; va = VH + 1; o.append(f"v_add_u32 v{va}, s79, v{VH}")
    else: base, jj = ("s76", i) if i < 21 else ("s78", i - 22)
    if jj % 2 == 0 and jj: o.append(f"s_add_u32 {base}, {base}, 4096")
    ld = [f"buffer_load_dwordx4 {q4(r+4*t)}, v{va}, s[44:47], {base} offen offset:{(jj%2)*2048 + 256*t} {HLD}" for t in range(2)]
    return ["\n".join(o + ld[:1]), ld[1]]
a("s_barrier")
stamp(7)
for i in range(HD - 1):
    for x in hload(i): a(x)
NPRE = int(opt("npre", NRES))
for i in range(NP0, NPRE):
    for x in wreads(i): a(x)
issued = HD - 1; nread = NPRE
for i in range(30):
    h = HB + 8 * (i % HD); w = wreg(i)
    s1 = nread == NRES and i == NRES - NPRE
    a(f"s_waitcnt vmcnt({2 * (issued - 1 - i)})" + (" lgkmcnt(0)" if s1 or i == 29 else f" lgkmcnt({8*(LA-1)})" if i >= NRES else " lgkmcnt(8)" if i < NRES - NPRE else ""))
    if i == 0:
        a("s_cmp_lt_u32 s27, 8\ns_cbranch_scc0 M_noflag"); setflag(TG, f"v{VL}", "s71", True); a("s_nop 2\nM_noflag:")
        stamp(1, True)
    rd = []
    if nread < NRES: rd = wreads(nread); nread += 1
    elif NRES <= i + LA < 30: rd = wreads(i + LA)
    ld = []
    if issued < 30: ld = hload(issued); issued += 1
    n = 0
    for c in range(4):
        for t in ((1, 0) if c & 1 and SNAKE else (0, 1)):
            d = 16 * t + 4 * c
            a(f"v_mfma_f32_16x16x32_bf16 {q4(d)}, {q4(w+4*c)}, {q4(h+4*t)}, {q4(d) if i else 0}")
            if n == 0 and LV2 and i == 15 - HD: a("s_barrier")
            if n == 0 and (s1 or i == JS or (S2B and i == int(S2B))):
                st_ = (2, 3) if s1 else (6, 8) if i == JS else (4, 5)
                stamp(st_[0], True); a("s_barrier"); stamp(st_[1], st_[1] != 8)
            if LA == 1 or opt("rd2"):
                if n < 4:
                    for x in rd[2*n:2*n+2]: a(x)
                elif n in (4, 6) and ld: a(ld.pop(0))
            else:
                if rd: a(rd.pop(0))
                if n in (1, 5) and ld: a(ld.pop(0))
                if i == 28 and 1 <= n <= 3: a(f"v_xor_b32 v{WA+n}, {32*n}, v{VT}")
            n += 1
stamp(9)
a("s_nop 0")
for c in range(4):
    for t in ((1, 0) if c & 1 and SNAKE else (0, 1)): a(f"ds_write_b128 v{WA+c if c else VT}, {q4(16*t + 4*c)} offset:{16*t*PIT}")
a("s_waitcnt lgkmcnt(0)")
a(f"L_fin:\nv_xor_b32 v{VH+1}, 0x80, v{VFA}\ns_barrier")
a(f"ds_read_b128 v[16:19], v{VFA} offset:{PART}\nds_read_b128 v[24:27], v{VFA} offset:{PART+64*PIT}\nds_read_b128 v[20:23], v{VH+1} offset:{PART}\nds_read_b128 v[28:31], v{VH+1} offset:{PART+64*PIT}")
a("s_waitcnt lgkmcnt(2)\nv_pk_add_f32 v[16:17], v[16:17], v[24:25]\nv_pk_add_f32 v[18:19], v[18:19], v[26:27]\ns_waitcnt lgkmcnt(0)\nv_pk_add_f32 v[20:21], v[20:21], v[28:29]\nv_pk_add_f32 v[22:23], v[22:23], v[30:31]")
for j in range(4): a(f"v_cvt_pk_bf16_f32 v{16+j}, v{16+2*j}, v{17+2*j}")
a(f"buffer_store_dwordx4 v[16:19], v{VFO}, s[48:51], s42 offen " + str(opt("outflag", "sc1")).replace("_", " ").replace("none", ""))
stamp(10)
dump_stamps()
a("s_endpgm\nL_codeend:")
if WARM:
    import subprocess, tempfile, os
    def addrs(lines):
        t = []
        for i, x in enumerate(lines):
            if x is None: t.append(f"ZZ{i}:\ns_nop 0")
            elif re.match(r"(s_|v_|ds_|buffer_)", x): t.append(f"ZZ{i}:\n" + re.sub(r"WS_\d", "WRET", x))
            else: t.append(x)
        with tempfile.TemporaryDirectory() as d:
            open(d + "/t.s", "w").write("\n".join(t) + "\n")
            subprocess.check_call(["clang", "-x", "assembler", "-target", "amdgcn-amd-amdhsa", "-mcpu=gfx950", "-c", d + "/t.s", "-o", d + "/t.o"])
            sym = subprocess.check_output(["llvm-objdump", "-t", d + "/t.o"], text=True)
        return {int(m.group(2)): int(m.group(1), 16) for m in re.finditer(r"^([0-9a-f]+) .* ZZ(\d+)$", sym, re.M)}
    ENTRY = 0x300
    out = list(a.l); marks = []; nxt = 0x1000
    while True:
        ad = addrs(out); noins = False; pick = None
        for i, x in enumerate(out):
            if x is None: continue
            if x.startswith(("M_start:", "M_loop_", "M_b0_")): noins = True
            if i in ad and ad[i] + ENTRY >= nxt and not noins and not (out[i-1] or "").startswith(("s_add_u32 m0", "s_mov_b32 exec", "s_mov_b64 exec", "s_movk_i32 exec", "s_brev_b64 exec")):
                pick = i; break
            if x.startswith("WDONE:") or x.startswith("s_cbranch_scc1 M_loop_"): noins = False
        if pick is None: break
        at = ad[pick] + ENTRY
        if nxt % 0x1000 == 0 and at - nxt > 60: print("warning: page boundary %x not covered (stub at %x)" % (nxt, at), file=sys.stderr)
        out.insert(pick, None); marks.append(pick)
        page_end = (at | 0xfff) + 1
        left = page_end - at; k_ = -(-left // WARM)
        nxt = page_end if k_ <= 1 else at + left // k_
    n = len(marks); size = max(ad.values()); print("warm stubs", n, "code bytes", size, file=sys.stderr)
    assert size < 128 * 256
    for k_, m_ in enumerate(marks): out[m_] = f"WS_{k_}:\ns_cbranch_execz {'WS_%d' % (k_ + 4) if k_ + 4 < n else 'WRET'}"
    a.l = out
rodata(a)
kdesc(a, K, 256, 256)
open(OUT, "w").write(a.text())
```

```python
import sys, re
from asmlib import *
import sched
from sched import schedule
def opt(name, default=None):
    for x in sys.argv[1:]:
        if x == "--" + name: return True
        if x.startswith("--" + name + "="): return x.split("=", 1)[1]
    return default
STAMP = opt("stamp", False)
OUT = [x for x in sys.argv[1:] if not x.startswith("--")][0]
TH = int(opt("th", 7)); TH2 = int(opt("th2", 8))
N6 = int(opt("n6", 10)); N7 = int(opt("n7", 26))
PA = int(opt("pa", 0))
XPOS = int(opt("xpos", 12))
LP = str(opt("lp", "--oww-"))
C3 = str(opt("c3", "4")); SPC = int(opt("spc", 5)); ROT = str(opt("rot", "c")); SIG = str(opt("sig", "d"))
WF = not opt("nowf")
NB = [int(x, 16) for x in str(opt("nb", "8888888"))]
QO = [int(x, 16) for x in str(opt("qo", "061728394a5b"))]
KA = str(opt("ka", "")); KN = int(opt("kn", 4))
OVF = not opt("noovf")
LV2 = opt("lv2")
CX = [[int(y) for y in x] for x in str(opt("cx", ".....3")).replace("-", "").split(".")]
SNAKE = not opt("nosnake")
M2 = int(opt("m2", 4))
H3 = int(opt("h3", 5))
QP = str(opt("qp", "xwwwiiii"))
NOPAD = not opt("pad")
XP2 = int(opt("xp2", XPOS)); assert XP2 >= XPOS
BA = int(opt("ba", 13)); SYH = int(opt("syh", 28))
BX = int(opt("bx", 0))
WARM = int(opt("warm", 2048))
sched.PKGAP = int(opt("pkgap", 32))
SPIN = 1 << 16

SLOT = 49152; XIMG = 24576; W3OFF = 12288
NA = 39; NOV = 59 - NA; G1 = 15; G2 = 27
G_LDS = NA * 4096; CNT_LDS = G_LDS + 768
assert CNT_LDS + 64 <= 163840
HP = int(opt("hp", 129))
P_OFF = 9 << 20; FH = 10 << 20; S_OFF = (10 << 20) + (512 << 10); X_OFF = 11 << 20; ST_OFF = 12 << 20
FSH = int(opt("fsh", 6)); FW = int(opt("fw", 0))
FROW = 32 << FSH; FO = FH + 22 * FROW
PSZ = 1152; PIT = 256; PART = 6 * 4096
LOG2E = 0x3fb8aa3b; NLOG2E = 0xbfb8aa3b; EPS = 0x358637bd
WSB = 16 << 20
K = NAME + "_kernel"
def pslot(i):
    if i >= 22: i -= 20
    elif i >= 19: i -= 19
    return 12 + i if i < 7 else i - 7
def wpos(i, kh): return 38 if i == 21 else 2 * pslot(i) + kh
def wrow(i, kh):
    if LV2 and i < 14: return "w2", 48 * (i + 14 * kh)
    if LV2 and i < 21: return "w2b", 96 * (i - 14 + 7 * kh) + 32
    if i < 21: return "w2", 32 * (i + 21 * kh)
    if i == 21: return "w2", 32 * 42
    return "wo", 32 * (i - 22 + 8 * kh)
NRES = 10; NP0 = 7; S2B = int(opt("s2b", 12))
HD = int(opt("hd", 6)); LA = int(opt("la", 2))
JS = min(19 - LA, 23 - HD)

a = Asm(); MSIDE = False
header(a, ["; fused linear-attention + SwiGLU gated mix; generated by my own script",
           "; @launch grid=(256,1,1) block=(512,1,1) lds=163840"])
class VM:
    def __init__(self): self.n = 0
    def op(self, s): a(s); self.n += 1; return self.n
    def cnt(self, i): return min(self.n - i, 63)
    def wait(self, i, extra=""): a(f"s_waitcnt vmcnt({self.cnt(i)}){extra}")
def stamp(i, det=False):
    if not STAMP: return
    if opt("lb") and not MSIDE:
        if det == "lb" or i in (0, 1, 10): a(("s_memrealtime" if opt("rt") else "s_memtime") + f" s[{80+2*i}:{81+2*i}]")
        return
    if det == "lb": return
    if opt("kz") and MSIDE:
        if det == "kz" or (i in (3, 4, 10) and not det): a(f"s_memrealtime s[{80+2*i}:{81+2*i}]")
        return
    if det == "kz": return
    if opt("mp") and MSIDE:
        if det == "mp" or (i == 10 and not det): a(f"s_memtime s[{80+2*i}:{81+2*i}]")
        return
    if det == "mp": return
    if opt("kq") and MSIDE:
        if det == "kq" or (i in (3, 4, 10) and not det): a(f"s_memtime s[{80+2*i}:{81+2*i}]")
        return
    if det == "kq": return
    if opt("s2") and MSIDE and (i in (1, 2, 3, 4, 5, 6)) != det: return
    if det and not opt("s2"): return
    a(("s_memrealtime" if opt("rt") else "s_memtime") + f" s[{80+2*i}:{81+2*i}]")
def dump_stamps():
    if not STAMP: return
    if opt("enc"):
        wg, i0, i1 = [int(x) for x in str(opt("enc")).split(":")]
        if wg >= 0: a(f"s_cmp_eq_u32 s2, {wg}\ns_cbranch_scc0 EN_d")
        a("s_getreg_b32 s34, hwreg(HW_REG_XCC_ID)\ns_and_b32 s34, s34, 15")
        if wg <= -10: a(f"s_cmp_eq_u32 s34, {-10 - wg}\ns_cbranch_scc0 EN_d")
        a(f"s_cmp_eq_u32 s28, 0\ns_cbranch_scc0 EN_d\ns_waitcnt lgkmcnt(0)\ns_sub_u32 s30, s{80+2*i1}, s{80+2*i0}\ns_min_u32 s30, s30, 5000\ns_mul_i32 s30, s30, 10")
        if i0 == i1: a("s_mul_i32 s30, s34, 1000")
        a("EN_l:\ns_memrealtime s[32:33]\ns_waitcnt lgkmcnt(0)\ns_sub_u32 s32, s32, s100\ns_cmp_lt_u32 s32, s30\ns_cbranch_scc1 EN_l\nEN_d:")
        return
    a("s_waitcnt lgkmcnt(0)\ns_memrealtime s[30:31]\ns_waitcnt lgkmcnt(0)")
    for i in range(16):
        a(f"v_mov_b32 v{i+32}, " + (f"s{80+2*i}" if i < 11 else {15: "s30", 14: "s27", 13: "s0", 12: "s67"}.get(i, "0")))
    a(f"s_lshl_b32 s30, s2, 3\ns_add_u32 s30, s30, s28\ns_lshl_b32 s30, s30, 6\ns_add_u32 s30, s30, {ST_OFF}\nv_mov_b32 v1, 0\ns_mov_b64 exec, 1")
    for q in range(4): a(f"buffer_store_dwordx4 v[{32+4*q}:{35+4*q}], v1, s[44:47], s30 offen offset:{16*q} sc1")
uid = 0
def lab():
    global uid; uid += 1; return uid
def pr(r): return f"v[{r}:{r+1}]"
def q4(r): return f"v[{r}:{r+3}]"
def poll(vt, voff, soff):
    u = lab()
    a(f"s_mov_b32 s67, 0\nPL{u}:\nbuffer_load_dwordx2 {pr(vt)}, {voff}, s[44:47], {soff} offen sc1\ns_waitcnt vmcnt(0)")
    a(f"v_cmp_eq_u64 vcc, s[22:23], {pr(vt)}\ns_add_u32 s67, s67, 1\ns_nop 0\ns_cmp_eq_u64 vcc, -1\ns_cbranch_scc1 PD{u}")
    if opt("bo"): a(f"s_sleep {opt('bo')}")
    a(f"s_cmp_lt_u32 s67, {SPIN}\ns_cbranch_scc1 PL{u}\nPD{u}:")
def setflag(vt, vlane16, soff, wide=False):
    if wide and FW:
        a(f"s_mov_b64 exec, {(1 << FW) - 1}\nbuffer_store_dwordx4 {q4(vt)}, {vlane16}, s[44:47], {soff} offen sc1\ns_mov_b64 exec, -1"); return
    a(f"s_mov_b64 exec, 1\nbuffer_store_dwordx2 {pr(vt)}, {vlane16}, s[44:47], {soff} offen sc1\ns_mov_b64 exec, -1")
def tag_load(): a(f"s_mov_b32 s67, {X_OFF}\ns_load_dwordx2 s[22:23], s[24:25], s67")
def tag_make(): a("s_add_u32 s22, s22, 0x7f4a7c15\ns_addc_u32 s23, s23, 0x9e3779b9")
def mapping():
    a("""s_and_b32 s30, s2, 1
s_lshr_b32 s31, s2, 3
s_bfe_u32 s52, s2, 0x20001
s_lshl_b32 s30, s30, 5
s_add_u32 s30, s30, s31
s_cmp_eq_u32 s52, 3
s_cselect_b32 s54, 52, 43
s_cselect_b32 s55, 5, 6
s_cselect_b32 s56, 55, 54
s_mul_i32 s26, s30, s54
s_lshr_b32 s26, s26, 8
s_mul_i32 s31, s26, s55
s_sub_u32 s27, s30, s31
s_sub_u32 s57, s30, s56
s_cmp_ge_u32 s57, 5
s_cselect_b32 s58, 10, 9
s_cselect_b32 s31, 5, 0
s_sub_u32 s59, s57, s31
s_and_b32 s60, s57, 1
s_add_u32 s60, s60, 9
s_lshr_b32 s61, s57, 1
s_cmp_eq_u32 s52, 3
s_cselect_b32 s58, s60, s58
s_cselect_b32 s59, 5, s59
s_cselect_b32 s61, s61, s52
s_cmp_lt_u32 s30, s56
s_cselect_b32 s26, s26, s58
s_cselect_b32 s27, s27, s59
s_cselect_b32 s52, s52, s61
s_lshl_b32 s52, s52, 1
s_add_u32 s31, s52, 6
s_cmp_lt_u32 s27, 2
s_cselect_b32 s31, 0, s31
s_add_u32 s27, s27, s52
s_add_u32 s27, s27, s31
s_min_u32 s27, s27, 23""")
def tile64(dst, t):
    if M2 == 4: a(f"s_and_b32 {dst}, s2, 7\ns_lshl_b32 {dst}, {dst}, 2\ns_lshr_b32 {t}, s2, 6\ns_add_u32 {dst}, {dst}, {t}")
    else: a(f"s_and_b32 {dst}, s2, 6\ns_lshl_b32 {dst}, {dst}, 2\ns_lshr_b32 {t}, s2, 5\ns_add_u32 {dst}, {dst}, {t}")
def coltile(dst, t):
    if M2 == 4: a(f"s_bfe_u32 {dst}, s2, 0x30003\ns_lshl_b32 {dst}, {dst}, 7")
    else: a(f"s_bfe_u32 {dst}, s2, 0x20003\ns_lshl_b32 {dst}, {dst}, 7\ns_and_b32 {t}, s2, 1\ns_lshl_b32 {t}, {t}, 9\ns_add_u32 {dst}, {dst}, {t}")
def toktile(dst, th, t):
    tile64(dst, t); a(f"s_lshl_b32 {dst}, {dst}, 1\ns_add_u32 {dst}, {dst}, {th}")
VFA = 254; VFO = 255
def fin_setup(t0, t1):
    srd(a, 48, 20, 2048*1024)
    a(f"v_lshrrev_b32 {t0}, 3, v0\ns_lshl_b32 s42, s28, 3\nv_add_u32 {t0}, s42, {t0}\nv_and_b32 {t1}, 7, v0\nv_and_b32 v{VFA}, 7, {t0}\nv_xor_b32 v{VFA}, v{VFA}, {t1}\nv_bfe_u32 v{VFO}, {t0}, 1, 1\nv_lshl_or_b32 v{VFA}, v{VFO}, 3, v{VFA}\nv_lshlrev_b32 v{VFA}, 4, v{VFA}\nv_lshl_add_u32 v{VFA}, {t0}, 8, v{VFA}")
    a(f"v_lshlrev_b32 {t0}, 10, {t0}\nv_lshl_add_u32 v{VFO}, {t1}, 4, {t0}")
    tile64("s42", "s43"); coltile("s43", "s31"); a("s_lshl_b32 s42, s42, 16\ns_add_u32 s42, s42, s43")

a(".p2align 12")
kstart(a, K)
a("s_cmp_ge_u32 s2, 256\ns_cbranch_scc1 L_exit")
stamp(0)
a("v_lshrrev_b32 v1, 6, v0\ns_load_dwordx16 s[4:19], s[0:1], 0\nv_readfirstlane_b32 s28, v1\ns_load_dwordx2 s[20:21], s[0:1], 64\ns_load_dwordx2 s[24:25], s[0:1], 80")
if STAMP: a("s_memrealtime s[0:1]")
VL = 251
a(f"v_and_b32 v0, 63, v0\nv_lshlrev_b32 v{VL}, 4, v0\ns_cmp_ge_u32 s28, 4\ns_cbranch_scc1 L_start")
a("s_getpc_b64 s[48:49]\nM_pc:\ns_and_b32 s49, s49, 0xffff\ns_mov_b32 s50, L_codeend-M_pc\ns_mov_b32 s51, 0x00020000")
a("s_lshr_b32 s30, s2, 3\ns_lshl_b32 s30, s30, 2\ns_add_u32 s30, s30, s28\ns_lshl_b32 s30, s30, 8\ns_min_u32 s30, s30, L_codeend-M_pc-256")
for i in range(4): a(f"s_buffer_load_dword s3, s[48:51], s30 offset:{64*i}")
a("s_branch M_start")
a("L_start:\ns_setprio 3")
mapping()
a("s_sub_u32 s52, s28, 4\ns_mul_i32 s29, s26, 192")
a("v_lshrrev_b32 v2, 3, v0\nv_and_b32 v3, 7, v0\nv_lshrrev_b32 v4, 4, v0")
a("s_mul_i32 s54, s52, 48\ns_add_u32 s54, s54, s29\ns_lshl_b32 s54, s54, 10\ns_cmp_eq_u32 s27, 23\ns_cselect_b32 s54, 0x40000000, s54")
a("v_xor_b32 v5, v3, v4\nv_lshl_add_u32 v5, v5, 4, s54\nv_lshl_add_u32 v16, v2, 10, v5\nv_xor_b32 v7, 64, v16")
for i in range(1, 6): a(f"v_add_u32 v{16+i}, {i*8192}, v{16 if i%2==0 else 7}")
a("s_mul_i32 s53, s52, 6144")
a({"0": "s_mov_b32 s65, 0",
   "a": "s_and_b32 s65, s26, 1\ns_lshl_b32 s65, s65, 1\ns_and_b32 s31, s2, 1\ns_add_u32 s65, s65, s31\ns_lshl_b32 s65, s65, 1",
   "c": "s_and_b32 s65, s2, 1\ns_lshl_b32 s65, s65, 2",
   "r": "s_and_b32 s65, s2, 6",
   "s": "s_and_b32 s65, s2, 2\ns_lshl_b32 s65, s65, 1",
   "d": "s_and_b32 s65, s26, 1\ns_lshl_b32 s65, s65, 2",
   "h": "s_and_b32 s65, s2, 1\ns_lshl_b32 s65, s65, 1\ns_and_b32 s31, s26, 1\ns_add_u32 s65, s65, s31\ns_lshl_b32 s65, s65, 1",
   "i": "s_and_b32 s65, s2, 1\ns_lshl_b32 s65, s65, 2\ns_and_b32 s31, s26, 1\ns_add_u32 s65, s65, s31",
   "j": "s_mul_i32 s65, s26, 11\ns_lshr_b32 s65, s65, 5\ns_mul_i32 s65, s65, 3\ns_sub_u32 s65, s26, s65\ns_mul_i32 s65, s65, 3"}[ROT])
XM = int(opt("xm", 0)); XN = int(opt("xn", 4))
if XM:
    if opt("xm4"): a("s_and_b32 s75, s26, 3")
    else: a(f"s_and{'n2' if opt('xf') else ''}_b32 s75, 1, s26\ns_mul_i32 s75, s75, {XM}")
    XS = str(opt("xs", "-"))
    if XS == "q": a("s_bfe_u32 s31, s2, 0x10001\ns_lshl_b32 s75, s75, s31")
    if XS == "c": a("s_and_b32 s31, s27, 1\ns_lshl_b32 s75, s75, s31")
    if XS == "z": a("s_and_b32 s75, s75, s27")
    if XS == "f": a("s_cmp_lt_u32 s27, 8\ns_cselect_b32 s75, 0, s75")
    if opt("r0"): a(f"s_add_u32 s65, s65, {opt('r0')}")
    a("s_mov_b32 s74, s65\ns_add_u32 s65, s65, s75\ns_and_b32 s65, s65, 7")
a("s_lshl_b32 s54, s65, 7")
a("s_mov_b32 s34, 0x200000\ns_mov_b32 s35, 0x00020000\ns_mov_b32 s39, s35\ns_mov_b32 s51, s35\ns_movk_i32 s50, 0x400")
a("s_lshl_b32 s66, s2, 13\ns_lshl_b32 s31, s52, 11\ns_add_u32 s66, s66, s31")
def wsetup(part=None):
    if part == 1:
        a("s_bitcmp1_b32 s52, 0\ns_cselect_b32 s36, s14, s12\ns_cselect_b32 s37, s15, s13\ns_cmp_lt_u32 s27, 8\ns_cselect_b32 s36, s6, s36\ns_cselect_b32 s37, s7, s37\ns_and_b32 s37, s37, 0xffff"); return
    a("s_cmp_lt_u32 s27, 8\ns_cbranch_scc1 L_qkv")
    a("s_cmp_eq_u32 s27, 22\ns_cselect_b32 s31, 4, 12\ns_cmp_eq_u32 s27, 23\ns_cselect_b32 s31, 0, s31\nv_bfrev_b32 v11, 2")
    for i in range(3):
        a(f"v_add_u32 v8, {64*i}, v0\nv_mul_u32_u24 v9, 43691, v8\nv_lshrrev_b32 v9, 19, v9\nv_mul_u32_u24 v10, 12, v9\nv_sub_u32 v10, v8, v10\nv_cmp_gt_u32 vcc, s31, v10")
        a(f"v_lshrrev_b32 v8, 2, v9\nv_and_b32 v8, 2, v8\nv_xor_b32 v10, v10, v8\nv_mul_u32_u24 v9, 2752, v9\nv_lshl_add_u32 v9, v10, 4, v9\nv_cndmask_b32 v{22+i}, v11, v9, vcc\nv_add_u32 v{25+i}, {32*2752}, v{22+i}")
    a(f"s_sub_u32 s3, s27, 8\ns_mul_i32 s3, s3, 192\ns_lshr_b32 s31, s52, 1\ns_mul_i32 s67, s31, {16*2752}\ns_add_u32 s3, s3, s67\ns_mov_b32 s56, {64*2752}")
    a(f"s_mul_i32 s57, s31, 3072\ns_and_b32 s31, s52, 1\ns_mul_i32 s67, s31, {W3OFF}\ns_add_u32 s57, s57, s67\ns_add_u32 s57, s57, {XIMG}")
    for i in range(1, 6): a(f"s_add_u32 s{57+i}, s57, {(i%3)*1024 + (6144 if i>=3 else 0)}")
    a(f"s_mov_b32 s38, {512*2752}\ns_mov_b32 s30, {LOG2E}")
    a("s_branch L_go")
    a("L_qkv:")
    a("v_and_b32 v8, 1, v4\nv_lshlrev_b32 v8, 2, v8\nv_xor_b32 v8, v8, v3\ns_and_b32 s31, s52, 1\ns_lshl_b32 s31, s31, 1\nv_xor_b32 v8, s31, v8\nv_mul_u32_u24 v9, 3072, v2\nv_lshl_add_u32 v22, v8, 4, v9")
    for i in range(1, 6): a(f"v_add_u32 v{22+i}, {(i%3)*1024 + (i//3)*32*3072}, v22")
    a(f"s_lshl_b32 s3, s27, 7\ns_mul_i32 s67, s52, {8*3072}\ns_add_u32 s3, s3, s67\ns_mov_b32 s56, {64*3072}")
    a(f"s_lshl_b32 s67, s52, 10\ns_add_u32 s57, s67, {XIMG}")
    for i in range(1, 6): a(f"s_add_u32 s{57+i}, s57, {(i%3)*8192 + (i//3)*4096}")
    a(f"s_mov_b32 s38, {512*3072}\ns_mov_b32 s30, {NLOG2E}")
    a("L_go:")
    a("s_mul_i32 s55, s65, s56\ns_add_u32 s55, s55, s3")
    if part is None: wsetup(1)
if BX: wsetup(0)
a("s_waitcnt lgkmcnt(0)")
a("s_mov_b32 s32, s4\ns_and_b32 s33, s5, 0xffff\ns_mov_b32 s48, s18\ns_and_b32 s49, s19, 0xffff")
if opt("tl"):
    a("s_lshl_b32 s67, s2, 12\ns_load_dword s10, s[6:7], s67\ns_load_dword s10, s[12:13], s67\ns_load_dword s10, s[14:15], s67")
stamp(1)
vm = VM()
def dma(q, c):
    sl = (c % 3) * SLOT; q = {"i": QO[q], "x": q, "w": (q + 6) % 12, "v": (6, 7, 8, 9, 0, 10, 1, 11, 2, 3, 4, 5)[q], "y": (0, 1, 6, 2, 7, 8, 9, 10, 3, 11, 4, 5)[q], "z": (0, 1, 2, 3, 6, 7, 8, 4, 5, 9, 10, 11)[q]}["z" if BX and c == 0 else QP[c]]
    if q < 6: a(f"s_add_u32 m0, s53, {sl + q*1024}\ns_nop 0"); return vm.op(f"buffer_load_dwordx4 v{16+q}, s[32:35], s54 offen lds")
    i = q - 6
    a(f"s_add_u32 m0, s{57+i}, {sl}\ns_nop 0"); return vm.op(f"buffer_load_dwordx4 v{22+i}, s[36:39], s55 offen lds")
def adv(c):
    if XM and c <= XN:
        a((f"s_xor_b32 s54, s19, {c}" if c < XN else f"s_mov_b32 s54, {c}") + "\ns_add_u32 s54, s54, s11\ns_and_b32 s54, s54, 7\ns_mul_i32 s55, s54, s56\ns_add_u32 s55, s55, s3\ns_lshl_b32 s54, s54, 7")
    else: a("s_add_u32 s54, s54, 128\ns_add_u32 s55, s55, s56\ns_and_b32 s54, s54, 0x3ff\ns_cselect_b32 s55, s55, s3")
OV = 32; GR = 120
def h3pf(half):
    u = lab()
    a(f"s_and_b32 s67, s2, 6\ns_cmp_eq_u32 s67, 2\ns_cbranch_scc0 L_h3{u}")
    a(f"s_and{'n2' if half else ''}_b32 s67, 1, s2\ns_lshl_b32 s67, s67, 5\ns_lshr_b32 s31, s2, 3\ns_add_u32 s67, s67, s31\ns_lshl_b32 s67, s67, 2\ns_add_u32 s67, s67, s52\ns_mul_i32 s67, s67, 6144")
    for i in range(12): a(f"s_load_dword s10, s[6:7], s67 offset:{(i >> 1)*1024 + 384 + 64*(i & 1)}")
    a(f"L_h3{u}:")
lastof = {}
for q in range(12 + NB[0]):
    if q == XPOS: gl = vm.op(f"buffer_load_dwordx4 {q4(GR+4)}, v{VL}, s[32:35], s66 offen")
    if q == XP2:
        vm.op(f"buffer_load_dwordx4 {q4(GR+8)}, v{VL}, s[32:35], s66 offen offset:1024")
        gl = vm.op(f"buffer_load_dwordx4 {q4(GR)}, v{VL}, s[48:51], 0 offen")
    if q == (4 if BX else 6): wsetup(1) if BX else wsetup()
    if q == 6:
        tag_load(); a(f"s_lshl_b32 s67, s2, 6\ns_add_u32 s67, s67, {S_OFF}\ns_load_dword s10, s[24:25], s67")
    if q == H3: h3pf(0)
    if q == 13 and opt("burst"):
        a(f"v_lshlrev_b32 v12, 7, v0\ns_lshl_b32 s67, s2, 2\ns_add_u32 s67, s67, s52\ns_lshl_b32 s67, s67, 12\ns_mov_b32 exec_hi, 0\ns_add_u32 s67, s67, {12 << 20}\nbuffer_load_dword v14, v12, s[44:47], s67 offen\ns_mov_b64 exec, -1")
    if q == 12:
        if XM: a("s_mov_b32 s11, s74\ns_mov_b32 s19, s75")
        srd(a, 44, 24, WSB); srd(a, 72, 8, 512*1024); srd(a, 68, 16, 1376*1024); adv(1)
    if q == BX and BX: vm.wait(third); a("s_barrier")
    if q == BA and BA: vm.wait(half); a("s_barrier")
    if q < 12:
        last = dma(q, 0)
        if q == 8: half = last
        if q == 6: third = last
    else: nxt = dma(q - 12, 1)
def gate_dots():
    a("v_mov_b32 v8, 0\nv_mov_b32 v9, 0")
    for d in range(4): a(f"v_dot2c_f32_bf16 v8, v{GR+4+d}, v{GR+d}\nv_dot2c_f32_bf16 v9, v{GR+8+d}, v{GR+d}")
    a(f"s_lshr_b32 s66, s66, 7\ns_add_u32 s66, s66, {S_OFF - 63*16}\ns_nop 0")
    for ctl in ["quad_perm:[1,0,3,2] row_mask:0xf", "quad_perm:[2,3,0,1] row_mask:0xf", "row_half_mirror row_mask:0xf", "row_mirror row_mask:0xf", "row_bcast:15 row_mask:0xa", "row_bcast:31 row_mask:0xc"]:
        a(f"v_add_f32_dpp v8, v8, v8 {ctl} bank_mask:0xf\nv_add_f32_dpp v9, v9, v9 {ctl} bank_mask:0xf\ns_nop 0")
    a("v_mov_b32 v10, s22\nv_mov_b32 v11, s23")
a("s_waitcnt lgkmcnt(0)"); tag_make()
if XP2 < int(opt("gthr", 13)) and not opt("glate"): vm.wait(gl); gate_dots()
a("s_setprio " + str(opt("lprio", 0)))
def pf(n, srdn, off):
    for i in range(n): a(f"s_buffer_load_dword s10, s[{srdn}:{srdn+3}], {off} offset:{64*i}")
w2done = 0
KQ = [int(x) for x in str(opt("kq4", "000000"))]
ovl = [(i, kh) for i in list(range(22, 30)) + [19, 20] for kh in range(2)]; nq = 0
KO = [int(x) for x in str(opt("ko", "000000"))]; kol = ovl[16 - sum(KO):16]; kod = []
kql = ovl[N6:N6 + sum(KQ)]; assert OVF and len(kql) == sum(KQ) and not (sum(KO) and sum(KQ))
def wtext(j):
    mat, row = wrow(*j); s_ = 72 if mat == "wo" else 68
    return f"s_add_u32 s67, {'s78' if mat == 'w2b' else 's64'}, {row*1024}", (f"buffer_load_dwordx4 {q4(OV + 4*ovl.index(j))}, v28, s[{s_}:{s_+3}], s67 offen" if j in ovl else f"buffer_load_dwordx4 v28, s[{s_}:{s_+3}], s67 offen lds")
kad = 0
def keep(c):
    global kad
    if str(c) not in KA: return
    a(f"s_lshl_b32 s67, s2, 2\ns_add_u32 s67, s67, s52\ns_mul_i32 s67, s67, 2816\ns_add_u32 s67, s67, {13 << 20}")
    for i in range(KN): a(f"s_buffer_load_dword s10, s[44:47], s67 offset:{128*kad}"); kad += 1
def lbar(c):
    if opt("lb") == "a": stamp(2 + c, "lb")
    if opt("lb") == "c" and c >= 4: stamp(2 * c - 6, "lb")
    a("s_barrier")
    if opt("lb") == "c" and c >= 4: stamp(2 * c - 5, "lb")
    if opt("lb") == "b": stamp(2 + c, "lb")
for c in range(6):
    vm.wait(last); lbar(c)
    last = nxt
    for q in range(NB[c], 12): last = dma(q, c + 1)
    if c == 0:
        if not (XP2 < int(opt("gthr", 13)) and not opt("glate")): vm.wait(gl); gate_dots()
        a("s_brev_b64 exec, 1"); vm.op(f"buffer_store_dwordx4 v[8:11], v{VL}, s[44:47], s66 offen sc1"); a("s_mov_b64 exec, -1")
    if c == SPC:
        a("s_cmp_lt_u32 s27, 8\ns_cbranch_scc1 L_spq")
        if WF: a(f"s_lshl_b32 s67, s26, 5\ns_add_u32 s67, s67, s27\ns_lshl_b32 s67, s67, {FSH}\ns_add_u32 s67, s67, {FH - (8 << FSH)}\ns_buffer_load_dword s10, s[44:47], s67\ns_buffer_load_dword s10, s[44:47], s67 offset:{11*FROW if LV2 else 64}")
        else: a(f"s_lshl_b32 s67, s26, 1\ns_lshr_b32 s31, s52, 1\ns_add_u32 s67, s67, s31\ns_lshl_b32 s67, s67, 4\ns_add_u32 s67, s67, s27\ns_lshl_b32 s67, s67, 1\ns_and_b32 s31, s52, 1\ns_add_u32 s67, s67, s31\ns_lshl_b32 s67, s67, {FSH}\ns_add_u32 s67, s67, {FH - (16 << FSH)}\ns_buffer_load_dword s10, s[44:47], s67\ns_buffer_load_dword s10, s[44:47], s67 offset:64")
        a("s_branch L_spd\nL_spq:\ns_lshl_b32 s31, s27, 2\ns_add_u32 s31, s31, s52")
        a(f"s_lshl_b32 s67, s26, 5\ns_add_u32 s67, s67, s31\ns_lshl_b32 s67, s67, {FSH}\ns_add_u32 s67, s67, {FO}\ns_buffer_load_dword s10, s[44:47], s67\ns_buffer_load_dword s10, s[44:47], s67 offset:64")
        a(f"s_mul_i32 s67, s31, 11\ns_add_u32 s67, s67, s26\ns_mul_i32 s67, s67, {PSZ}\ns_add_u32 s67, s67, {P_OFF}")
        for i in range(9): a(f"s_buffer_load_dword s10, s[44:47], s67 offset:{128*i}")
        a("s_buffer_load_dword s10, s[44:47], s67 offset:1088\nL_spd:")
    if c == 2:
        coltile("s31", "s67"); a("s_and_b32 s77, s52, 1\ns_lshl_b32 s76, s77, 1")
        a("v_and_b32 v13, 1, v4\nv_lshlrev_b32 v13, 2, v13\nv_xor_b32 v13, v13, v3\nv_xor_b32 v13, s76, v13\nv_lshlrev_b32 v13, 4, v13\nv_lshl_add_u32 v28, v2, 10, v13")
        a("s_lshl_b32 s67, s52, 13\ns_add_u32 s64, s31, s67\ns_lshr_b32 s67, s52, 1\ns_lshl_b32 s67, s67, 15\ns_add_u32 s78, s64, s67")
        a(f"s_lshl_b32 s63, s52, 10\nv_add_u32 v29, s63, v{VL}\nv_add_u32 v30, 0x10000, v29\nv_add_u32 v15, 0x20000, v29")
        toktile("s31", "s77", "s67")
        a(f"s_mul_i32 s67, s31, 86\ns_lshr_b32 s67, s67, 8\ns_lshl_b32 s79, s67, {FSH+5}\ns_add_u32 s79, s79, {FH}\ns_lshr_b32 s67, s67, 1\ns_lshl_b32 s18, s67, {FSH+5}\ns_add_u32 s18, s18, {FO}")
        if WF: a(f"s_sub_u32 s79, s18, {FO - FH}")
    for cls in CX[c]:
        u = lab(); hi = u & 1
        if M2 == 8: a(f"s_bitcmp{cls >> 2}_b32 s2, 0\ns_cbranch_scc0 L_c3{u}")
        a(f"s_bitcmp{hi}_b32 s52, 1\ns_cbranch_scc0 L_c3{u}\nv_lshlrev_b32 v12, 10, v0\ns_lshr_b32 s67, s2, 3\ns_bitcmp0_b32 s52, 0\ns_cbranch_scc0 L_c3b{u}")
        a(f"s_mul_i32 s67, s67, {43*1024}\ns_movk_i32 exec_hi, 0x7ff\nbuffer_load_dword v14, v12, s[68:71], s67 offen offset:{128*cls}\ns_branch L_c3c{u}\nL_c3b{u}:")
        a(f"s_lshl_b32 s67, s67, 14\ns_mov_b64 exec, 0xffff\nbuffer_load_dword v14, v12, s[72:75], s67 offen offset:{128*cls}\nL_c3c{u}:\ns_mov_b64 exec, -1\nL_c3{u}:")
    if c == 5:
        a(f"s_mul_i32 s66, s52, 24\ns_lshr_b32 s67, s29, 1\ns_add_u32 s66, s66, s67\nv_min_u32 v13, 23, v0\nv_lshlrev_b32 v12, 3, v13\nv_add_u32 v13, s66, v13\nv_min_u32 v13, 0x3ff, v13\nv_lshlrev_b32 v13, 4, v13")
        a(f"s_mul_i32 s67, s52, 192\ns_add_u32 s67, s67, {G_LDS}\nv_add_u32 v12, s67, v12\ns_mov_b32 s66, {S_OFF}")
        last = vm.op("buffer_load_dwordx4 v[8:11], v13, s[44:47], s66 offen sc1")
    keep(c)
    if H3 >= 0 and c == int(opt("h3c", 9)): h3pf(1)
    if LP[c] == "o": a("s_lshl_b32 s67, s2, 2\ns_add_u32 s67, s67, s52\ns_lshl_b32 s67, s67, 9"); pf(8, 72, "s67")
    if LP[c] == "w":
        a(f"s_mul_i32 s67, s2, 5504\ns_mul_i32 s31, s52, 704\ns_add_u32 s67, s67, s31\ns_add_u32 s67, s67, {2816*w2done}\ns_min_u32 s67, s67, {1376*1024 - 704}"); pf(11, 68, "s67"); w2done += 1
    adv(c + 2)
    for q in range(NB[c + 1]): nxt = dma(q, c + 2)
    for n in range(KO[c]):
        j = kol[len(kod)]; kod.append(j); ad, ld = wtext(j); a(ad); vm.op(ld)
    if KQ[c]:
        assert c >= 2
        a(f"s_cmp_lt_u32 s27, 8\ns_cbranch_scc0 L_kq{c}")
        for j in kql[nq:nq + KQ[c]]: a("\n".join(wtext(j)))
        nq += KQ[c]; a(f"L_kq{c}:")
vm.wait(last); lbar(6)
last = nxt
for q in range(NB[6], 12): last = dma(q, 7)
pairs = lambda i0, i1: [(i, kh) for i in range(i0, i1) for kh in range(2)]
wq = pairs(0, 7) + [(21, 0)] + pairs(7, NRES) + [j for j in ovl if j not in kod] + pairs(NRES, 19)
if OVF: wq = [j for j in wq if j in ovl] + [j for j in wq if j not in ovl]
wid = {}
def wnext(th=None):
    j = wq.pop(0)
    if opt("now"): wid[j] = vm.n; return
    if nq and j == kql[0]: a("s_cmp_lt_u32 s27, 8\ns_cbranch_scc1 L_kqd")
    ad, ld = wtext(j)
    if j not in ovl: a(f"s_add_u32 m0, s63, {wpos(*j)*4096}")
    a(ad)
    if th is not None: a(f"s_waitcnt vmcnt({th})")
    if j in kql: a(ld)
    else: wid[j] = vm.op(ld)
    if nq and j == kql[-1]: a("L_kqd:")
assert N7 >= nq
for n in range(min(4, N6)): wnext()
a("s_mov_b32 s31, 0\nL_gw:\nv_cmp_eq_u64 vcc, s[22:23], v[10:11]\ns_add_u32 s31, s31, 1\ns_nop 0\ns_cmp_eq_u64 vcc, -1\ns_cbranch_scc1 L_gd")
a(f"buffer_load_dwordx4 v[8:11], v13, s[44:47], s66 offen sc1\ns_cmp_lt_u32 s31, {SPIN}\ns_waitcnt vmcnt(0)\ns_cbranch_scc1 L_gw\nL_gd:")
a("v_mul_f32 v8, s30, v8\nv_mul_f32 v9, s30, v9\nv_exp_f32 v8, v8\nv_exp_f32 v9, v9\ns_mov_b32 s67, 0x7f000000\nv_add_f32 v8, 1.0, v8\nv_add_f32 v9, 1.0, v9\nv_min_f32 v8, s67, v8\nv_min_f32 v9, s67, v9")
a("ds_write_b64 v12, v[8:9]")
assert N6 <= G1 + (NOV if OVF else 0) and N6 + N7 <= G2 + NOV - len(kod)
for n in range(4, N6): wnext()
a(f"v_min_u32 v12, {14 if WF else 28}, v0\nv_lshlrev_b32 v12, {FSH}, v12\nv_and_b32 v13, 31, v0\nv_lshlrev_b32 v13, {FSH}, v13\nv_mov_b32 v14, {CNT_LDS}")
vm.wait(last, " lgkmcnt(0)")
stamp(2)
keep(6)
lbar(7)
for n in range(N7):
    if n == 14: keep(7)
    wnext(TH2)
fin_setup("v8", "v9")
stamp(3)
def ldswait(cmp, sl):
    u = lab()
    a(f"s_mov_b32 s31, 0\nLW{u}:\nds_read_b32 v8, v14\ns_add_u32 s31, s31, 1\ns_waitcnt lgkmcnt(0)\n{cmp}\ns_cmp_lt_u32 s31, {SPIN}\ns_cbranch_scc0 LD{u}\ns_cbranch_vccz LW{u}\nLD{u}:")
NQX = min(int(opt("nqx", 11)), len(wq) - 12)
def wcond(items, br, th, name):
    a(f"s_cmp_lt_u32 s27, 8\n{br} {name}")
    for j in items:
        ad, ld = wtext(j); assert j not in ovl
        a(f"s_add_u32 m0, s63, {wpos(*j)*4096}\n{ad}\ns_waitcnt vmcnt({th})\n{ld}")
    a(name + ":")
qx = wq[:NQX]; wq = wq[NQX:]
if qx:
    wcond(qx, "s_cbranch_scc0", TH2, "L_qx0"); a.l.pop()
    a(f"s_waitcnt vmcnt({vm.cnt(wid[(NP0 - 1, 1)]) + NQX})\ns_branch L_qx1\nL_qx0:")
vm.wait(wid[(NP0 - 1, 1)])
a("L_qx1:\ns_barrier")
if qx: wcond(qx, "s_cbranch_scc1", TH, "L_qx2")
for j in qx: wid[j] = vm.n
DQ = not opt("nodq")
if DQ:
    a("s_cmp_lt_u32 s27, 8\ns_cbranch_scc0 L_dq"); ldswait(f"v_cmp_le_u32 vcc, {opt('dqn', 1)}, v8", 2); a("L_dq:")
a("s_cmp_lt_u32 s27, 8\ns_cselect_b32 s19, 4, s52")
while len(wq) > PA: wnext(TH)
if opt("nofh"): a("s_mov_b32 s19, 4")
a(f"s_cmp_lt_u32 s19, {1 if WF else 2}\ns_cbranch_scc0 L_np\nbuffer_load_dwordx2 v[8:9], v12, s[44:47], s79 offen sc1\nL_np:")
npa = 0 if opt("now") else len(wq)
while wq: wnext(TH)
stamp(4)
if opt("nofh"): a("s_waitcnt vmcnt(0)\ns_sleep 20\ns_branch L_s0")
a(f"s_cmp_lt_u32 s52, {1 if WF else 2}\ns_cbranch_scc0 L_s0\ns_cmp_lt_u32 s27, 8\ns_cbranch_scc1 L_sq")
a(f"s_waitcnt vmcnt({npa})\nv_cmp_eq_u64 vcc, s[22:23], v[8:9]\ns_nop 1\ns_cmp_eq_u64 vcc, -1\ns_cbranch_scc1 L_s0\ns_branch L_sp\nL_sq:")
if not DQ: ldswait("v_cmp_ne_u32 vcc, 0, v8", 2)
a("L_sp:")
poll(8, "v12", "s79")
a("L_s0:")
vm.wait(wid[(NRES - 1, 1)])
stamp(5)
a("s_barrier")
a("s_waitcnt vmcnt(0)\ns_barrier")
for n, j in enumerate(ovl):
    p = wpos(*j)
    if LV2 and n == int(opt("l1p", 10)): a(f"s_add_u32 s79, s79, {11*FROW}\ns_cmp_eq_u32 s52, 0\ns_cbranch_scc0 L_l0\nbuffer_load_dwordx2 v[8:9], v12, s[44:47], s79 offen sc1\nL_l0:")
    if not opt("noovw"): a(f"ds_write_b128 v{(29, 30, 15)[p // 16]}, {q4(OV+4*n)} offset:{(p % 16) * 4096}")
stamp(6)
if LV2:
    a("s_cbranch_scc0 L_l1\ns_waitcnt vmcnt(0)\nv_cmp_eq_u64 vcc, s[22:23], v[8:9]\ns_nop 1\ns_cmp_eq_u64 vcc, -1\ns_cbranch_scc1 L_l1")
    poll(8, "v12", "s79"); a("L_l1:\ns_barrier")
a("s_waitcnt lgkmcnt(0)")
if S2B: a("s_barrier")
a("s_cmp_eq_u32 s52, 0\ns_cbranch_scc0 L_o2")
poll(8, "v13", "s18")
a("L_o2:")
stamp(7)
a("s_barrier")
a(f"s_lshl_b32 s67, s2, 2\ns_add_u32 s67, s67, s52\ns_cmp_eq_u32 s67, 0\ns_cbranch_scc0 L_fin\ns_mov_b32 s67, {X_OFF}\nv_mov_b32 v8, s22\nv_mov_b32 v9, s23")
setflag(8, f"v{VL}", "s67")
a("s_branch L_fin")
a("L_exit:\ns_endpgm")

FR = 144; VX = 216; VW = 218; VGA = 220; VZS = 221; VZG = 222; VMK = 223; VG = 224; ONE = 236; VS = 240
WA = 244; VH = 248; VT = 250; TG = 252
HB = 32; RES = HB + 8 * HD
assert RES == 80
if opt("mpad"): a(f".fill {int(opt('mpad')) // 4}, 4, 0xbf800000")
a("M_start:"); MSIDE = True; stamp(1, "mp")
mapping()
a("s_lshr_b32 s52, s28, 1\ns_and_b32 s53, s28, 1")
a("v_and_b32 v2, 31, v0\nv_lshrrev_b32 v3, 5, v0\nv_bfe_u32 v4, v0, 1, 3\nv_and_b32 v14, 15, v0\nv_lshrrev_b32 v15, 4, v0")
a("s_mul_i32 s54, s52, 96\ns_cmp_lt_u32 s27, 8\ns_cselect_b32 s54, 0, s54\nv_add_u32 v5, s54, v14\nv_lshlrev_b32 v6, 7, v5")
a(f"v_xor_b32 v7, v15, v4\nv_lshl_add_u32 v{VX}, v7, 4, v6\nv_xor_b32 v{VX+1}, 64, v{VX}")
a(f"v_lshlrev_b32 v{VGA}, 2, v5\nv_add_u32 v{VGA}, {G_LDS}, v{VGA}")
a("v_bfe_u32 v8, v0, 4, 1\nv_bfe_u32 v9, v0, 2, 2\nv_and_b32 v10, 3, v0\nv_lshl_add_u32 v11, v15, 3, v9")
a(f"s_mov_b32 s63, 0\ns_mov_b32 s66, 0\ns_mov_b32 s65, {SLOT}")
a(f"v_and_b32 v12, 2, v9\nv_or_b32 v12, v12, v8\nv_lshlrev_b32 v12, 5, v12\nv_lshl_add_u32 v12, v11, 7, v12\nv_lshl_add_u32 v12, v10, 3, v12")
a(f"s_lshl_b32 s77, s52, 12\ns_add_u32 s57, s77, {12*8192}\nv_add_u32 v{WA}, s57, v12")
for c in (1, 2, 3): a(f"v_xor_b32 v{WA+c}, {32*c}, v{WA}")
a(f"v_lshlrev_b32 v12, 4, v14\nv_lshl_add_u32 v{VH}, v15, 9, v12\ns_lshl_b32 s79, s52, 30")
toktile("s60", "s53", "s62")
a(f"s_mul_i32 s60, s60, {HP*1024}\ns_mul_i32 s57, s52, {42*1024}\ns_add_u32 s76, s60, s57\ns_add_u32 s74, s60, {84*1024}\ns_lshl_b32 s57, s52, 14\ns_add_u32 s78, s60, s57\ns_add_u32 s78, s78, {96*1024}")
a(f"s_lshl_b32 s56, s53, 5\nv_add_u32 v12, s56, v14\nv_lshlrev_b32 v12, 8, v12\nv_bfe_u32 v13, v0, 1, 1\nv_xor_b32 v13, v13, v8\nv_lshl_add_u32 v12, v13, 7, v12\nv_and_b32 v13, 7, v0\nv_xor_b32 v13, v13, v3\nv_lshl_add_u32 v12, v13, 4, v12\ns_mul_i32 s56, s52, {64*PIT}\ns_add_u32 s56, s56, {PART}\nv_add_u32 v{VT}, s56, v12")
a(f"v_mov_b32 v{VS}, {CNT_LDS}\nv_mov_b32 v{VS+1}, 0\nds_write_b32 v{VS}, v{VS+1}")
stamp(2, "mp")
a("s_waitcnt lgkmcnt(0)")
stamp(3, "mp")
tag_load()
if WARM:
    a("s_mov_b64 exec, 0")
    for w in range(3): a(f"s_cmp_eq_u32 s28, {w}\ns_cbranch_scc1 WS_{w}")
    a("s_branch WS_3\nWRET:\ns_mov_b64 exec, -1\nWDONE:")
stamp(4, "mp")
srd(a, 44, 24, WSB)
fin_setup("v12", "v13")
PEEL = not opt("nopeel")
if not PEEL:
    for r in range(16, 144, 2): a(f"v_mov_b64 {pr(r)}, 0")
def m_ready():
    if not PEEL:
        for r in range(0, 16, 2): a(f"v_mov_b64 {pr(r)}, 0")
    stamp(5, "mp")
    a(f"v_mov_b32 v{VS+1}, 1\ns_waitcnt lgkmcnt(0)")
    stamp(6, "mp")
    tag_make()
    a(f"v_mov_b32 v{TG}, s22\nv_mov_b32 v{TG+1}, s23")
    stamp(1)
a("s_cmp_lt_u32 s27, 8\ns_cbranch_scc1 M_qkv")

def signal(): a(f"s_mov_b64 exec, 1\nds_add_u32 v{VS}, v{VS+1}\ns_mov_b64 exec, -1")
def kloop(kind, nleft):
    ffn = kind == "ffn"
    no, ni = (6, 6) if ffn else (12, 3)
    def O(o): return FR + 4 * o
    def I(st, i): return FR + 4 * no + 4 * ni * st + 4 * i
    def rx(r, ti, s): return [f"ds_read_b128 {q4(r)}, v{VX+s} offset:{2048*ti}"]
    def rw(r, k_, s):
        if ffn:
            fi, mat = k_ >> 1, k_ & 1; va = VW + (fi & 1); off = mat * W3OFF + s * 6144 + 32 * (fi & 2); st = 768
        else: va = VW; off = k_ * 8192 + s * 4096; st = 512
        return [f"ds_read_b64_tr_b16 {pr(r+2*rd)}, v{va} offset:{off + rd*st}" for rd in range(2)]
    rO = (lambda o, s: rw(O(o), o, s)) if ffn else (lambda o, s: rx(O(o), o, s))
    rI = (lambda st, i, s: rx(I(st, i), i, s)) if ffn else (lambda st, i, s: rw(I(st, i), i, s))
    def mf(o, i, st, zero=False):
        if ffn: d = 24 * o + 4 * i; A, B = O(o), I(st, i)
        else:
            d = 48 * i + 4 * o; A, B = (I(st, i), O(o)) if i == 0 else (O(o), I(st, i))
        return f"v_mfma_f32_16x16x32_bf16 {q4(d)}, {q4(A)}, {q4(B)}, {0 if zero else q4(d)}"
    SY0 = int(opt("sy", 10)); NTOP = 4 if ffn else 3
    DL = int(opt("dl", 1)); AL = opt("al")
    def step(s, head=False):
        ns = s ^ 1; qu = []; n = 0; pend = []; SY = SYH if head and BA else SY0
        e64 = "_e64" if AL else ""
        if s == 0:
            early = [f"s_cmp_eq_u32 s63, {2*SLOT}", f"s_cselect_b32 s64, {(-2*SLOT) & 0xffffffff}, s65", "s_add_u32 s63, s63, s64", "s_add_u32 s66, s66, 1", "s_cmp_lt_u32 s66, 8"]
            if AL: early = early[:2] + ["s_add_u32 s63, s63, s64", "s_add_u32 s66, s66, 0x100", "s_cmp_lt_u32 s66, 0x800"]; early = early[:2] + early[3:4] + early[2:3] + early[4:]
        else: early = [f"v_add_u32{e64} v{r}, s64, v{r}" for r in ([VX, VX + 1, VW] + ([VW + 1] if ffn else []))]
        carry = rO(no - 1, s) if DL else []
        if head:
            nf = 3 if ffn else 6; log = []
            def rd(tag, xs):
                for x in xs: a(x); log.append(tag)
            rd(("o", 0), rO(0, 0))
            for k_ in range(ni): rd(("i", k_), rI(0, k_, 0))
            for k_ in range(1, nf): rd(("o", k_), rO(k_, 0))
            carry = sum((rO(k_, 0) for k_ in range(nf, no)), []); done = 0
            ctag = [("o", k_) for k_ in range(nf, no) for _ in rO(k_, 0)]
        else: a(f"s_waitcnt lgkmcnt({NTOP - len(carry)})")
        for o in range(no):
            for i_ in range(ni):
                i = ni - 1 - i_ if (o & 1 and SNAKE) else i_
                if head and n < SY:
                    need = max(k_ + 1 for k_, t_ in enumerate(log) if t_ in (("o", o), ("i", i)))
                    if need > done: a(f"s_waitcnt lgkmcnt({len(log) - need})"); done = need
                a(mf(o, i, s, head)); n += 1
                if head and opt("soft"): a(f"s_nop {opt('soft')}")
                if DL: qu += pend; pend = []
                if i_ == ni - 1:
                    if DL: pend = rO(o, ns)
                    else: qu += rO(o, ns)
                if n < SY:
                    if head:
                        if carry: a(carry.pop(0)); log.append(ctag.pop(0))
                        if early and n >= 3: a(early.pop(0))
                    elif carry: a(carry.pop(0))
                    elif early: a(early.pop(0))
                elif n == SY:
                    assert not early
                    a("s_waitcnt lgkmcnt(0)")
                    if s == 1 or (head and BA): a("s_barrier")
                    qu = qu[:2] + sum((rI(ns, k_, ns) for k_ in range(ni)), []) + qu[2:]
                elif qu: a(qu.pop(0))
        assert len(qu) <= 1 or head, qu
        for x in qu: a(x)
    if opt("heat"):
        n_, gap = [int(x) for x in str(opt("heat")).split(":")]
        a(f"s_mov_b32 s60, 0x9e3779b1\nv_or_b32 v1, 5, v{VL}")
        for r in range(16): a(f"v_mul_lo_u32 v1, v1, s60\nv_and_b32 v{FR+r}, 0xbfffbfff, v1")
        u = lab(); a(f"s_mov_b32 s61, 0\nHT{u}:")
        for r in range(8):
            a(f"v_mfma_f32_16x16x32_bf16 {q4(4*r)}, {q4(FR + 4*(r&3))}, {q4(FR + 4*((r>>1)&3))}, 0")
            if gap: a(f"s_nop {gap}")
        a(f"s_add_u32 s61, s61, 8\ns_cmp_lt_u32 s61, {n_}\ns_cbranch_scc1 HT{u}")
    a("s_setprio " + str(opt("mprio", 2)))
    if PEEL: a(f"s_branch M_b0_{kind}\n.p2align 6\n.fill ((64 - ((M_loop_{kind} - M_b0_{kind}) & 63)) & 63) / 4, 4, 0xbf800000\nM_b0_{kind}:")
    a("s_barrier")
    stamp(2); stamp(7, "mp")
    if PEEL:
        a(f"M_head_{kind}:")
        if BX:
            log = []; done = [0]
            def rd(tag, xs):
                for x in xs: a(x); log.append(tag)
            def run(seq, fill):
                for o, i in seq:
                    need = max(k_ + 1 for k_, t_ in enumerate(log) if t_ in (("o", o), ("i", i)))
                    if need > done[0]: a(f"s_waitcnt lgkmcnt({min(len(log) - need, 15)})"); done[0] = need
                    a(mf(o, i, 0, True))
                    if fill:
                        t_, x = fill.pop(0); a(x)
                        if t_: log.append(t_)
            sal = [(None, x) for x in (f"s_cmp_eq_u32 s63, {2*SLOT}", f"s_cselect_b32 s64, {(-2*SLOT) & 0xffffffff}, s65", "s_add_u32 s63, s63, s64", "s_add_u32 s66, s66, 1")]
            if ffn:
                rd(("o", 0), rO(0, 0))
                for k_ in (0, 1, 3, 4): rd(("i", k_), rI(0, k_, 0))
                for k_ in (1, 2): rd(("o", k_), rO(k_, 0))
                run([(o, i) for o in range(6) for i in (0, 1, 3, 4)], [(("o", k_), x) for k_ in (3, 4, 5) for x in rO(k_, 0)] + sal)
                if BA: a("s_barrier")
                late = [(("i", k_), rI(0, k_, 0)) for k_ in (2, 5)]; seq = [(o, i) for o in range(6) for i in (2, 5)]
            else:
                rows = [o for o in range(12) if o % 3 < 2]
                rd(("o", 0), rO(0, 0))
                for k_ in range(3): rd(("i", k_), rI(0, k_, 0))
                for k_ in rows[1:4]: rd(("o", k_), rO(k_, 0))
                run([(o, i) for o in rows for i in range(3)], [(("o", k_), x) for k_ in rows[4:] for x in rO(k_, 0)] + sal)
                if BA: a("s_barrier")
                late = [(("o", k_), rO(k_, 0)) for k_ in (2, 5, 8, 11)]; seq = [(o, i) for o in (2, 5, 8, 11) for i in range(3)]
            if not BA: a("s_barrier")
            for t_, xs in late: rd(t_, xs)
            run(seq, [])
            if BA: a("s_barrier")
            for x in rO(0, 1) + sum((rI(1, k_, 1) for k_ in range(ni)), []) + sum((rO(k_, 1) for k_ in range(1, no - 1)), []): a(x)
        else: step(0, True)
    else:
        first = rO(0, 0) + sum((rI(0, i, 0) for i in range(ni)), []) + sum((rO(o, 0) for o in range(1, no - DL)), [])
        for n, x in enumerate(first):
            if n == 12: a("s_waitcnt lgkmcnt(8)")
            a(x)
        a(f"s_branch M_in_{kind}\n.p2align 6")
    a(f"M_loop_{kind}:")
    step(1)
    a(f"M_in_{kind}:")
    step(0)
    a(f"s_cbranch_scc1 M_loop_{kind}")
    order = [(o, ni - 1 - i if o & 1 and SNAKE else i) for o in range(no) for i in range(ni)] if ffn else [(o, i) for o in range(no) for i in ((2, 1) if o & 1 and SNAKE else (1, 2))] + [(o, 0) for o in range(no)]
    ms = [mf(o, i, 1) for o, i in order]
    gr = [f"ds_read2_b32 {pr(VG+2*i)}, v{VGA} offset0:{32*i} offset1:{32*i+16}" for i in range(3 if ffn else 6)]
    if DL: gr = rO(no - 1, 1) + gr
    a(f"s_waitcnt lgkmcnt({NTOP - (len(rO(0, 0)) if DL else 0)})")
    for n, x in enumerate(ms[:36 - nleft]):
        a(x)
        if gr: a(gr.pop(0))
        if n == 10:
            a("s_waitcnt lgkmcnt(0)")
    a("M_kend_%s:" % kind)
    stamp(3)
    return ms[36 - nleft:]
def bsel(hi, n): return " op_sel:[0" + ",1" * n + "]" if hi else " op_sel_hi:[1" + ",0" * n + "]"
def swaps(o): return [f"v_permlane16_swap_b32 v{o}, v{o+2}", f"v_permlane16_swap_b32 v{o+1}, v{o+3}"]

wbase = [12 * 8192, True]
def wreg(i): return RES + 16 * (i if i < NRES else i % (LA + 1))
def wreads(i):
    o = []; tgt = 38 * 4096 if i == 21 else pslot(i) * 8192
    if (i != 21) != wbase[1]:
        o += [f"v_{'add' if i != 21 else 'subrev'}_u32 v{WA+c}, s77, v{WA+c}" for c in range(4)]; wbase[1] = i != 21
    if not 0 <= tgt - wbase[0] <= 65536 - 1024:
        nb = 12 * 8192 if tgt >= 12 * 8192 else 65536 if tgt >= 65536 else 0
        o += [f"v_add_u32 v{WA+c}, {(nb - wbase[0]) & 0xffffffff}, v{WA+c}" for c in range(4)]; wbase[0] = nb
    rd = [f"ds_read_b64_tr_b16 {pr(wreg(i) + 4*c + 2*h)}, v{WA+c} offset:{tgt - wbase[0] + 512*h}" for c in range(4) for h in range(2)]
    rd[0] = "\n".join(o + rd[:1])
    return rd
def preread():
    for i in range(NP0):
        for x in wreads(i): a(x)

a(f"v_mul_u32_u24 v13, 192, v11\nv_lshl_add_u32 v13, v10, 3, v13\nv_add_u32 v13, {XIMG}, v13\ns_mul_i32 s54, s53, 3\nv_xor_b32 v12, s54, v8\nv_lshl_add_u32 v{VW}, v12, 5, v13\ns_add_u32 s54, s54, 1\nv_xor_b32 v12, s54, v8\nv_lshl_add_u32 v{VW+1}, v12, 5, v13")
a(f"s_lshl_b32 s59, s26, 1\ns_add_u32 s59, s59, s52\ns_mul_i32 s56, s59, {3*HP}\ns_lshl_b32 s59, s59, {FSH+5}")
a("s_sub_u32 s60, s27, 8\ns_lshl_b32 s60, s60, 1\ns_add_u32 s60, s60, s53\ns_mul_i32 s57, s60, 3\ns_add_u32 s56, s56, s57\ns_lshl_b32 s68, s56, 10")
if LV2:
    a("s_sub_u32 s56, s56, s57\ns_cmp_ge_u32 s60, 14\ns_cselect_b32 s57, 14, 0\ns_cmp_ge_u32 s60, 28\ns_cselect_b32 s57, 28, s57\ns_lshl_b32 s58, s60, 1\ns_add_u32 s57, s57, s58\ns_add_u32 s57, s57, s56\ns_lshl_b32 s68, s57, 10")
    a("s_cmp_ge_u32 s60, 14\ns_cselect_b32 s57, 56, 28\ns_cmp_ge_u32 s60, 28\ns_cselect_b32 s57, 64, s57\ns_add_u32 s57, s57, s60\ns_add_u32 s57, s57, s56\ns_lshl_b32 s36, s57, 10")
    a(f"s_add_u32 s37, s36, {HP*1024}\ns_add_u32 s38, s36, {2*HP*1024}")
a(f"s_add_u32 s69, s68, {HP*1024}\ns_add_u32 s70, s68, {2*HP*1024}")
if NOPAD:
    a(f"s_cmp_eq_u32 s59, {21 << (FSH+5)}\ns_cselect_b32 s32, 0, s46")
    a(f"s_cmp_ge_u32 s60, 29\ns_cselect_b32 s57, 0x40000000, 0\nv_add_u32 v{VZS}, s57, v{VL}\ns_cmp_ge_u32 s60, 28\ns_cselect_b32 s57, 0x40000000, 0\nv_add_u32 v{VZG}, s57, v{VL}")
    a("s_mov_b32 s34, s32\ns_mov_b32 s32, s44\ns_mov_b32 s33, s45\ns_mov_b32 s35, 0x00020000")
a(f"s_lshl_b32 s60, s60, {FSH}\ns_add_u32 s71, s59, s60\ns_add_u32 s71, s71, {FH}")
if WF: a(f"s_lshl_b32 s71, s26, 5\ns_add_u32 s71, s71, s27\ns_lshl_b32 s71, s71, {FSH}\ns_add_u32 s71, s71, {FH - (8 << FSH)}")
a(f"s_mov_b32 s30, {NLOG2E}\ns_mov_b32 s31, {NLOG2E}")
m_ready()
NL = int(opt("nl", 22)); NPK = int(opt("npk", 1 if NL else 0))
assert NL <= 22
ops = kloop("ffn", NL)
TS = (168, 180, 144, 156, 192, 204)
for fi in range(3):
    for ti in range(3):
        un = 3 * fi + ti
        d = 48 * fi + 8 * ti; u = d + 24; t = TS[un % 6]; g = pr(VG + 2 * ti)
        if un < NPK:
            for j in range(8): ops.append(f"v_mul_f32 v{t+j}, s30, v{d+j}")
            for j in range(8): ops.append(f"v_exp_f32 v{t+j}, v{t+j}")
            for j in range(8): ops.append(f"v_fma_f32 v{t+j}, v{t+j}, v{VG+2*ti+(j>>2)}, v{VG+2*ti+(j>>2)}")
        else:
            for j in range(0, 8, 2): ops.append(f"v_pk_mul_f32 {pr(t+j)}, {pr(d+j)}, s[30:31]")
            for j in range(8): ops.append(f"v_exp_f32 v{t+j}, v{t+j}")
            for j in range(0, 8, 2): ops.append(f"v_pk_fma_f32 {pr(t+j)}, {pr(t+j)}, {g}, {g}" + bsel(j >= 4, 2))
        for j in range(0, 8, 2): ops.append(f"v_pk_mul_f32 {pr(d+j)}, {pr(d+j)}, {pr(u+j)}")
        for j in range(8): ops.append(f"v_rcp_f32 v{t+j}, v{t+j}")
        for j in range(0, 8, 2): ops.append(f"v_pk_mul_f32 {pr(d+j)}, {pr(d+j)}, {pr(t+j)}")
        for j in range(4): ops.append(f"v_cvt_pk_bf16_f32 v{t+8+j}, v{d+2*j}, v{d+2*j+1}")
        ops += swaps(t + 8)
        if not opt("nost"): ops.append(f"buffer_store_dwordx4 {q4(t+8)}, v{(VZG if fi == 2 else VZS) if NOPAD else VL}, {'s[32:35]' if ti and NOPAD else 's[44:47]'}, " + (f"s{36+ti} offen sc1" if LV2 and fi == 2 else f"s{68+ti} offen offset:{1024*fi} sc1"))
HOLD = int(opt("hold", 0))
if HOLD:
    idx = [i for i, x in enumerate(ops) if x.startswith("buffer_store")]
    st = [ops[i] for i in idx]; new = []
    for i, x in enumerate(ops):
        if i in idx:
            k_ = idx.index(i)
            if k_ < HOLD: continue
            new.append(x)
            if k_ - HOLD < HOLD: new.append(st[k_ - HOLD])
        else: new.append(x)
    ops = new
print("ffn epilogue model cycles", schedule(ops, a, window=NL + 40, holdpk=True), file=sys.stderr)
stamp(4)
if LV2:
    a("s_cmp_eq_u32 s28, 0\ns_waitcnt vmcnt(3)\ns_barrier\ns_cbranch_scc0 M_nf"); setflag(TG, f"v{VL}", "s71"); a("M_nf:")
    preread()
    a(f"s_add_u32 s71, s71, {11*FROW}\ns_waitcnt vmcnt(0)\ns_mov_b64 exec, 1\nds_add_rtn_u32 v0, v{VS}, v{VS+1}\ns_waitcnt lgkmcnt(0)\nv_cmp_eq_u32 vcc, 3, v0\ns_mov_b64 exec, -1\ns_cbranch_vccz M_nf2")
    setflag(TG, f"v{VL}", "s71"); a("M_nf2:")
    stamp(5)
elif WF:
    a("s_cmp_eq_u32 s28, 0\ns_waitcnt vmcnt(0)\ns_barrier\ns_cbranch_scc0 M_nf"); setflag(TG, f"v{VL}", "s71", True); a("M_nf:")
    stamp(5); preread()
else:
    a("s_waitcnt vmcnt(0)")
    setflag(TG, f"v{VL}", "s71", True)
    stamp(5)
    a("s_barrier"); preread()
a("s_branch M_s2")

a("M_qkv:")
a(f"v_and_b32 v12, 2, v9\nv_or_b32 v12, v12, v8\nv_xor_b32 v12, s28, v12\nv_lshlrev_b32 v12, 5, v12\nv_lshl_add_u32 v12, v11, 7, v12\nv_lshl_add_u32 v12, v10, 3, v12\nv_add_u32 v{VW}, {XIMG}, v12")
a("s_lshl_b32 s60, s27, 2\ns_add_u32 s60, s60, s28")
a(f"s_mul_i32 s56, s26, {6*HP}\ns_add_u32 s56, s56, s60\ns_add_u32 s56, s56, 96\ns_lshl_b32 s36, s56, 10")
for ti in range(1, 6): a(f"s_add_u32 s{36+ti}, s36, {ti*HP*1024}")
a(f"s_lshl_b32 s59, s26, {FSH+5}\ns_lshl_b32 s57, s60, {FSH}\ns_add_u32 s71, s59, s57\ns_add_u32 s71, s71, {FO}")
a(f"s_mul_i32 s72, s60, {11*PSZ}\ns_add_u32 s72, s72, {P_OFF}\ns_mul_i32 s73, s26, {PSZ}\ns_add_u32 s73, s73, s72\ns_add_u32 s57, s72, {4*PSZ}\ns_add_u32 s58, s72, {8*PSZ}")
a("s_cmp_eq_u32 s26, 10\ns_cselect_b32 s75, 0, 0x3f803f80")
if NOPAD: a("s_cselect_b32 s6, 0, s46\ns_mov_b32 s4, s44\ns_mov_b32 s5, s45\ns_mov_b32 s7, 0x00020000")
a(f"v_lshlrev_b32 v{VZS}, 4, v15\nv_mul_u32_u24 v12, {PSZ}, v14\nv_add_u32 v{VZG}, v12, v{VZS}\nv_lshl_add_u32 v{VZS}, v14, 6, v{VZS}\nv_mov_b32 v{VMK}, 0xffffff00")
for j in range(4): a(f"v_mov_b32 v{ONE+j}, 0x3f803f80")
a(f"s_mov_b32 s30, {LOG2E}\ns_mov_b32 s31, {LOG2E}\ns_mov_b32 s3, {EPS}")
m_ready()
for i in range(4): a(f"s_bfe_u32 s{32+i}, s22, {0x80000 + 8*i}")
NLQ = int(opt("nlq", 12))
qm = kloop("qkv", 12 + NLQ); km = qm[:NLQ]; qm = qm[NLQ:]
assert NLQ <= 12
CK = 200; CZ = 216; TP = (192, 208)
def phi8(b, t, dst=None, plain=False):
    if dst is None: dst = b
    o = []
    if plain:
        for j in range(8): o.append(f"v_mul_f32 v{t+j}, s30, v{b+j}")
    else:
        for j in range(0, 8, 2): o.append(f"v_pk_mul_f32 {pr(t+j)}, {pr(b+j)}, s[30:31]")
    for j in range(8): o.append(f"v_exp_f32 v{t+j}, v{t+j} clamp")
    for j in range(8): o.append(f"v_max_f32 v{b+j}, s3, v{b+j}")
    for j in range(0, 8, 2): o.append(f"v_pk_add_f32 {pr(b+j)}, {pr(b+j)}, {pr(t+j)}")
    for j in range(4): o.append(f"v_cvt_pk_bf16_f32 v{dst+j}, v{b+2*j}, v{b+2*j+1}")
    return o
ops = []
for p in range(6):
    dk = 48 + 8 * p; dv = 96 + 8 * p
    ops += phi8(dk, TP[p & 1], plain=(p == 0 and NLQ > 0))
    if p == 4: ops += [f"v_mov_b32 v{ONE+j}, s75" for j in range(4)]
    for j in range(4): ops.append(f"v_cvt_pk_bf16_f32 v{dv+j}, v{dv+2*j}, v{dv+2*j+1}")
    ops.append(f"v_mfma_f32_16x16x32_bf16 {q4(CK)}, {q4(dk)}, {q4(dv)}, {q4(CK) if p else 0}")
    ops.append(f"v_mfma_f32_16x16x32_bf16 {q4(CZ)}, {q4(dk)}, {q4(ONE)}, {q4(CZ) if p else 0}")
print("k epilogue model cycles", schedule(km + ops, a, window=30, holdpk=NLQ), file=sys.stderr)
stamp(1, "kq")
a(qm[0]); a(qm[1]); a("s_nop 4")
for j in range(4): a(f"v_and_or_b32 v{CK+j}, v{CK+j}, v{VMK}, s{32+j}")
a(f"buffer_store_dwordx4 {q4(CK)}, v{VL}, s[44:47], s73 offen sc1")
for j in range(4): a(f"v_and_or_b32 v{CZ+j}, v{CZ+j}, v{VMK}, s{32+j}")
stamp(2, "kq")
ZM = 0x30003 if opt("zw") else 0x10001
a(f"s_mov_b32 exec_lo, {ZM}\ns_mov_b32 exec_hi, {ZM}\nbuffer_store_dwordx4 {q4(CZ)}, v{VZS}, s[44:47], s73 offen offset:1024 sc1\ns_mov_b64 exec, -1")
stamp(4)
PBQ = int(opt("pbq", 1))
if PBQ == 0: a("s_barrier")
GK = 24; GZ = 72; GA = 76
EZ = int(opt("ez", 3))
def zload():
    for j in range(4): a(f"v_mov_b32 v{GZ+j}, s{32+j}")
    a(f"s_add_u32 s67, s67, 1\ns_cmp_lt_u32 s67, {SPIN}\ns_cselect_b32 s62, {0 if opt('noz') else 0xff}, 0\ns_mov_b32 exec_lo, 0x7ff07ff\ns_mov_b32 exec_hi, 0x7ff07ff")
    a(f"buffer_load_dwordx4 {q4(GZ)}, v{VZG}, s[44:47], s72 offen offset:1024 sc1\ns_mov_b64 exec, -1")
a("s_mov_b32 s67, 0")
assert PBQ <= EZ
if PBQ:
    schedule(qm[2:] + sum((phi8(8 * p, TP[p & 1], 4 * p) for p in range(PBQ)), []), a, window=40, holdpk=True)
    a("s_barrier")
    schedule(sum((phi8(8 * p, TP[p & 1], 4 * p) for p in range(PBQ, EZ)), []), a, window=40)
else: schedule(qm[2:] + sum((phi8(8 * p, TP[p & 1], 4 * p, p == 0) for p in range(EZ)), []), a, window=40, holdpk=True)
def kvloads():
    for p in range(11): a(f"buffer_load_dwordx4 {q4(GK+4*p)}, v{VL}, s[44:47], {('s72', 's57', 's58')[p//4]} offen offset:{(p%4)*PSZ} sc1")
def zcheck(br):
    a("s_waitcnt vmcnt(0)")
    for j in range(4): a(f"v_xor_b32 v{GZ+j}, s{32+j}, v{GZ+j}")
    a(f"v_or3_b32 v{GA}, v{GZ}, v{GZ+1}, v{GZ+2}\nv_or_b32 v{GA}, v{GA}, v{GZ+3}\nv_and_b32 v{GA}, s62, v{GA}\nv_cmp_ne_u32 vcc, 0, v{GA}\ns_nop 0\n{br}")
zload()
schedule(sum((phi8(8 * p, TP[p & 1], 4 * p) for p in range(EZ, 6)), []), a, window=40)
stamp(5, "kq")
stamp(1, "kz")
zcheck("s_cbranch_vccnz M_g1")
stamp(2, "kz"); stamp(5, "kz")
kvloads(); signal(); preread()
if not opt("nm"):
    a("s_branch M_g3\nM_g1:")
    stamp(2, "kz")
    zload(); preread()
    a("s_branch M_g2\nM_gw:")
    zload()
    a("M_g2:")
    zcheck("s_cbranch_vccnz M_gw")
    stamp(5, "kz")
    kvloads(); signal()
    a("M_g3:")
else:
    a("s_branch M_g3\nM_g1:")
    zload(); kvloads(); preread()
    a("s_branch M_g2\nM_gw:\ns_mov_b64 vcc, -1\nM_g4:")
    a("s_or_b32 s61, vcc_lo, vcc_hi\ns_lshr_b32 s60, s61, 16\ns_or_b32 s61, s61, s60")
    zload()
    for p in range(11):
        a(f"s_bitcmp1_b32 s61, {p}\ns_cbranch_scc0 M_gs{p}\nbuffer_load_dwordx4 {q4(GK+4*p)}, v{VL}, s[44:47], {('s72', 's57', 's58')[p//4]} offen offset:{(p%4)*PSZ} sc1\nM_gs{p}:")
    a("M_g2:")
    zcheck("s_cbranch_vccnz M_g4")
    signal()
    a("M_g3:")
stamp(5); stamp(6, "kq"); stamp(6, "kz")
ZA = 216; KA = 78; DN = 192
zo = [f"v_add_f32_dpp v{GZ+j}, v{GZ+j}, v{GZ+j} {ctl} row_mask:0xf bank_mask:0xf" for ctl in ["quad_perm:[1,0,3,2]", "quad_perm:[2,3,0,1]", "row_half_mirror", "row_mirror"] for j in range(4)]
zo += [f"v_cvt_pk_bf16_f32 v{GZ}, v{GZ}, v{GZ+1}", f"v_cvt_pk_bf16_f32 v{GZ+1}, v{GZ+2}, v{GZ+3}", f"v_cndmask_b32 v{ZA}, 0, v{GZ}, vcc", f"v_cndmask_b32 v{ZA+1}, 0, v{GZ+1}, vcc",
       f"v_xor_b32 v{ZA+2}, v{ZA}, v{GZ}", f"v_xor_b32 v{ZA+3}, v{ZA+1}, v{GZ+1}"]
dm = [f"v_mfma_f32_16x16x32_bf16 {q4(DN+4*p)}, {q4(ZA)}, {q4(4*p)}, 0" for p in range(6)]
def strip(p):
    r = GK + 4 * p
    return [f"v_xor_b32 v{r+j}, s{32+j}, v{r+j}" for j in range(4)] + [f"v_or3_b32 v{GA}, v{r}, v{r+1}, v{GA}", f"v_or3_b32 v{GA}, v{r+2}, v{r+3}, v{GA}"]
def addp(p): return [f"v_pk_add_f32 {pr(GK+j)}, {pr(GK+j)}, {pr(GK+4*p+j)}" for j in (0, 2)] if p else []
a("s_mov_b32 vcc_lo, 0x55555555\ns_mov_b32 vcc_hi, 0x55555555")
if opt("nomg"):
    for x in zo: a(x)
    ops = list(dm)
    for p in range(6):
        for h in range(2):
            r = DN + 4 * p + h; ops += [f"v_add_f32 v{r}, s3, v{r}", f"v_mul_f32 v{r}, v{r}, v{VG+2*p+h}", f"v_rcp_f32 v{r}, v{r}"]
    a("s_nop 1"); schedule(ops, a)
    for p in range(11):
        a(f"s_waitcnt vmcnt({10-p})")
        for x in strip(p) + addp(p): a(x)
    late = []
else:
    for x in zo: a(x)
    a("s_mov_b32 s60, s3\ns_mov_b32 s61, s3\ns_waitcnt vmcnt(8)")
    schedule(dm + strip(0) + strip(1) + strip(2), a, holdpk=True)
    for p in range(1, 11):
        if p >= 3:
            a(f"s_waitcnt vmcnt({10-p})")
            for x in strip(p): a(x)
        for x in addp(p): a(x)
        if p >= 5: a(f"v_pk_add_f32 {pr(DN+4*(p-5))}, {pr(DN+4*(p-5))}, s[60:61]")
    for p in range(6): a(f"v_pk_mul_f32 {pr(DN+4*p)}, {pr(DN+4*p)}, {pr(VG+2*p)}")
    late = [f"v_rcp_f32 v{DN+4*p+h}, v{DN+4*p+h}" for p in range(6) for h in range(2)]
a(f"v_and_b32 v{GA}, s62, v{GA}\nv_cmp_ne_u32 vcc, 0, v{GA}\nv_cvt_pk_bf16_f32 v{KA}, v{GK}, v{GK+1}\nv_cvt_pk_bf16_f32 v{KA+1}, v{GK+2}, v{GK+3}\ns_cbranch_vccnz M_gw\ns_nop 0")
stamp(7, "kq"); stamp(8, "kq"); stamp(7, "kz")
ops = []
for p in range(6):
    for h in range(2): ops.append(f"v_mfma_f32_16x16x16_bf16 {q4(GK+8*p+4*h)}, {pr(KA)}, {pr(4*p+2*h)}, 0")
ops += late
for p in range(6):
    n_ = GK + 8 * p; o = n_
    if p < int(opt("onp", 1 if opt("nomg") else 0)):
        for j in range(8): ops.append(f"v_mul_f32 v{n_+j}, v{n_+j}, v{DN+4*p+(j>>2)}")
    else:
        for j in range(0, 8, 2): ops.append(f"v_pk_mul_f32 {pr(n_+j)}, {pr(n_+j)}, {pr(DN+4*p)}" + bsel(j >= 4, 1))
    for j in range(4): ops.append(f"v_cvt_pk_bf16_f32 v{o+j}, v{n_+2*j}, v{n_+2*j+1}")
    ops += swaps(o)
    ops.append(f"buffer_store_dwordx4 {q4(o)}, v{VL}, {'s[4:7]' if p >= 4 and NOPAD else 's[44:47]'}, s{36+p} offen sc1")
print("o block model cycles", schedule(ops, a, window=40, holdpk=True), file=sys.stderr)

stamp(9, "kq"); stamp(8, "kz")
a("M_s2:")
stamp(6)
HLD = str(opt("hld", "sc1")).replace("none", "").replace("_", " ")
def hload(i):
    r = HB + 8 * (i % HD); o = []; va = VH
    if i == 21: base, jj = "s74", 0; va = VH + 1; o.append(f"v_add_u32 v{va}, s79, v{VH}")
    else: base, jj = ("s76", i) if i < 21 else ("s78", i - 22)
    if jj % 2 == 0 and jj: o.append(f"s_add_u32 {base}, {base}, 4096")
    ld = [f"buffer_load_dwordx4 {q4(r+4*t)}, v{va}, s[44:47], {base} offen offset:{(jj%2)*2048 + 256*t} {HLD}" for t in range(2)]
    return ["\n".join(o + ld[:1]), ld[1]]
a("s_barrier")
stamp(7)
for i in range(HD - 1):
    for x in hload(i): a(x)
NPRE = int(opt("npre", NRES))
for i in range(NP0, NPRE):
    for x in wreads(i): a(x)
issued = HD - 1; nread = NPRE
for i in range(30):
    h = HB + 8 * (i % HD); w = wreg(i)
    s1 = nread == NRES and i == NRES - NPRE
    a(f"s_waitcnt vmcnt({2 * (issued - 1 - i)})" + (" lgkmcnt(0)" if s1 or i == 29 else f" lgkmcnt({8*(LA-1)})" if i >= NRES else " lgkmcnt(8)" if i < NRES - NPRE else ""))
    if i == 0:
        a("s_cmp_lt_u32 s27, 8\ns_cbranch_scc0 M_noflag"); setflag(TG, f"v{VL}", "s71", True); a("s_nop 2\nM_noflag:")
        stamp(1, True)
    rd = []
    if nread < NRES: rd = wreads(nread); nread += 1
    elif NRES <= i + LA < 30: rd = wreads(i + LA)
    ld = []
    if issued < 30: ld = hload(issued); issued += 1
    n = 0
    for c in range(4):
        for t in ((1, 0) if c & 1 and SNAKE else (0, 1)):
            d = 16 * t + 4 * c
            a(f"v_mfma_f32_16x16x32_bf16 {q4(d)}, {q4(w+4*c)}, {q4(h+4*t)}, {q4(d) if i else 0}")
            if n == 0 and LV2 and i == 15 - HD: a("s_barrier")
            if n == 0 and (s1 or i == JS or (S2B and i == int(S2B))):
                st_ = (2, 3) if s1 else (6, 8) if i == JS else (4, 5)
                stamp(st_[0], True); a("s_barrier"); stamp(st_[1], st_[1] != 8)
            if LA == 1 or opt("rd2"):
                if n < 4:
                    for x in rd[2*n:2*n+2]: a(x)
                elif n in (4, 6) and ld: a(ld.pop(0))
            else:
                if rd: a(rd.pop(0))
                if n in (1, 5) and ld: a(ld.pop(0))
                if i == 28 and 1 <= n <= 3: a(f"v_xor_b32 v{WA+n}, {32*n}, v{VT}")
            n += 1
stamp(9)
a("s_nop 0")
for c in range(4):
    for t in ((1, 0) if c & 1 and SNAKE else (0, 1)): a(f"ds_write_b128 v{WA+c if c else VT}, {q4(16*t + 4*c)} offset:{16*t*PIT}")
a("s_waitcnt lgkmcnt(0)")
a(f"L_fin:\nv_xor_b32 v{VH+1}, 0x80, v{VFA}\ns_barrier")
a(f"ds_read_b128 v[16:19], v{VFA} offset:{PART}\nds_read_b128 v[24:27], v{VFA} offset:{PART+64*PIT}\nds_read_b128 v[20:23], v{VH+1} offset:{PART}\nds_read_b128 v[28:31], v{VH+1} offset:{PART+64*PIT}")
a("s_waitcnt lgkmcnt(2)\nv_pk_add_f32 v[16:17], v[16:17], v[24:25]\nv_pk_add_f32 v[18:19], v[18:19], v[26:27]\ns_waitcnt lgkmcnt(0)\nv_pk_add_f32 v[20:21], v[20:21], v[28:29]\nv_pk_add_f32 v[22:23], v[22:23], v[30:31]")
for j in range(4): a(f"v_cvt_pk_bf16_f32 v{16+j}, v{16+2*j}, v{17+2*j}")
a(f"buffer_store_dwordx4 v[16:19], v{VFO}, s[48:51], s42 offen " + str(opt("outflag", "sc1")).replace("_", " ").replace("none", ""))
stamp(10)
dump_stamps()
a("s_endpgm\nL_codeend:")
if WARM:
    import subprocess, tempfile, os
    def addrs(lines):
        t = []
        for i, x in enumerate(lines):
            if x is None: t.append(f"ZZ{i}:\ns_nop 0")
            elif re.match(r"(s_|v_|ds_|buffer_)", x): t.append(f"ZZ{i}:\n" + re.sub(r"WS_\d", "WRET", x))
            else: t.append(x)
        with tempfile.TemporaryDirectory() as d:
            open(d + "/t.s", "w").write("\n".join(t) + "\n")
            subprocess.check_call(["clang", "-x", "assembler", "-target", "amdgcn-amd-amdhsa", "-mcpu=gfx950", "-c", d + "/t.s", "-o", d + "/t.o"])
            sym = subprocess.check_output(["llvm-objdump", "-t", d + "/t.o"], text=True)
        return {int(m.group(2)): int(m.group(1), 16) for m in re.finditer(r"^([0-9a-f]+) .* ZZ(\d+)$", sym, re.M)}
    ENTRY = 0x300
    out = list(a.l); marks = []; nxt = 0x1000
    while True:
        ad = addrs(out); noins = False; pick = None
        for i, x in enumerate(out):
            if x is None: continue
            if x.startswith(("M_start:", "M_loop_", "M_b0_")): noins = True
            if i in ad and ad[i] + ENTRY >= nxt and not noins and not (out[i-1] or "").startswith(("s_add_u32 m0", "s_mov_b32 exec", "s_mov_b64 exec", "s_movk_i32 exec", "s_brev_b64 exec")):
                pick = i; break
            if x.startswith("WDONE:") or x.startswith("s_cbranch_scc1 M_loop_"): noins = False
        if pick is None: break
        at = ad[pick] + ENTRY
        if nxt % 0x1000 == 0 and at - nxt > 60: print("warning: page boundary %x not covered (stub at %x)" % (nxt, at), file=sys.stderr)
        out.insert(pick, None); marks.append(pick)
        page_end = (at | 0xfff) + 1
        left = page_end - at; k_ = -(-left // WARM)
        nxt = page_end if k_ <= 1 else at + left // k_
    n = len(marks); size = max(ad.values()); print("warm stubs", n, "code bytes", size, file=sys.stderr)
    assert size < 128 * 256
    for k_, m_ in enumerate(marks): out[m_] = f"WS_{k_}:\ns_cbranch_execz {'WS_%d' % (k_ + 4) if k_ + 4 < n else 'WRET'}"
    a.l = out
rodata(a)
kdesc(a, K, 256, 256)
open(OUT, "w").write(a.text())
```
